```python
import torch

def _softmax(x, axis=-1):
    return torch.softmax(x, dim=axis)

def _gelu(x):
    return torch.nn.functional.gelu(x, approximate='tanh')

def _silu(x):
    return torch.nn.functional.silu(x)

def _sigmoid(x):
    return torch.sigmoid(x)

def _layernorm(x, axis=-1, eps=1e-05):
    m = x.mean(dim=axis, keepdim=True)
    v = x.var(dim=axis, keepdim=True, unbiased=False)
    return (x - m) / torch.sqrt(v + eps)

def _scatter_add(tgt, idx, src, axis=0):
    return tgt.clone().index_add_(axis, idx, src)

def _segment_sum(src, seg, n):
    out = torch.zeros((n,) + src.shape[1:], dtype=src.dtype)
    return out.index_add_(0, seg, src)

def _pad(x, pw):
    flat = tuple((v for pair in reversed(pw) for v in pair))
    return torch.nn.functional.pad(x, flat)
kernel_name = 'adaLN_cond__sliding_block_cached__swiglu_ffn__decode'

def setup_inputs():

    _w = lambda a: (lambda t: t.to(torch.bfloat16) if t.is_floating_point() else t)(torch.as_tensor(a))

    def _A_setup():
        B, Sq, D = (8, 1, 512)
        Hq, Hkv, Sk, Dh = (32, 8, 8192, 128)
        assert Hq % Hkv == 0, (Hq, Hkv)
        return {'x': _w((lambda *s: torch.randn(*s, dtype=torch.bfloat16) * 0.05)(B, Sq, D)), 'k_cache': _w((lambda *s: torch.randn(*s, dtype=torch.bfloat16) * 3.2)(B, Hkv, Sk, Dh)), 'v_cache': _w((lambda *s: torch.randn(*s, dtype=torch.bfloat16) * 0.4)(B, Hkv, Sk, Dh)), 'wq': _w((lambda *s: torch.randn(*s, dtype=torch.bfloat16) * 3.2)(D, Hq * Dh) * D ** (-0.5)), 'wo': _w((lambda *s: torch.randn(*s, dtype=torch.bfloat16) * 0.4)(Hq * Dh, D) * (Hq * Dh) ** (-0.5))}
    _A_in = _A_setup()

    def _B_setup():
        B, S, D, F = (8, 1, 512, 1792)
        return {'x': _w((lambda *s: torch.randn(*s, dtype=torch.bfloat16) * 0.05)(B, S, D)), 'w_gate': _w((lambda *s: torch.randn(*s, dtype=torch.bfloat16) * 0.05)(D, F)), 'w_up': _w((lambda *s: torch.randn(*s, dtype=torch.bfloat16) * 0.05)(D, F)), 'w_down': _w((lambda *s: torch.randn(*s, dtype=torch.bfloat16) * 0.05)(F, D))}
    _B_in = _B_setup()
    return {'A_x': _A_in['x'], 'A_k_cache': _A_in['k_cache'], 'A_v_cache': _A_in['v_cache'], 'A_wq': _A_in['wq'], 'A_wo': _A_in['wo'], 'B_x': _B_in['x'], 'B_w_gate': _B_in['w_gate'], 'B_w_up': _B_in['w_up'], 'B_w_down': _B_in['w_down'], 'c': _w((lambda *s: torch.randn(*s, dtype=torch.bfloat16) * 0.1)(8, 512) * 8.0), 'w_mod': _w((lambda *s: torch.randn(*s, dtype=torch.bfloat16) * 0.1)(512, 6 * 512) * 512 ** (-0.5) * 8.0)}

def reference(A_x, A_k_cache, A_v_cache, A_wq, A_wo, B_x, B_w_gate, B_w_up, B_w_down, c, w_mod):

    def _A_ref(x, k_cache, v_cache, wq, wo):
        B, Sq, D = x.shape
        Hq, Dh = (32, 128)
        Hkv, Sk = (k_cache.shape[1], k_cache.shape[2])
        W = min(4096, max(256, Sk // 4))
        rep = Hq // Hkv
        q = (lambda x, *d: x.permute(*d))((x @ wq).reshape(B, Sq, Hq, Dh), 0, 2, 1, 3)
        k = (lambda x, n, axis: torch.repeat_interleave(x, n, dim=axis))(k_cache[:, :, Sk - W:, :], rep, axis=1)
        v = (lambda x, n, axis: torch.repeat_interleave(x, n, dim=axis))(v_cache[:, :, Sk - W:, :], rep, axis=1)
        scores = torch.einsum('bhqd,bhkd->bhqk', q, k) * Dh ** (-0.5)
        p = _softmax(scores, axis=-1)
        o = torch.einsum('bhqk,bhkd->bhqd', p, v)
        return (lambda x, *d: x.permute(*d))(o, 0, 2, 1, 3).reshape(B, Sq, Hq * Dh) @ wo

    def _B_ref(x, w_gate, w_up, w_down):
        g = _silu(x @ w_gate)
        u = x @ w_up
        return g * u @ w_down
    x = A_x
    mod = (_silu(c) @ w_mod).reshape(c.shape[0], 6, 1, -1)
    sa, ca, ga, sb, cb, gb = (mod[:, 0].clone(), mod[:, 1].clone(), mod[:, 2].clone(), mod[:, 3].clone(), mod[:, 4].clone(), mod[:, 5].clone())
    h = _layernorm(x, axis=-1) * (1 + ca) + sa
    x = x + ga * _A_ref(h, A_k_cache, A_v_cache, A_wq, A_wo)
    h = _layernorm(x, axis=-1) * (1 + cb) + sb
    x = x + gb * _B_ref(h, B_w_gate, B_w_up, B_w_down)
    return x
```

```python
import re
TRANS = ('v_exp_f32','v_rcp_f32','v_sqrt_f32','v_rsq_f32','v_log_f32')
def regs_of(tok):
    tok = tok.strip()
    tok = tok.lstrip('-')
    if tok.startswith('abs(') or tok.startswith('|'):
        tok = tok.replace('abs(','').replace(')','').replace('|','')
    m = re.fullmatch(r'([vs])(\d+)', tok)
    if m: return {(m.group(1), int(m.group(2)))}
    m = re.fullmatch(r'([vs])\[(\d+):(\d+)\]', tok)
    if m: return {(m.group(1), i) for i in range(int(m.group(2)), int(m.group(3))+1)}
    if tok == 'vcc': return {('s',106),('s',107)}
    if tok == 'exec': return {('s',126),('s',127)}
    if tok == 'm0': return {('s',124)}
    if tok == 'vcc_lo': return {('s',106)}
    if tok == 'vcc_hi': return {('s',107)}
    if tok == 'exec_lo': return {('s',126)}
    if tok == 'exec_hi': return {('s',127)}
    return set()
class Ins:
    def __init__(self, text):
        self.text = text
        t = text.split(';')[0].strip()
        self.label = None; self.op = None
        if t.endswith(':'):
            self.label = t[:-1]; return
        if not t or t.startswith('.'):
            return
        parts = t.split(None, 1)
        self.op = op = parts[0]
        rest = parts[1] if len(parts) > 1 else ''
        ops = [x.strip() for x in rest.split(',')]
        mods = ''
        if ops and ops[-1]:
            sp = ops[-1].split(None, 1)
            ops[-1] = sp[0]
            mods = sp[1] if len(sp) > 1 else ''
        if 'quad_perm' in rest:
            pre = rest.split('quad_perm')[0]
            ops = [x.strip() for x in pre.split(',')]
            ops[-1] = ops[-1].split()[0]
            mods = 'quad_perm'
        self.ops = ops; self.mods = mods
        R = [regs_of(x) for x in ops]
        self.w = set(); self.r = set()
        self.mfma = op.startswith('v_mfma')
        self.valu = op.startswith('v_') and not self.mfma
        self.vmem = op.startswith('buffer_') or op.startswith('global_')
        self.ds = op.startswith('ds_')
        self.salu = op.startswith('s_')
        self.dpp = '_dpp' in op
        self.trans = op.replace('_e32','').replace('_e64','') in TRANS
        self.permlane = op.startswith('v_permlane')
        self.rdlane = op.startswith('v_readfirstlane') or op.startswith('v_readlane')
        self.ldsdma = self.vmem and (' lds' in (' '+mods) or 'load_lds' in op)
        self.wide_store = False
        self.branch = None; self.uncond = False
        if self.mfma:
            self.w = R[0]; self.ra = R[1] | R[2]; self.rc = R[3]; self.r = self.ra | self.rc
        elif self.valu:
            self.w = set(R[0])
            for x in R[1:]: self.r |= x
            if self.permlane: self.w |= R[1]; self.r |= R[0]
            if op.startswith('v_fmac') or self.dpp or op.startswith('v_writelane'): self.r |= R[0]
            if op.startswith('v_cndmask') and len(ops) == 3: self.r |= regs_of('vcc')
        elif self.vmem:
            if 'load' in op and not self.ldsdma:
                self.w = R[0]
                for x in R[1:]: self.r |= x
            else:
                for x in R: self.r |= x
                if 'store' in op and ('x4' in op or 'x3' in op):
                    self.wide_store = True
                    self.sdata = R[0] if op.startswith('buffer_') else R[1]
            if self.ldsdma: self.r |= regs_of('m0')
        elif self.ds:
            if op.startswith('ds_read') or 'rtn' in op or 'permute' in op or 'swizzle' in op:
                self.w = R[0]
                for x in R[1:]: self.r |= x
            else:
                for x in R: self.r |= x
        elif self.salu:
            if op.startswith('s_cbranch') or op == 's_branch':
                self.branch = ops[0]; self.uncond = (op == 's_branch')
            elif op == 's_endpgm': self.uncond = True
            elif op.startswith('s_cmp') or op.startswith('s_bitcmp') or op in ('s_nop','s_waitcnt','s_barrier','s_sleep','s_setprio'):
                for x in R: self.r |= x
            else:
                self.w = set(R[0])
                for x in R[1:]: self.r |= x
    def states(self):
        if self.op is None: return 0
        if self.op == 's_nop': return int(self.ops[0], 0) + 1
        return 1
def need(p, c):
    n = 0
    vw = {x for x in p.w if x[0] == 'v'}; sw = {x for x in p.w if x[0] == 's'}
    if p.valu:
        if c.mfma and (vw & c.r): n = max(n, 2)
        if c.valu and c.dpp and (vw & c.r): n = max(n, 2)
        if c.valu and c.permlane and (vw & c.r): n = max(n, 2)
        if c.valu and c.rdlane and (vw & c.r): n = max(n, 1)
        if p.trans and (vw & c.r) and not (c.valu and c.trans): n = max(n, 1)
        if sw:
            if (c.valu or c.mfma) and (sw & c.r): n = max(n, 4 if (c.rdlane or c.op.startswith('v_writelane')) else 2)
            if c.vmem and (sw & c.r): n = max(n, 5)
            if c.salu and (sw & c.r): n = max(n, 1)
    if p.mfma:
        if c.mfma:
            if p.w & c.ra: n = max(n, 8)
            if (p.w & c.rc) and p.w != c.rc: n = max(n, 6)
            if (p.w & c.w) and p.w != c.w: n = max(n, 6)
        elif c.valu or c.vmem or c.ds:
            if p.w & (c.r | c.w): n = max(n, 8)
        if c.valu and (p.rc & c.w): n = max(n, 3)
        if (c.vmem or c.ds) and (p.rc & c.w): n = max(n, 3)
    if p.salu and ('s',124) in p.w and c.vmem and c.ldsdma: n = max(n, 1)
    if p.vmem and p.wide_store and (p.sdata & c.w): n = max(n, 2 if c.valu else 1)
    return n
def fix_hazards(lines):
    ins = [Ins(l) for l in lines]
    changed = True; total = 0
    while changed:
        changed = False
        lab = {x.label: i for i, x in enumerate(ins) if x.label}
        into = {}
        for i, x in enumerate(ins):
            if x.op and x.branch: into.setdefault(lab[x.branch], []).append(i)
        out = []
        for i, c in enumerate(ins):
            if c.op:
                worst = 0
                stack = [(i, 0)]; seen = {}
                while stack:
                    k, d = stack.pop()
                    preds = []
                    if k > 0 and not (ins[k-1].op and ins[k-1].uncond): preds.append(k-1)
                    preds += into.get(k, [])
                    for pk in preds:
                        p = ins[pk]
                        if p.op:
                            nd = need(p, c) - d
                            if nd > worst: worst = nd
                        d2 = d + p.states()
                        if d2 < 9 and seen.get(pk, 99) > d2:
                            seen[pk] = d2; stack.append((pk, d2))
                if worst > 0:
                    out.append(Ins(f's_nop {worst-1}')); changed = True; total += 1
            out.append(c)
            if changed:
                out += ins[i+1:]
                break
        ins = out if changed else ins
    return [x.text for x in ins], total
```

```python
import sys, argparse
from asmlib import fix_hazards
NAME='adaLN_cond__sliding_block_cached__swiglu_ffn__decode'

SC=0x000000; QP=0x100000; MP=0x180000; MT=0x1A0000; WP=0x1C0000; DP=0x1E0000
ST=0x200000; OO=0x210000; X1=0x220000; GU=0x230000; WS_USED=0x240000
STAMP=0x10000000
L_W=0x0; L_WM=0x10000; L_P=0x14000; L_Y=L_P; L_OP=0x18000; L_H=L_OP
OP_PITCH=2048+128
L_ACT=0x1C800; L_Q=0x1EA00; L_FLAGS=0x1F000; L_X1S=0x1F100; L_STAMP=0x1F900; LDS_SIZE=0x1FC00
F_CLEARED=0; F_QREADY=4; F_MODE=8; F_ALLCLR=12; F_PREADY=16; F_SUB=48
sWAVE,sG,sB,sJ,sMODE = 's3','s4','s5','s6','s7'
RK,RV,RWS,RW1,RWM,RC,RX,ROUT,RDBG = 's[8:11]','s[12:15]','s[16:19]','s[20:23]','s[24:27]','s[28:31]','s[60:63]','s[64:67]','s[68:71]'
sTO='s72'
sPAIR='s73'
sW8='s74'
LOG2E=0x3fb8aa3b
SCALE=0x3db504f3

class G:
    def __init__(self, opt):
        self.L=[]; self.o=opt; self.nl=0; self.nstamp=0
    def __call__(self, s):
        for l in s.split('\n'):
            l=l.strip()
            if l: self.L.append(l)
    def lab(self, p='L'):
        self.nl+=1; return f'{p}_{self.nl}'
    def stamp(self, slot, va='v126', vb='v127'):
        if not self.o.stamps: return
        self(f's_memrealtime s[98:99]\ns_waitcnt lgkmcnt(0)\nv_mov_b32 {va}, {L_STAMP+4*slot}\nv_mov_b32 {vb}, s98\nds_write_b32 {va}, {vb}\ns_waitcnt lgkmcnt(0)')
    def timeout(self, done):
        self(f's_cmp_eq_u32 {sTO}, 0\ns_cbranch_scc1 {done}\ns_sub_u32 {sTO}, {sTO}, 1')
    def lds_spin(self, vflag, off, target, vt, st='s76', sleep=1):
        a=self.lab('SPIN'); d=self.lab('SPD')
        self(f'{a}:\nds_read_b32 {vt}, {vflag} offset:{off}\ns_waitcnt lgkmcnt(0)\nv_readfirstlane_b32 {st}, {vt}\ns_cmp_ge_u32 {st}, {target}\ns_cbranch_scc1 {d}')
        self.timeout(d)
        if sleep: self(f's_sleep {sleep}')
        self(f's_branch {a}\n{d}:')
    def lds_set(self, vflag, off, val, vt):
        self(f'v_mov_b32 {vt}, {val}\nds_write_b32 {vflag}, {vt} offset:{off}')
    def poll(self, loads, regs, vt):
        a=self.lab('POLL'); d=self.lab('PLD')
        self(f'{a}:')
        for l in loads: self(l)
        self('s_waitcnt vmcnt(0)')
        self.chk(regs, vt)
        self(f's_cbranch_vccz {d}')
        self.timeout(d)
        self(f's_branch {a}\n{d}:')
    def chk(self, regs, vt):
        r=list(regs)
        if len(r)==1:
            self(f'v_cmp_eq_u32 vcc, -1, v{r[0]}'); return
        if len(r)==2:
            self(f'v_max_u32 {vt}, v{r[0]}, v{r[1]}')
        else:
            self(f'v_max3_u32 {vt}, v{r[0]}, v{r[1]}, v{r[2]}')
            r=r[3:]
            while len(r)>=2:
                self(f'v_max3_u32 {vt}, {vt}, v{r[0]}, v{r[1]}'); r=r[2:]
            if r: self(f'v_max_u32 {vt}, {vt}, v{r[0]}')
        self(f'v_cmp_eq_u32 vcc, -1, {vt}')
    def nosent(self, regs):
        for r in regs: self(f'v_min_u32 v{r}, -2, v{r}')
    def pub(self, instr, local_ok=False):
        if local_ok and self.o.local:
            a=self.lab('PUBL'); d=self.lab('PUBD')
            self(f's_cmp_eq_u32 {sMODE}, 1\ns_cbranch_scc1 {a}\n{instr} sc1\ns_branch {d}\n{a}:\n{instr}\n{d}:')
        else:
            self(instr+' sc1')
    def unpack(self, src, dlo, dhi):
        self(f'v_lshlrev_b32 v{dlo}, 16, v{src}\nv_and_b32 v{dhi}, 0xffff0000, v{src}')
    def rnd2(self, a, b, t):
        self(f'v_cvt_pk_bf16_f32 v{t}, v{a}, v{b}')
        self.unpack(t, a, b)
    def wave_red(self, op, regs, tmps):
        for mod in ('quad_perm:[1,0,3,2]','quad_perm:[2,3,0,1]','row_half_mirror','row_mirror'):
            for r in regs: self(f'{op}_dpp v{r}, v{r}, v{r} {mod} row_mask:0xf bank_mask:0xf')
        self.red_rows(op, regs, tmps)
    def red_rows(self, op, regs, tmps):
        for sw in ('v_permlane16_swap_b32','v_permlane32_swap_b32'):
            for r,t in zip(regs,tmps): self(f'v_mov_b32 v{t}, v{r}')
            for r,t in zip(regs,tmps): self(f'{sw} v{r}, v{t}')
            for r,t in zip(regs,tmps): self(f'{op} v{r}, v{r}, v{t}')
    def silu_inplace(self, xs, ts):
        self(f's_mov_b32 s77, 0x{(LOG2E|0x80000000):x}')
        for x,t in zip(xs,ts): self(f'v_mul_f32 v{t}, s77, v{x}')
        for x,t in zip(xs,ts): self(f'v_exp_f32 v{t}, v{t}')
        for x,t in zip(xs,ts): self(f'v_add_f32 v{t}, 1.0, v{t}')
        for x,t in zip(xs,ts): self(f'v_rcp_f32 v{t}, v{t}')
        for x,t in zip(xs,ts): self(f'v_mul_f32 v{x}, v{x}, v{t}')
    def silu8(self, src, x0, t0):
        for i in range(4): self.unpack(src+i, x0+2*i, x0+2*i+1)
        self.silu_inplace(list(range(x0,x0+8)), list(range(t0,t0+8)))
        for i in range(4): self(f'v_cvt_pk_bf16_f32 v{src+i}, v{x0+2*i}, v{x0+2*i+1}')
    def ln8(self, src, x0, t0):
        X=list(range(x0,x0+8)); T=list(range(t0,t0+8)); s1,s2,u1,u2=t0+8,t0+9,t0+10,t0+11
        for i in range(4): self.unpack(src+i, x0+2*i, x0+2*i+1)
        self(f'v_readfirstlane_b32 s77, v{x0}')
        for x,t in zip(X,T): self(f'v_subrev_f32 v{t}, s77, v{x}')
        self(f'v_add_f32 v{s1}, v{T[0]}, v{T[1]}\nv_mul_f32 v{s2}, v{T[0]}, v{T[0]}')
        self(f'v_fmac_f32 v{s2}, v{T[1]}, v{T[1]}')
        for t in T[2:]:
            self(f'v_add_f32 v{s1}, v{s1}, v{t}\nv_fmac_f32 v{s2}, v{t}, v{t}')
        self.wave_red('v_add_f32', [s1,s2], [u1,u2])
        self(f'v_mul_f32 v{s1}, 0x3b000000, v{s1}\nv_mul_f32 v{s2}, 0x3b000000, v{s2}')
        self(f'v_fma_f32 v{s2}, -v{s1}, v{s1}, v{s2}\nv_max_f32 v{s2}, 0, v{s2}\nv_add_f32 v{s1}, s77, v{s1}')
        self.rnd2(s1, s2, u1)
        self(f'v_add_f32 v{s2}, 0x3727c5ac, v{s2}')
        self(f'v_cvt_pk_bf16_f32 v{u1}, v{s2}, v{s2}\nv_lshlrev_b32 v{s2}, 16, v{u1}\nv_sqrt_f32 v{s2}, v{s2}')
        self(f'v_cvt_pk_bf16_f32 v{u1}, v{s2}, v{s2}\nv_lshlrev_b32 v{s2}, 16, v{u1}\nv_rcp_f32 v{s2}, v{s2}')
        for x in X: self(f'v_sub_f32 v{x}, v{x}, v{s1}')
        for i in range(4): self.rnd2(X[2*i], X[2*i+1], T[i])
        for x in X: self(f'v_mul_f32 v{x}, v{x}, v{s2}')
        for i in range(4): self.rnd2(X[2*i], X[2*i+1], T[i])
    def dma_voff(self, ve, vo, pitch, vt):
        self(f'v_lshrrev_b32 {vt}, 3, v1\ns_mov_b32 s77, {pitch}\nv_mul_lo_u32 {ve}, {vt}, s77')
        self(f'v_bfe_u32 {vt}, v1, 4, 1\nv_lshlrev_b32 {vt}, 1, {vt}\nv_and_b32 {vo}, 7, v1\nv_xor_b32 {vt}, {vt}, {vo}\nv_lshlrev_b32 {vt}, 4, {vt}\nv_add_u32 {ve}, {ve}, {vt}\nv_xor_b32 {vo}, 64, {ve}')
    def dma(self, srd, voff, s_src, src_imm, s_lds, lds_imm, nt=True):
        self(f's_add_u32 s78, {s_src}, {src_imm}\ns_add_u32 m0, {s_lds}, {lds_imm}')
        self(f'buffer_load_dwordx4 {voff}, {srd}, s78 offen{" nt" if nt else ""} lds')
    def tr_addr(self, vd, s_ct, base, vt, vt2):
        self(f'v_lshrrev_b32 {vt}, 4, v1\nv_lshlrev_b32 {vd}, 10, {vt}\nv_and_b32 {vt}, 1, {vt}\nv_lshlrev_b32 {vt}, 1, {vt}')
        self(f'v_bfe_u32 {vt2}, v1, 3, 1\nv_or_b32 {vt}, {vt}, {vt2}\nv_xor_b32 {vt}, {s_ct}, {vt}\nv_lshl_add_u32 {vd}, {vt}, 5, {vd}')
        self(f'v_bfe_u32 {vt}, v1, 2, 2\nv_lshl_add_u32 {vd}, {vt}, 7, {vd}\nv_and_b32 {vt}, 3, v1\nv_lshl_add_u32 {vd}, {vt}, 3, {vd}\nv_add_u32 {vd}, {base}, {vd}')
    def tr_frags(self, vaddr, r0, msteps):
        for i,m in enumerate(msteps):
            self(f'ds_read_b64_tr_b16 v[{r0+4*i}:{r0+4*i+1}], {vaddr} offset:{m*4096}\nds_read_b64_tr_b16 v[{r0+4*i+2}:{r0+4*i+3}], {vaddr} offset:{m*4096+512}')
    def act_addr(self, vd, base, pitch, vt):
        self(f'v_and_b32 {vt}, 7, v1\nv_mul_u32_u24 {vd}, {pitch}, {vt}\nv_lshrrev_b32 {vt}, 4, v1\nv_lshl_add_u32 {vd}, {vt}, 4, {vd}\nv_add_u32 {vd}, {base}, {vd}')
    def gemv_tile(self, wf0, nk, vact, a0, d0):
        for m in range(nk): self(f'ds_read_b128 v[{a0+4*m}:{a0+4*m+3}], {vact} offset:{m*64}')
        for m in range(nk):
            self(f's_waitcnt lgkmcnt({min(15,nk-1-m)})')
            c = '0' if m==0 else f'v[{d0}:{d0+3}]'
            self(f'v_mfma_f32_16x16x32_bf16 v[{d0}:{d0+3}], v[{wf0+4*m}:{wf0+4*m+3}], v[{a0+4*m}:{a0+4*m+3}], {c}')
    def part_store_addr(self, vd, s_base, vt):
        self(f'v_and_b32 {vt}, 15, v1\nv_lshlrev_b32 {vd}, 6, {vt}\nv_lshrrev_b32 {vt}, 4, v1\nv_lshl_add_u32 {vd}, {vt}, 4, {vd}\nv_add_u32 {vd}, {s_base}, {vd}')

def build(o):
    g=G(o); A=g
    A(f'''s_cmp_ge_u32 s2, 256
s_cbranch_scc1 L_END
s_load_dwordx16 s[32:47], s[0:1], 0
s_load_dwordx8 s[48:55], s[0:1], 64
s_load_dwordx4 s[56:59], s[0:1], 96
v_and_b32 v1, 63, v0
v_lshrrev_b32 v2, 6, v0
v_readfirstlane_b32 {sWAVE}, v2
s_and_b32 {sG}, s2, 7
s_bfe_u32 {sB}, s2, 0x30003
s_lshr_b32 {sJ}, s2, 6
s_mov_b32 {sMODE}, 0
s_mov_b32 {sTO}, 0x200000
s_lshl_b32 {sPAIR}, {sG}, 3
s_add_u32 {sPAIR}, {sPAIR}, {sB}
s_and_b32 {sW8}, {sWAVE}, 7
v_mov_b32 v3, {L_FLAGS}
v_lshl_add_u32 v4, v1, 2, v3
v_mov_b32 v5, 0
s_cmp_lg_u32 {sWAVE}, 0
s_cbranch_scc1 L_NOINIT
ds_write_b32 v4, v5''')
    if o.stamps: A(f'ds_write_b32 v4, v5 offset:{L_STAMP-L_FLAGS}')
    A(f'''L_NOINIT:
s_lshl_b32 s76, {sB}, 24
s_lshl_b32 s77, {sG}, 21
s_add_u32 s76, s76, s77
s_add_u32 s76, s76, 0x180000
s_waitcnt lgkmcnt(0)
s_add_u32 s8, s34, s76
s_addc_u32 s9, s35, 0
s_mov_b32 s10, 0x80000
s_mov_b32 s11, 0x20000
s_add_u32 s12, s36, s76
s_addc_u32 s13, s37, 0
s_mov_b32 s14, 0x80000
s_mov_b32 s15, 0x20000
s_mov_b32 s16, s58
s_mov_b32 s17, s59
s_mov_b32 s18, {WS_USED}
s_mov_b32 s19, 0x20000
s_mov_b32 s24, s52
s_mov_b32 s25, s53
s_mov_b32 s26, 0x300000
s_mov_b32 s27, 0x20000
s_mov_b32 s28, s50
s_mov_b32 s29, s51
s_mov_b32 s30, 0x2000
s_mov_b32 s31, 0x20000
s_mov_b32 s60, s32
s_mov_b32 s61, s33
s_mov_b32 s62, 0x2000
s_mov_b32 s63, 0x20000
s_mov_b32 s64, s54
s_mov_b32 s65, s55
s_mov_b32 s66, 0x2000
s_mov_b32 s67, 0x20000
s_mov_b32 s68, s56
s_mov_b32 s69, s57
s_mov_b32 s70, 0x100
s_mov_b32 s71, 0x20000
s_mov_b32 s20, s38
s_mov_b32 s21, s39
s_mov_b32 s22, 0x400000
s_mov_b32 s23, 0x20000
s_cmp_eq_u32 {sJ}, 1
s_cselect_b32 s20, s40, s20
s_cselect_b32 s21, s41, s21
s_cmp_lt_u32 {sB}, 4
s_cselect_b32 s76, s44, s46
s_cselect_b32 s77, s45, s47
s_cmp_eq_u32 {sJ}, 2
s_cselect_b32 s20, s76, s20
s_cselect_b32 s21, s77, s21
s_cselect_b32 s22, 0x1c0000, s22
s_cmp_eq_u32 {sJ}, 3
s_cselect_b32 s20, s48, s20
s_cselect_b32 s21, s49, s21
s_cselect_b32 s22, 0x1c0000, s22
s_barrier''')
    A(f's_cmp_lg_u32 {sWAVE}, 0\ns_cbranch_scc1 L_NS0')
    g.stamp(0)
    A('L_NS0:')
    A(f's_cmp_eq_u32 {sWAVE}, 15\ns_cbranch_scc1 L_SYNC')
    A(f's_cmp_eq_u32 {sJ}, 0\ns_cbranch_scc1 L_CHAIN')
    A(f's_cmp_lt_u32 {sWAVE}, 8\ns_cbranch_scc1 L_KPATH')
    A(f's_cmp_lg_u32 {sJ}, 3\ns_cbranch_scc1 L_VPATH')
    A(f's_cmp_ge_u32 {sWAVE}, 12\ns_cbranch_scc1 L_VPATH')
    A('L_MODT:\ns_setprio 2')
    A(f's_sub_u32 s80, s2, 192\ns_and_b32 s81, s80, 1\ns_lshr_b32 s82, s80, 1')
    A(f'v_lshrrev_b32 v4, 3, v1\nv_lshlrev_b32 v5, 10, v4\nv_and_b32 v6, 7, v1\nv_lshl_add_u32 v5, v6, 4, v5')
    A(f's_lshl_b32 s83, s81, 9\ns_lshl_b32 s84, {sW8}, 7\ns_add_u32 s83, s83, s84')
    A(f'buffer_load_dwordx4 v[8:11], v5, {RC}, s83 offen')
    g.dma_voff('v12','v13',6144,'v14')
    A(f's_lshl_b32 s83, s81, 8\ns_lshl_b32 s84, {sW8}, 6\ns_add_u32 s83, s83, s84\ns_mul_i32 s83, s83, 6144\ns_lshl_b32 s84, s82, 7\ns_add_u32 s83, s83, s84\ns_add_u32 s83, s83, 2048')
    A(f's_lshl_b32 s84, {sW8}, 13')
    for i in range(8): g.dma(RWM, 'v13' if i&1 else 'v12', 's83', i*8*6144, 's84', 0x8000+i*1024)
    A('s_waitcnt vmcnt(8)')
    g.silu8(8, 16, 24)
    A(f'v_mul_u32_u24 v5, 544, v4\nv_lshl_add_u32 v5, v6, 4, v5\ns_lshl_b32 s84, {sW8}, 7\ns_add_u32 s84, s84, {L_ACT}\nv_add_u32 v5, s84, v5')
    A('ds_write_b128 v5, v[8:11]')
    A('s_waitcnt vmcnt(0) lgkmcnt(0)')
    A(f'v_mov_b32 v5, 1\ns_mov_b64 exec, 1\nds_add_u32 v3, v5 offset:{F_SUB}\ns_mov_b64 exec, -1')
    g.lds_spin('v3', F_SUB, 4, 'v5')
    g.tr_addr('v5', sW8, 0x8000, 'v6', 'v7')
    g.tr_frags('v5', 16, range(8))
    g.act_addr('v6', L_ACT, 544, 'v7')
    g.gemv_tile(16, 8, 'v6', 48, 80)
    A(f's_lshl_b32 s83, s80, 11\ns_lshl_b32 s84, {sW8}, 9\ns_add_u32 s83, s83, s84\ns_add_u32 s83, s83, {MT}')
    g.part_store_addr('v5', 's83', 'v6')
    g.lds_spin('v3', F_CLEARED, 1, 'v6')
    g.nosent(range(80,84))
    A('s_mov_b64 exec, 0x00ff00ff00ff00ff') if False else A('s_mov_b32 exec_lo, 0x00ff00ff\ns_mov_b32 exec_hi, 0x00ff00ff')
    A(f'buffer_store_dwordx4 v[80:83], v5, {RWS}, 0 offen sc1')
    A('s_mov_b64 exec, -1\ns_setprio 0\ns_waitcnt vmcnt(0)\ns_branch L_VPATH')

    A('L_CHAIN:')
    A(f's_and_b32 s80, s2, 15\ns_lshr_b32 s81, s2, 4')
    A(f's_lshr_b32 s82, {sB}, 1\ns_and_b32 s83, {sB}, 1\ns_lshl_b32 s84, {sG}, 1\ns_add_u32 s83, s83, s84')
    A(f's_cmp_ge_u32 {sWAVE}, 8\ns_cbranch_scc1 L_CH_HI')
    g.dma_voff('v12','v13',6144,'v14')
    A(f's_lshl_b32 s84, s81, 7\ns_lshl_b32 s85, {sWAVE}, 4\ns_add_u32 s84, s84, s85\ns_mul_i32 s84, s84, 6144\ns_lshl_b32 s85, s80, 7\ns_add_u32 s84, s84, s85')
    A(f's_lshl_b32 s85, {sWAVE}, 11')
    for i in range(2): g.dma(RWM, 'v13' if i&1 else 'v12', 's84', i*8*6144, 's85', L_WM+i*1024)
    g.dma_voff('v12','v13',8192,'v14')
    A(f's_lshl_b32 s84, s82, 7\ns_lshl_b32 s86, {sWAVE}, 4\ns_add_u32 s84, s84, s86\ns_lshl_b32 s84, s84, 13\ns_lshl_b32 s86, s83, 9\ns_add_u32 s84, s84, s86')
    for i in range(2):
        for cb in range(4): g.dma(RW1, 'v13' if i&1 else 'v12', 's84', i*8*8192+cb*128, 's85', L_W+cb*16384+i*1024)
    A('s_waitcnt vmcnt(8)\ns_barrier')
    A(f's_cmp_ge_u32 {sWAVE}, 4\ns_cbranch_scc1 L_CH_NOM')
    g.tr_addr('v5', sWAVE, L_WM, 'v6', 'v7')
    g.tr_frags('v5', 16, range(4))
    g.act_addr('v6', L_ACT, 288, 'v7')
    g.gemv_tile(16, 4, 'v6', 48, 80)
    A(f's_lshl_b32 s84, s2, 11\ns_lshl_b32 s86, {sWAVE}, 9\ns_add_u32 s84, s84, s86\ns_add_u32 s84, s84, {MP}')
    g.part_store_addr('v5', 's84', 'v6')
    g.nosent(range(80,84))
    A('s_mov_b32 exec_lo, 0x00ff00ff\ns_mov_b32 exec_hi, 0x00ff00ff')
    A(f'buffer_store_dwordx4 v[80:83], v5, {RWS}, 0 offen sc1')
    A('s_mov_b64 exec, -1')
    A(f's_cmp_lg_u32 {sWAVE}, 0\ns_cbranch_scc1 L_CH_NOM')
    g.stamp(1)
    A('L_CH_NOM:')
    A('s_waitcnt vmcnt(0)\ns_barrier')
    A(f's_lshr_b32 s84, {sWAVE}, 1\ns_lshl_b32 s84, s84, 14\ns_and_b32 s86, {sWAVE}, 1\ns_lshl_b32 s86, s86, 1\ns_add_u32 s87, s86, 1')
    g.tr_addr('v5', 's86', 's84', 'v6', 'v7')
    g.tr_frags('v5', 16, range(4))
    g.tr_addr('v5', 's87', 's84', 'v6', 'v7')
    g.tr_frags('v5', 32, range(4))
    g.act_addr('v6', L_H, 288, 'v7')
    A(f's_lshl_b32 s84, s2, 13\ns_lshl_b32 s86, {sWAVE}, 10\ns_add_u32 s84, s84, s86\ns_add_u32 s84, s84, {QP}')
    A('v_and_b32 v7, 7, v1\nv_lshlrev_b32 v5, 7, v7\nv_bfe_u32 v7, v1, 3, 1\nv_lshl_add_u32 v5, v7, 6, v5\nv_lshrrev_b32 v7, 4, v1\nv_lshl_add_u32 v5, v7, 4, v5\nv_add_u32 v5, s84, v5')
    A('s_waitcnt lgkmcnt(0)\ns_barrier')
    for m in range(4): A(f'ds_read_b128 v[{48+4*m}:{51+4*m}], v6 offset:{m*64}')
    for m in range(4):
        A(f's_waitcnt lgkmcnt({3-m})')
        c0 = '0' if m==0 else 'v[80:83]'; c1 = '0' if m==0 else 'v[84:87]'
        A(f'v_mfma_f32_16x16x32_bf16 v[80:83], v[{16+4*m}:{19+4*m}], v[{48+4*m}:{51+4*m}], {c0}')
        A(f'v_mfma_f32_16x16x32_bf16 v[84:87], v[{32+4*m}:{35+4*m}], v[{48+4*m}:{51+4*m}], {c1}')
    A('s_mov_b32 vcc_lo, 0xff00ff00\ns_mov_b32 vcc_hi, 0xff00ff00')
    for r in range(4): A(f'v_cndmask_b32 v{80+r}, v{80+r}, v{84+r}, vcc')
    g.nosent(range(80,84))
    A(f'buffer_store_dwordx4 v[80:83], v5, {RWS}, 0 offen sc1')
    A(f's_cmp_lg_u32 {sWAVE}, 0\ns_cbranch_scc1 L_KPATH')
    g.stamp(3)
    A('s_branch L_KPATH')
    A('L_CH_HI:')
    A(f's_cmp_ge_u32 {sWAVE}, 10\ns_cbranch_scc1 L_CH_LN')
    A(f'v_lshrrev_b32 v4, 3, v1\nv_lshlrev_b32 v5, 10, v4\nv_and_b32 v6, 7, v1\nv_lshl_add_u32 v5, v6, 4, v5')
    A(f's_lshl_b32 s84, s81, 8\ns_lshl_b32 s85, {sW8}, 7\ns_add_u32 s84, s84, s85')
    A(f'buffer_load_dwordx4 v[8:11], v5, {RC}, s84 offen')
    A('s_waitcnt vmcnt(0)')
    g.silu8(8, 16, 24)
    A(f'v_mul_u32_u24 v5, 288, v4\nv_lshl_add_u32 v5, v6, 4, v5\ns_add_u32 s85, s85, {L_ACT}\nv_add_u32 v5, s85, v5')
    A('ds_write_b128 v5, v[8:11]')
    A('L_CH_LN:')
    def ln_x_row():
        A(f'v_lshlrev_b32 v5, 4, v1\ns_lshl_b32 s84, {sW8}, 10')
        A(f'buffer_load_dwordx4 v[8:11], v5, {RX}, s84 offen\ns_waitcnt vmcnt(0)')
        g.ln8(8, 16, 24)
        for i in range(4): A(f'v_cvt_pk_bf16_f32 v{8+i}, v{16+2*i}, v{17+2*i}')
        A(f's_add_u32 s84, s84, {L_Y}\nv_add_u32 v5, s84, v5\nds_write_b128 v5, v[8:11]')
    ln_x_row()
    A('s_waitcnt lgkmcnt(0)\ns_barrier')
    A('s_barrier')
    A(f's_cmp_ge_u32 {sWAVE}, 12\ns_cbranch_scc1 L_CH_NOH')
    g.lds_spin('v3', F_ALLCLR, 1, 'v5')
    A(f's_lshr_b32 s84, {sW8}, 1\ns_and_b32 s85, {sW8}, 1')
    A(f's_lshl_b32 s86, s82, 1\ns_add_u32 s86, s86, s84\ns_lshl_b32 s86, s86, 11\ns_lshl_b32 s87, s85, 10\ns_add_u32 s86, s86, s87\ns_add_u32 s86, s86, {MP}')
    A('v_lshlrev_b32 v5, 4, v1\nv_add_u32 v5, s86, v5')
    for k in range(8): A(f's_mov_b32 s{88+k}, {(k>>1)*16*2048 + (k&1)*8*2048}')
    A('v_bfe_u32 v6, v1, 2, 3\nv_lshrrev_b32 v7, 5, v1\nv_lshlrev_b32 v7, 5, v7\nv_and_b32 v8, 3, v1\nv_lshl_add_u32 v7, v8, 3, v7')
    A(f's_lshl_b32 s86, s84, 7\ns_lshl_b32 s87, s85, 6\ns_add_u32 s86, s86, s87')
    A(f'v_add_u32 v7, s86, v7\nv_lshl_add_u32 v8, v6, 10, v7\ns_lshl_b32 s87, s82, 8\ns_add_u32 s87, s87, {L_Y}\nv_add_u32 v8, s87, v8')
    A('ds_read_b64 v[10:11], v8')
    A(f'v_mul_u32_u24 v9, 288, v6\nv_add_u32 v9, v9, v7\nv_add_u32 v9, {L_H}, v9')
    g.poll([f'buffer_load_dwordx4 v[{16+4*k}:{19+4*k}], v5, {RWS}, s{88+k} offen sc1' for k in range(8)], range(16,48), 'v12')
    for r in range(4):
        A(f'v_add_f32 v{16+r}, v{16+r}, v{24+r}\nv_add_f32 v{32+r}, v{32+r}, v{40+r}\nv_add_f32 v{20+r}, v{20+r}, v{28+r}\nv_add_f32 v{36+r}, v{36+r}, v{44+r}')
        A(f'v_add_f32 v{16+r}, v{16+r}, v{32+r}\nv_add_f32 v{20+r}, v{20+r}, v{36+r}')
    g.rnd2(16,17,12); g.rnd2(18,19,13); g.rnd2(20,21,14); g.rnd2(22,23,15)
    for r in range(4): A(f'v_add_f32 v{20+r}, 1.0, v{20+r}')
    g.rnd2(20,21,14); g.rnd2(22,23,15)
    A('s_waitcnt lgkmcnt(0)')
    g.unpack(10,24,25); g.unpack(11,26,27)
    for r in range(4): A(f'v_mul_f32 v{24+r}, v{24+r}, v{20+r}')
    g.rnd2(24,25,12); g.rnd2(26,27,13)
    for r in range(4): A(f'v_add_f32 v{24+r}, v{24+r}, v{16+r}')
    A('v_cvt_pk_bf16_f32 v10, v24, v25\nv_cvt_pk_bf16_f32 v11, v26, v27\nds_write_b64 v9, v[10:11]')
    A(f's_cmp_lg_u32 {sWAVE}, 8\ns_cbranch_scc1 L_CH_NOH')
    g.stamp(2)
    A('L_CH_NOH:')
    A('s_waitcnt lgkmcnt(0)\ns_barrier')
    A('s_branch L_VPATH')

    A('L_SYNC:\ns_setprio 3')
    A('v_mov_b32 v8, -1\nv_mov_b32 v9, -1\nv_mov_b32 v10, -1\nv_mov_b32 v11, -1\nv_lshlrev_b32 v5, 4, v1\nv_lshlrev_b32 v6, 2, v1')
    def clr(sreg, n1k):
        for i in range(n1k):
            if i and i%4==0: A(f's_add_u32 {sreg}, {sreg}, 4096')
            A(f'buffer_store_dwordx4 v[8:11], v5, {RWS}, {sreg} offen offset:{(i%4)*1024} sc1')
    A(f's_lshl_b32 s80, {sPAIR}, 14\ns_lshl_b32 s81, {sJ}, 12\ns_add_u32 s80, s80, s81')
    clr('s80', 4)
    A(f's_lshl_b32 s80, {sPAIR}, 10\ns_lshl_b32 s81, {sJ}, 8\ns_add_u32 s80, s80, s81\ns_add_u32 s81, s80, {ST}\ns_add_u32 s80, s80, {OO}')
    A(f'buffer_store_dword v8, v6, {RWS}, s81 offen sc1\nbuffer_store_dword v8, v6, {RWS}, s80 offen sc1')
    A(f's_lshl_b32 s82, {sB}, 3\ns_add_u32 s82, s82, {sG}')
    A(f's_cmp_eq_u32 {sJ}, 1\ns_cbranch_scc1 L_CL1\ns_cmp_eq_u32 {sJ}, 2\ns_cbranch_scc1 L_CL2\ns_cmp_eq_u32 {sJ}, 3\ns_cbranch_scc1 L_CL3')
    A(f's_lshl_b32 s80, s2, 11\ns_add_u32 s80, s80, {MP}'); clr('s80', 2)
    A(f's_lshl_b32 s80, s2, 13\ns_add_u32 s80, s80, {QP}'); clr('s80', 8)
    A(f's_lshl_b32 s80, {sPAIR}, 10\ns_add_u32 s80, s80, {X1}'); clr('s80', 1)
    A('s_branch L_CLD\nL_CL1:')
    A(f's_lshl_b32 s80, s82, 11\ns_add_u32 s80, s80, {WP}'); clr('s80', 2)
    A('s_branch L_CLD\nL_CL2:')
    A(f's_lshl_b32 s80, {sPAIR}, 10\ns_add_u32 s80, s80, {GU}'); clr('s80', 1)
    A('s_branch L_CLD\nL_CL3:')
    A(f's_lshl_b32 s80, s82, 11\ns_add_u32 s81, s80, {DP}\ns_add_u32 s80, s80, {MT}'); clr('s81', 2); clr('s80', 2)
    A('L_CLD:')
    A('s_getreg_b32 s83, hwreg(HW_REG_XCC_ID)\ns_and_b32 s83, s83, 0x7f\ns_or_b32 s83, s83, 0x80')
    A('v_mov_b32 v12, s83\nv_mov_b32 v13, s2')
    A('s_waitcnt vmcnt(0)')
    A(f's_mov_b64 exec, 1\nbuffer_store_byte v12, v13, {RDBG}, 0 offen sc1\ns_mov_b64 exec, -1')
    g.lds_set('v3', F_CLEARED, 1, 'v14')
    g.stamp(4)
    A(f's_cmp_lg_u32 {sJ}, 0\ns_cbranch_scc1 L_SY1')
    ln_x_row()
    A('s_waitcnt lgkmcnt(0)\ns_barrier\ns_barrier')
    A('L_SY1:')
    A('v_lshlrev_b32 v6, 2, v1\nL_AC:')
    A(f'buffer_load_dword v12, v6, {RDBG}, 0 offen sc1\ns_waitcnt vmcnt(0)')
    A('v_and_b32 v13, 0x80808080, v12\nv_mov_b32 v14, 0x80808080\nv_cmp_ne_u32 vcc, v13, v14\ns_cbranch_vccz L_ACD')
    g.timeout('L_ACD')
    A('s_branch L_AC\nL_ACD:')
    A(f's_and_b32 s84, {sG}, 3\ns_lshl_b32 s84, s84, 3\nv_lshrrev_b32 v13, s84, v12\nv_and_b32 v13, 0xff, v13\nv_cmp_ne_u32 vcc, s83, v13')
    A(f's_mov_b32 s84, 0x55555555\ns_lshr_b32 s85, {sG}, 2\ns_lshl_b32 s84, s84, s85\ns_and_b32 s85, vcc_lo, s84\ns_and_b32 s86, vcc_hi, s84\ns_or_b32 s85, s85, s86')
    A(f's_cmp_eq_u32 s85, 0\ns_cselect_b32 {sMODE}, 1, 0')
    A(f'v_mov_b32 v14, {sMODE}\nds_write_b32 v3, v14 offset:{F_MODE}\ns_waitcnt lgkmcnt(0)')
    g.lds_set('v3', F_ALLCLR, 1, 'v14')
    g.stamp(5)
    A(f's_cmp_lg_u32 {sJ}, 0\ns_cbranch_scc1 L_SY2')
    A('s_waitcnt lgkmcnt(0)\ns_barrier')
    A('L_SY2:')
    A(f'v_lshrrev_b32 v6, 3, v1\nv_lshlrev_b32 v5, 10, v6\nv_and_b32 v7, 7, v1\nv_lshl_add_u32 v5, v7, 4, v5')
    A(f's_lshl_b32 s84, {sG}, 13\ns_lshl_b32 s85, {sB}, 7\ns_add_u32 s84, s84, s85\ns_add_u32 s84, s84, {QP}\nv_add_u32 v5, s84, v5')
    for k in range(8): A(f's_mov_b32 s{88+k}, {k*65536}')
    g.poll([f'buffer_load_dwordx4 v[{16+4*k}:{19+4*k}], v5, {RWS}, s{88+k} offen sc1' for k in range(8)], range(16,48), 'v12')
    for r in range(4):
        A(f'v_add_f32 v{16+r}, v{16+r}, v{24+r}\nv_add_f32 v{32+r}, v{32+r}, v{40+r}\nv_add_f32 v{20+r}, v{20+r}, v{28+r}\nv_add_f32 v{36+r}, v{36+r}, v{44+r}')
        A(f'v_add_f32 v{16+r}, v{16+r}, v{32+r}\nv_add_f32 v{20+r}, v{20+r}, v{36+r}')
    A('v_cvt_pk_bf16_f32 v8, v16, v17\nv_cvt_pk_bf16_f32 v9, v18, v19\nv_cvt_pk_bf16_f32 v10, v20, v21\nv_cvt_pk_bf16_f32 v11, v22, v23')
    A(f'v_lshrrev_b32 v6, 5, v1\nv_mul_u32_u24 v6, 272, v6\nv_and_b32 v7, 31, v1\nv_lshl_add_u32 v6, v7, 3, v6\nv_add_u32 v6, {L_Q}, v6')
    A('ds_write_b64 v6, v[8:9]\nds_write_b64 v6, v[10:11] offset:544\ns_waitcnt lgkmcnt(0)')
    g.lds_set('v3', F_QREADY, 1, 'v14')
    g.stamp(6)
    A('s_setprio 0\ns_branch L_VPATH')

    A('L_KPATH:')
    A('v_and_b32 v5, 15, v1\nv_lshlrev_b32 v4, 8, v5\nv_lshrrev_b32 v5, 4, v1\nv_lshl_add_u32 v4, v5, 4, v4')
    A(f's_lshl_b32 s80, {sJ}, 17\ns_lshl_b32 s81, {sWAVE}, 14\ns_add_u32 s80, s80, s81')
    for T in range(4):
        if T: A('s_add_u32 s80, s80, 4096')
        for m in range(4):
            r=16+16*T+4*m
            A(f'buffer_load_dwordx4 v[{r}:{r+3}], v4, {RK}, s80 offen offset:{m*64} nt')
    g.lds_spin('v3', F_QREADY, 1, 'v5', sleep=2)
    A(f'ds_read_b32 v5, v3 offset:{F_MODE}')
    A(f'v_and_b32 v6, 3, v1\nv_mul_u32_u24 v6, 272, v6\nv_lshrrev_b32 v7, 4, v1\nv_lshl_add_u32 v6, v7, 4, v6\nv_add_u32 v6, {L_Q}, v6')
    for m in range(4): A(f'ds_read_b128 v[{96+4*m}:{99+4*m}], v6 offset:{m*64}')
    A(f's_waitcnt lgkmcnt(0)\nv_readfirstlane_b32 {sMODE}, v5')
    for T in range(4):
        A(f's_waitcnt vmcnt({12-4*T})')
        for m in range(4):
            r=16+16*T+4*m; d=80+4*T
            c='0' if m==0 else f'v[{d}:{d+3}]'
            A(f'v_mfma_f32_16x16x32_bf16 v[{d}:{d+3}], v[{r}:{r+3}], v[{96+4*m}:{99+4*m}], {c}')
    for T in range(1,4):
        mk = 0x000f000f << (4*T)
        A(f's_mov_b32 vcc_lo, 0x{mk:x}\ns_mov_b32 vcc_hi, 0x{mk:x}')
        for r in range(4): A(f'v_cndmask_b32 v{80+r}, v{80+r}, v{80+4*T+r}, vcc')
    g.rnd2(80,81,8); g.rnd2(82,83,9)
    for r in range(4): A(f'v_mul_f32 v{80+r}, 0x{SCALE:x}, v{80+r}')
    g.rnd2(80,81,8); g.rnd2(82,83,9)
    g.nosent([8,9])
    A('v_bfe_u32 v5, v1, 2, 2\nv_lshlrev_b32 v4, 7, v5\nv_lshrrev_b32 v5, 5, v1\nv_lshl_add_u32 v4, v5, 6, v4\nv_and_b32 v5, 3, v1\nv_lshl_add_u32 v4, v5, 4, v4\nv_bfe_u32 v5, v1, 4, 1\nv_lshl_add_u32 v4, v5, 3, v4')
    A(f's_lshl_b32 s80, {sPAIR}, 14\ns_lshl_b32 s81, {sJ}, 12\ns_add_u32 s81, s80, s81\ns_lshl_b32 s82, {sWAVE}, 9\ns_add_u32 s81, s81, s82')
    g.pub(f'buffer_store_dwordx2 v[8:9], v4, {RWS}, s81 offen', True)
    A('v_max3_f32 v10, v80, v81, v82\nv_max_f32 v10, v10, v83')
    A('v_max_f32_dpp v10, v10, v10 row_ror:4 row_mask:0xf bank_mask:0xf\nv_max_f32_dpp v10, v10, v10 row_ror:8 row_mask:0xf bank_mask:0xf')
    g.red_rows('v_max_f32', [10], [12])
    for r in range(4): A(f'v_sub_f32 v{80+r}, v{80+r}, v10')
    for r in range(4): A(f'v_mul_f32 v{80+r}, 0x{LOG2E:x}, v{80+r}')
    for r in range(4): A(f'v_exp_f32 v{80+r}, v{80+r}')
    A('v_add_f32 v11, v80, v81\nv_add_f32 v12, v82, v83\nv_add_f32 v11, v11, v12')
    A('v_add_f32_dpp v11, v11, v11 row_ror:4 row_mask:0xf bank_mask:0xf\nv_add_f32_dpp v11, v11, v11 row_ror:8 row_mask:0xf bank_mask:0xf')
    g.red_rows('v_add_f32', [11], [12])
    g.nosent([10,11])
    A(f'v_lshlrev_b32 v5, 3, v1\ns_lshl_b32 s82, {sPAIR}, 10\ns_add_u32 s82, s82, {ST}\ns_lshl_b32 s83, {sJ}, 8\ns_add_u32 s83, s82, s83\ns_lshl_b32 s84, {sWAVE}, 5\ns_add_u32 s83, s83, s84')
    A('s_mov_b64 exec, 15')
    g.pub(f'buffer_store_dwordx2 v[10:11], v5, {RWS}, s83 offen', True)
    A('s_mov_b64 exec, -1')
    A(f's_cmp_lg_u32 {sWAVE}, 0\ns_cbranch_scc1 L_NS7')
    g.stamp(7)
    A('L_NS7:')
    A(f'v_lshlrev_b32 v4, 4, v1\ns_lshl_b32 s84, {sWAVE}, 11\ns_add_u32 s80, s80, s84')
    g.poll([f'buffer_load_dwordx4 v[16:19], v4, {RWS}, s80 offen sc1', f'buffer_load_dwordx4 v[20:23], v4, {RWS}, s80 offen offset:1024 sc1',
            f'buffer_load_dwordx2 v[24:25], v5, {RWS}, s82 offen sc1', f'buffer_load_dwordx2 v[26:27], v5, {RWS}, s82 offen offset:512 sc1'], range(16,28), 'v12')
    A('v_max_f32 v10, v24, v26')
    A('v_max_f32_dpp v10, v10, v10 row_ror:4 row_mask:0xf bank_mask:0xf\nv_max_f32_dpp v10, v10, v10 row_ror:8 row_mask:0xf bank_mask:0xf')
    g.red_rows('v_max_f32', [10], [12])
    A(f'v_sub_f32 v24, v24, v10\nv_sub_f32 v26, v26, v10\nv_mul_f32 v24, 0x{LOG2E:x}, v24\nv_mul_f32 v26, 0x{LOG2E:x}, v26\nv_exp_f32 v24, v24\nv_exp_f32 v26, v26')
    A('v_mul_f32 v11, v24, v25\nv_fmac_f32 v11, v26, v27')
    A('v_add_f32_dpp v11, v11, v11 row_ror:4 row_mask:0xf bank_mask:0xf\nv_add_f32_dpp v11, v11, v11 row_ror:8 row_mask:0xf bank_mask:0xf')
    g.red_rows('v_add_f32', [11], [12])
    A('v_rcp_f32 v12, v11\nv_fma_f32 v13, -v11, v12, 1.0\nv_fmac_f32 v12, v13, v12')
    for i in range(8): g.unpack(16+i, 32+2*i, 33+2*i)
    for i in range(16): A(f'v_sub_f32 v{32+i}, v{32+i}, v10')
    for i in range(16): A(f'v_mul_f32 v{32+i}, 0x{LOG2E:x}, v{32+i}')
    for i in range(16): A(f'v_exp_f32 v{32+i}, v{32+i}')
    for i in range(16): A(f'v_mul_f32 v{32+i}, v{32+i}, v12')
    for i in range(8): A(f'v_cvt_pk_bf16_f32 v{16+i}, v{32+2*i}, v{33+2*i}')
    A(f's_add_u32 s84, s84, {L_P}\nv_add_u32 v4, s84, v4\nds_write_b128 v4, v[16:19]\nds_write_b128 v4, v[20:23] offset:1024\ns_waitcnt lgkmcnt(0)')
    A(f's_lshl_b32 s84, {sWAVE}, 2\nv_add_u32 v5, s84, v3')
    g.lds_set('v5', F_PREADY, 1, 'v14')
    A(f's_cmp_lg_u32 {sWAVE}, 0\ns_cbranch_scc1 L_NS8')
    g.stamp(8)
    A('L_NS8:')
    A(f's_cmp_eq_u32 {sJ}, 0\ns_cbranch_scc1 L_K0\ns_cmp_eq_u32 {sJ}, 2\ns_cbranch_scc1 L_K2\ns_cmp_eq_u32 {sJ}, 3\ns_cbranch_scc1 L_K3')
    A('s_waitcnt lgkmcnt(0)\ns_barrier\ns_barrier')
    A(f'v_lshlrev_b32 v4, 4, v1\ns_lshl_b32 s80, {sG}, 13\ns_lshl_b32 s81, {sWAVE}, 10\ns_add_u32 s80, s80, s81\ns_add_u32 s80, s80, {OO}')
    A(f's_mul_i32 s81, {sWAVE}, 1056\ns_add_u32 s81, s81, {L_ACT}\nv_add_u32 v5, s81, v4')
    g.poll([f'buffer_load_dwordx4 v[16:19], v4, {RWS}, s80 offen sc1'], range(16,20), 'v12')
    A('ds_write_b128 v5, v[16:19]\ns_waitcnt lgkmcnt(0)\ns_barrier')
    A('s_branch L_END')
    A('L_K3:')
    A('s_waitcnt lgkmcnt(0)\ns_barrier\ns_barrier')
    A(f's_cmp_ge_u32 {sWAVE}, 4\ns_cbranch_scc1 L_END\ns_cmp_eq_u32 {sG}, 7\ns_cbranch_scc1 L_END')
    A(f'v_lshlrev_b32 v4, 4, v1\ns_lshl_b32 s80, {sG}, 13\ns_lshl_b32 s81, {sWAVE}, 10\ns_add_u32 s80, s80, s81\ns_add_u32 s80, s80, {GU}\ns_add_u32 s81, s80, 4096')
    A(f'v_bfe_u32 v6, v1, 1, 3\nv_mul_u32_u24 v5, 544, v6\nv_lshrrev_b32 v6, 4, v1\nv_lshl_add_u32 v5, v6, 5, v5\nv_and_b32 v6, 1, v1\nv_lshl_add_u32 v5, v6, 4, v5\ns_lshl_b32 s82, {sWAVE}, 7\ns_add_u32 s82, s82, {L_ACT}\nv_add_u32 v5, s82, v5')
    g.poll([f'buffer_load_dwordx4 v[16:19], v4, {RWS}, s80 offen sc1', f'buffer_load_dwordx4 v[20:23], v4, {RWS}, s81 offen sc1'], range(16,24), 'v12')
    for i in range(8): g.unpack(16+i, 32+2*i, 33+2*i)
    for i in range(8): A(f'v_mul_f32 v{32+i}, v{32+i}, v{40+i}')
    for i in range(4): A(f'v_cvt_pk_bf16_f32 v{16+i}, v{32+2*i}, v{33+2*i}')
    A('ds_write_b128 v5, v[16:19]\ns_waitcnt lgkmcnt(0)\ns_barrier')
    A('s_branch L_END')
    A('L_K2:')
    A(f's_cmp_eq_u32 {sG}, 7\ns_cbranch_scc1 L_K2X')
    A(f'v_lshrrev_b32 v5, 3, v1\nv_lshlrev_b32 v4, 12, v5\nv_bfe_u32 v5, v1, 1, 2\nv_lshl_add_u32 v4, v5, 9, v4\nv_and_b32 v5, 1, v1\nv_lshl_add_u32 v4, v5, 5, v4')
    A(f's_lshl_b32 s80, {sWAVE}, 6\ns_add_u32 s80, s80, {MT+8*4096}\ns_add_u32 s81, s80, {8*4096}')
    lds=[]
    for ai,sb_ in enumerate(('s80','s81')):
        for kh in range(2):
            for q in range(2):
                r=32+16*ai+8*kh+4*q
                lds.append(f'buffer_load_dwordx4 v[{r}:{r+3}], v4, {RWS}, {sb_} offen offset:{kh*2048+q*16} sc1')
    g.poll(lds, range(32,64), 'v12')
    for i in range(8): A(f'v_add_f32 v{32+i}, v{32+i}, v{40+i}\nv_add_f32 v{40+i}, v{48+i}, v{56+i}')
    for i in range(4): g.rnd2(32+2*i,33+2*i,12); g.rnd2(40+2*i,41+2*i,13)
    for i in range(8): A(f'v_add_f32 v{40+i}, 1.0, v{40+i}')
    for i in range(4): g.rnd2(40+2*i,41+2*i,13)
    A(f'v_lshrrev_b32 v5, 3, v1\nv_lshlrev_b32 v4, 10, v5\nv_and_b32 v5, 7, v1\nv_lshl_add_u32 v4, v5, 4, v4')
    A(f's_lshl_b32 s80, {sG}, 13\ns_lshl_b32 s81, {sWAVE}, 7\ns_add_u32 s80, s80, s81\ns_add_u32 s80, s80, {X1}')
    A(f's_mul_i32 s81, {sWAVE}, 1056\ns_add_u32 s81, s81, {L_ACT}\nv_lshlrev_b32 v5, 4, v1\nv_add_u32 v5, s81, v5')
    A('s_barrier\ns_barrier')
    g.poll([f'buffer_load_dwordx4 v[8:11], v4, {RWS}, s80 offen sc1'], range(8,12), 'v12')
    g.ln8(8, 16, 48)
    for i in range(8): A(f'v_mul_f32 v{16+i}, v{16+i}, v{40+i}')
    for i in range(4): g.rnd2(16+2*i,17+2*i,48+i)
    for i in range(8): A(f'v_add_f32 v{16+i}, v{16+i}, v{32+i}')
    for i in range(4): A(f'v_cvt_pk_bf16_f32 v{8+i}, v{16+2*i}, v{17+2*i}')
    A('ds_write_b128 v5, v[8:11]\ns_waitcnt lgkmcnt(0)\ns_barrier')
    A('s_branch L_END')
    A('L_K2X:\ns_waitcnt lgkmcnt(0)\ns_barrier\ns_barrier\ns_branch L_END')
    A('L_K0:')
    A(f's_cmp_ge_u32 {sWAVE}, 3\ns_cbranch_scc1 L_K2X')
    A(f's_cmp_eq_u32 {sWAVE}, 2\ns_cbranch_scc1 L_FIN')
    A(f'v_lshlrev_b32 v4, 4, v1\ns_lshl_b32 s80, {sWAVE}, 10\nv_add_u32 v4, s80, v4')
    A(f's_lshl_b32 s80, {sB}, 12\ns_add_u32 s80, s80, {MT}')
    A(f'v_bfe_u32 v6, v1, 2, 3\nv_lshrrev_b32 v7, 5, v1\nv_lshlrev_b32 v7, 5, v7\nv_and_b32 v8, 3, v1\nv_lshl_add_u32 v7, v8, 3, v7\ns_lshl_b32 s81, {sWAVE}, 6\nv_add_u32 v7, s81, v7')
    A(f'v_lshl_add_u32 v5, v6, 10, v7\ns_lshl_b32 s81, {sB}, 7')
    A(f'buffer_load_dwordx2 v[56:57], v5, {RX}, s81 offen')
    g.poll([f'buffer_load_dwordx4 v[48:51], v4, {RWS}, s80 offen sc1', f'buffer_load_dwordx4 v[52:55], v4, {RWS}, s80 offen offset:2048 sc1'], range(48,56), 'v12')
    for r in range(4): A(f'v_add_f32 v{48+r}, v{48+r}, v{52+r}')
    g.rnd2(48,49,12); g.rnd2(50,51,13)
    g.unpack(56,52,53); g.unpack(57,54,55)
    A(f'v_lshl_add_u32 v5, v6, 7, v7\ns_lshl_b32 s82, {sPAIR}, 10\ns_add_u32 s82, s82, {X1}')
    A(f'v_lshlrev_b32 v8, 1, v5\nv_add_u32 v8, {L_X1S}, v8')
    A(f's_lshl_b32 s80, {sB}, 14\ns_add_u32 s80, s80, {WP}')
    for k in range(4): A(f's_add_u32 s{88+k}, s80, {k*4096}')
    A('s_barrier\ns_barrier')
    g.poll([f'buffer_load_dwordx4 v[{16+4*k}:{19+4*k}], v4, {RWS}, s{88+(k>>1)} offen offset:{(k&1)*2048} sc1' for k in range(8)], range(16,48), 'v12')
    for r in range(4):
        A(f'v_add_f32 v{16+r}, v{16+r}, v{20+r}\nv_add_f32 v{24+r}, v{24+r}, v{28+r}\nv_add_f32 v{32+r}, v{32+r}, v{36+r}\nv_add_f32 v{40+r}, v{40+r}, v{44+r}')
        A(f'v_add_f32 v{16+r}, v{16+r}, v{24+r}\nv_add_f32 v{32+r}, v{32+r}, v{40+r}\nv_add_f32 v{16+r}, v{16+r}, v{32+r}')
    g.rnd2(16,17,12); g.rnd2(18,19,13)
    for r in range(4): A(f'v_mul_f32 v{16+r}, v{16+r}, v{48+r}')
    g.rnd2(16,17,12); g.rnd2(18,19,13)
    for r in range(4): A(f'v_add_f32 v{16+r}, v{16+r}, v{52+r}')
    g.rnd2(16,17,12); g.rnd2(18,19,13)
    g.nosent([12,13])
    g.pub(f'buffer_store_dwordx2 v[12:13], v5, {RWS}, s82 offen', True)
    A('ds_write_b128 v8, v[16:19]')
    A(f's_cmp_lg_u32 {sWAVE}, 0\ns_cbranch_scc1 L_NS12')
    g.stamp(12)
    A('L_NS12:')
    A('s_waitcnt lgkmcnt(0)\ns_barrier')
    A('s_branch L_END')
    A('L_FIN:')
    A(f'v_lshrrev_b32 v5, 4, v1\nv_lshlrev_b32 v4, 9, v5\nv_and_b32 v5, 15, v1\nv_lshl_add_u32 v4, v5, 2, v4\ns_lshl_b32 s80, {sG}, 6\nv_add_u32 v4, s80, v4')
    A(f's_lshl_b32 s80, {sB}, 12\ns_add_u32 s80, s80, {MT+24*4096}')
    g.poll([f'buffer_load_dword v48, v4, {RWS}, s80 offen sc1', f'buffer_load_dword v49, v4, {RWS}, s80 offen offset:2048 sc1'], [48,49], 'v12')
    A('v_add_f32 v48, v48, v49')
    g.rnd2(48,49,12)
    A(f's_lshl_b32 s80, {sB}, 14\ns_add_u32 s80, s80, {DP}')
    for k in range(4): A(f's_add_u32 s{88+k}, s80, {k*4096}')
    A(f's_lshl_b32 s81, {sG}, 8\ns_add_u32 s81, s81, {L_X1S}\nv_lshlrev_b32 v6, 2, v1\nv_add_u32 v6, s81, v6')
    A(f'v_lshlrev_b32 v7, 1, v1\ns_lshl_b32 s82, {sG}, 10\ns_lshl_b32 s83, {sB}, 7\ns_add_u32 s82, s82, s83')
    A('s_barrier\ns_barrier\ns_barrier')
    A('ds_read_b32 v50, v6')
    g.poll([f'buffer_load_dword v{16+k}, v4, {RWS}, s{88+(k>>1)} offen offset:{(k&1)*2048} sc1' for k in range(7)], range(16,23), 'v12')
    A('v_add_f32 v16, v16, v17\nv_add_f32 v18, v18, v19\nv_add_f32 v20, v20, v21\nv_add_f32 v16, v16, v18\nv_add_f32 v20, v20, v22\nv_add_f32 v16, v16, v20')
    g.rnd2(16,17,12)
    A('v_mul_f32 v16, v16, v48')
    g.rnd2(16,17,12)
    A('s_waitcnt lgkmcnt(0)\nv_add_f32 v16, v16, v50\nv_cvt_pk_bf16_f32 v12, v16, v16')
    A(f'buffer_store_short v12, v7, {ROUT}, s82 offen')
    g.stamp(15)
    A('s_branch L_DUMP')

    A('L_VPATH:')
    A(f'v_lshrrev_b32 v5, 2, v1\nv_lshlrev_b32 v2, 11, v5\nv_and_b32 v5, 3, v1\nv_lshl_add_u32 v2, v5, 4, v2')
    A(f's_lshl_b32 s80, {sW8}, 16\ns_lshl_b32 s81, {sJ}, 6\ns_add_u32 s80, s80, s81\ns_add_u32 s81, s80, 32768')
    for blk in range(2):
        for u in range(8):
            r=8+32*blk+4*u
            A(f'buffer_load_dwordx4 v[{r}:{r+3}], v2, {RV}, s{80+blk} offen offset:{u*256} nt')
    A(f's_mov_b32 s86, 0\ns_cmp_eq_u32 {sJ}, 0\ns_cbranch_scc1 L_VW_D')
    A(f's_cmp_eq_u32 {sJ}, 1\ns_cbranch_scc1 L_VW1\ns_cmp_eq_u32 {sG}, 7\ns_cbranch_scc1 L_VW_D\ns_cmp_eq_u32 {sJ}, 2\ns_cbranch_scc1 L_VW2')
    g.dma_voff('v4','v5',1024,'v6')
    A(f's_lshl_b32 s82, {sG}, 18\ns_lshl_b32 s83, {sW8}, 15\ns_add_u32 s82, s82, s83\ns_lshl_b32 s83, {sB}, 7\ns_add_u32 s82, s82, s83\ns_lshl_b32 s83, {sW8}, 12')
    for i in range(4): g.dma(RW1, 'v5' if i&1 else 'v4', 's82', i*8192, 's83', i*1024)
    A('s_mov_b32 s86, 4\ns_branch L_VW_D\nL_VW1:')
    g.dma_voff('v4','v5',1024,'v6')
    A(f's_lshl_b32 s82, {sG}, 19\ns_lshl_b32 s83, {sW8}, 16\ns_add_u32 s82, s82, s83\ns_lshl_b32 s83, {sB}, 7\ns_add_u32 s82, s82, s83\ns_lshl_b32 s83, {sW8}, 13')
    for i in range(8): g.dma(RW1, 'v5' if i&1 else 'v4', 's82', i*8192, 's83', i*1024)
    A('s_mov_b32 s86, 8\ns_branch L_VW_D\nL_VW2:')
    g.dma_voff('v4','v5',3584,'v6')
    A(f's_mul_i32 s82, {sW8}, {64*3584}\ns_lshl_b32 s83, {sG}, 2\ns_and_b32 s84, {sB}, 3\ns_add_u32 s83, s83, s84\ns_lshl_b32 s83, s83, 7\ns_add_u32 s82, s82, s83\ns_lshl_b32 s83, {sW8}, 13')
    for i in range(8): g.dma(RW1, 'v5' if i&1 else 'v4', 's82', i*8*3584, 's83', i*1024)
    A('s_mov_b32 s86, 8\nL_VW_D:')
    A(f's_lshl_b32 s84, {sW8}, 2\nv_add_u32 v4, s84, v3')
    g.lds_spin('v4', F_PREADY, 1, 'v5', sleep=2)
    A(f'ds_read_b32 v5, v3 offset:{F_MODE}')
    A(f's_lshl_b32 s84, {sW8}, 11\ns_add_u32 s84, s84, {L_P}\nv_lshlrev_b32 v4, 4, v1\nv_add_u32 v4, s84, v4')
    A('ds_read_b128 v[72:75], v4\nds_read_b128 v[88:91], v4 offset:1024')
    A('s_mov_b32 s88, 0x05040100\ns_mov_b32 s89, 0x07060302')
    for w in range(4):
        m=0
        for l in range(64):
            if (((l>>2)&3)-(l>>4))&3==w: m|=1<<l
        A(f's_mov_b32 s{90+2*w}, 0x{m&0xffffffff:x}\ns_mov_b32 s{91+2*w}, 0x{m>>32:x}')
    A(f'v_lshrrev_b32 v6, 4, v1\nv_bfe_u32 v7, v1, 2, 2\nv_sub_u32 v7, v7, v6\nv_and_b32 v7, 3, v7\nv_lshlrev_b32 v6, 9, v6\nv_lshl_add_u32 v6, v7, 3, v6\nv_and_b32 v7, 3, v1\nv_lshl_add_u32 v6, v7, 5, v6')
    A(f's_mul_i32 s84, {sW8}, {OP_PITCH}\ns_add_u32 s84, s84, {L_OP}\nv_add_u32 v6, s84, v6')
    A(f's_waitcnt lgkmcnt(0)\nv_readfirstlane_b32 {sMODE}, v5')
    Tt=92; Dd=100; Mm=116
    def waitv(n):
        a=g.lab('WV'); b_=g.lab('WV'); d=g.lab('WVD')
        A(f's_cmp_eq_u32 s86, 8\ns_cbranch_scc1 {a}\ns_cmp_eq_u32 s86, 4\ns_cbranch_scc1 {b_}\ns_waitcnt vmcnt({n})\ns_branch {d}\n{a}:\ns_waitcnt vmcnt({n+8})\ns_branch {d}\n{b_}:\ns_waitcnt vmcnt({n+4})\n{d}:')
    for blk in range(2):
        if blk:
            for r in range(4): A(f'v_mov_b32 v{72+r}, v{88+r}')
        for w in range(1,4):
            for r in range(4): A(f'v_mov_b32_dpp v{72+4*w+r}, v{72+r} row_ror:{4*(4-w)} row_mask:0xf bank_mask:0xf')
        waitv(8 if blk==0 else 0)
        if blk and o.stamps:
            A(f's_cmp_lg_u32 {sWAVE}, 14\ns_cbranch_scc1 L_NS9'); g.stamp(9,'v4','v5'); A('L_NS9:')
        B=8+32*blk
        def merge(w):
            d=Dd+8*(w&1)
            for r in range(8):
                if blk==0 and w==0: A(f'v_mov_b32 v{Mm+r}, v{d+r}')
                else: A(f'v_cndmask_b32 v{Mm+r}, v{Mm+r}, v{d+r}, s[{90+2*w}:{91+2*w}]')
        for w in range(4):
            for a in range(4): A(f'v_perm_b32 v{Tt+a}, v{B+4*(2*a+1)+w}, v{B+4*(2*a)+w}, s88')
            for a in range(4): A(f'v_perm_b32 v{Tt+4+a}, v{B+4*(2*a+1)+w}, v{B+4*(2*a)+w}, s89')
            d=Dd+8*(w&1)
            c0='0' if blk==0 else f'v[{Mm}:{Mm+3}]'; c1='0' if blk==0 else f'v[{Mm+4}:{Mm+7}]'
            A(f'v_mfma_f32_16x16x32_bf16 v[{d}:{d+3}], v[{72+4*w}:{75+4*w}], v[{Tt}:{Tt+3}], {c0}')
            A(f'v_mfma_f32_16x16x32_bf16 v[{d+4}:{d+7}], v[{72+4*w}:{75+4*w}], v[{Tt+4}:{Tt+7}], {c1}')
            if w: merge(w-1)
        merge(3)
    for h in range(4): A(f'ds_write2_b32 v6, v{Mm+h}, v{Mm+4+h} offset0:{32*h} offset1:{32*h+1}')
    A('s_waitcnt lgkmcnt(0)\ns_barrier')
    A(f's_cmp_ge_u32 {sWAVE}, 12\ns_cbranch_scc1 L_VT')
    A(f'v_lshrrev_b32 v5, 3, v1\nv_mul_u32_u24 v4, {OP_PITCH}, v5\nv_and_b32 v5, 7, v1\nv_lshl_add_u32 v4, v5, 4, v4\ns_lshl_b32 s84, {sW8}, 7\ns_add_u32 s84, s84, {L_OP}\nv_add_u32 v4, s84, v4')
    for k in range(4): A(f'ds_read_b128 v[{8+4*k}:{11+4*k}], v4 offset:{k*512}')
    A(f'v_lshlrev_b32 v5, 3, v1\ns_lshl_b32 s84, {sPAIR}, 10\ns_lshl_b32 s85, {sJ}, 8\ns_add_u32 s84, s84, s85\ns_lshl_b32 s85, {sW8}, 6\ns_add_u32 s84, s84, s85\ns_add_u32 s84, s84, {OO}')
    A('s_waitcnt lgkmcnt(0)')
    for r in range(4): A(f'v_add_f32 v{8+r}, v{8+r}, v{12+r}\nv_add_f32 v{16+r}, v{16+r}, v{20+r}')
    for r in range(4): A(f'v_add_f32 v{8+r}, v{8+r}, v{16+r}')
    for r in range(4): A(f'v_add_f32_dpp v{8+r}, v{8+r}, v{8+r} row_ror:8 row_mask:0xf bank_mask:0xf')
    g.red_rows('v_add_f32', [8,9,10,11], [12,13,14,15])
    A('v_cvt_pk_bf16_f32 v12, v8, v9\nv_cvt_pk_bf16_f32 v13, v10, v11')
    g.nosent([12,13])
    A('s_mov_b64 exec, 0xff')
    g.pub(f'buffer_store_dwordx2 v[12:13], v5, {RWS}, s84 offen', True)
    A('s_mov_b64 exec, -1')
    A(f's_cmp_lg_u32 {sWAVE}, 8\ns_cbranch_scc1 L_NS10')
    g.stamp(10)
    A('L_NS10:')
    A('s_waitcnt vmcnt(1)\ns_barrier')
    A('s_branch L_END')
    A('L_VT:')
    A('s_waitcnt vmcnt(0)\ns_barrier')
    A(f's_cmp_eq_u32 s86, 0\ns_cbranch_scc1 L_DUMPX')
    A(f's_and_b32 s84, {sWAVE}, 3')
    g.tr_addr('v5', 's84', 0, 'v6', 'v7')
    A(f's_lshl_b32 s82, {sB}, 3\ns_add_u32 s82, s82, {sG}')
    A(f's_cmp_eq_u32 {sJ}, 3\ns_cbranch_scc1 L_T3\ns_cmp_eq_u32 {sJ}, 2\ns_cbranch_scc1 L_T2')
    def big_gemv():
        A('s_waitcnt lgkmcnt(0)\ns_barrier')
        for m in range(8): A(f'ds_read_b128 v[{72+4*m}:{75+4*m}], v6 offset:{m*64}')
        for m in range(4): A(f'ds_read_b128 v[{108+4*m}:{111+4*m}], v6 offset:{(8+m)*64}')
        for m in range(16):
            if m<12:
                A(f's_waitcnt lgkmcnt({11-m if m<4 else min(11-m+ (m-4+1 if m-4+1<=4 else 4), 15)})') if False else None
            a = 72+4*m if m<8 else (108+4*(m-8) if m<12 else 72+4*(m-12))
            if m<=3: n=11-m+m
            else: n=15-m
            A(f's_waitcnt lgkmcnt({n})')
            c='0' if m==0 else 'v[104:107]'
            A(f'v_mfma_f32_16x16x32_bf16 v[104:107], v[{8+4*m}:{11+4*m}], v[{a}:{a+3}], {c}')
            if m<4: A(f'ds_read_b128 v[{72+4*m}:{75+4*m}], v6 offset:{(12+m)*64}')
    g.tr_frags('v5', 8, [4*(mp&3)+(mp>>2) for mp in range(16)])
    g.act_addr('v6', L_ACT, 1056, 'v7')
    A(f's_lshl_b32 s83, s82, 11\ns_lshl_b32 s85, s84, 9\ns_add_u32 s83, s83, s85\ns_add_u32 s83, s83, {WP}')
    g.part_store_addr('v4', 's83', 'v7')
    big_gemv()
    g.nosent(range(104,108))
    A('s_mov_b32 exec_lo, 0x00ff00ff\ns_mov_b32 exec_hi, 0x00ff00ff')
    A(f'buffer_store_dwordx4 v[104:107], v4, {RWS}, 0 offen sc1')
    A('s_mov_b64 exec, -1')
    g.stamp(11)
    A('s_branch L_DUMPX')
    A('L_T2:')
    g.tr_frags('v5', 8, range(16))
    g.act_addr('v6', L_ACT, 1056, 'v7')
    A(f's_lshl_b32 s83, {sPAIR}, 10\ns_lshl_b32 s85, s84, 8\ns_add_u32 s83, s83, s85\ns_add_u32 s83, s83, {GU}')
    A('v_and_b32 v7, 15, v1\nv_lshlrev_b32 v4, 5, v7\nv_lshrrev_b32 v7, 4, v1\nv_lshl_add_u32 v4, v7, 3, v4')
    big_gemv()
    g.rnd2(104,105,108); g.rnd2(106,107,109)
    A(f's_cmp_ge_u32 {sB}, 4\ns_cbranch_scc1 L_T2U')
    g.silu_inplace([104,105,106,107],[110,111,112,113])
    A('v_cvt_pk_bf16_f32 v108, v104, v105\nv_cvt_pk_bf16_f32 v109, v106, v107')
    A('L_T2U:')
    g.nosent([108,109])
    A('s_mov_b32 exec_lo, 0x00ff00ff\ns_mov_b32 exec_hi, 0x00ff00ff')
    g.pub(f'buffer_store_dwordx2 v[108:109], v4, {RWS}, s83 offen', True)
    A('s_mov_b64 exec, -1')
    g.stamp(13)
    A('s_branch L_DUMPX')
    A('L_T3:')
    g.tr_frags('v5', 8, range(8))
    g.act_addr('v6', L_ACT, 544, 'v7')
    A(f's_lshl_b32 s83, s82, 11\ns_lshl_b32 s85, s84, 9\ns_add_u32 s83, s83, s85\ns_add_u32 s83, s83, {DP}')
    g.part_store_addr('v4', 's83', 'v7')
    A('s_waitcnt lgkmcnt(0)\ns_barrier')
    g.gemv_tile(8, 8, 'v6', 72, 104)
    g.nosent(range(104,108))
    A('s_mov_b32 exec_lo, 0x00ff00ff\ns_mov_b32 exec_hi, 0x00ff00ff')
    A(f'buffer_store_dwordx4 v[104:107], v4, {RWS}, 0 offen sc1')
    A('s_mov_b64 exec, -1')
    g.stamp(14)
    A('L_DUMPX:')
    if o.stamps:
        A(f's_cmp_eq_u32 {sJ}, 0\ns_cbranch_scc1 L_END\ns_cmp_lg_u32 {sWAVE}, 12\ns_cbranch_scc1 L_END')
    else:
        A('s_branch L_END')
    A('L_DUMP:')
    if o.stamps:
        A(f'v_lshlrev_b32 v4, 2, v1\nv_add_u32 v5, {L_STAMP}, v4\nds_read_b32 v6, v5\nv_mov_b32 v7, 0\nv_lshlrev_b32 v4, 3, v1')
        A(f's_add_u32 s80, s58, 0x{STAMP:x}\ns_addc_u32 s81, s59, 0\ns_lshl_b32 s82, s2, 7\ns_add_u32 s80, s80, s82\ns_addc_u32 s81, s81, 0')
        A('s_waitcnt lgkmcnt(0)\ns_mov_b64 exec, 0xffff\nglobal_store_dwordx2 v4, v[6:7], s[80:81]')
    A('L_END:\ns_endpgm')
    return g.L

def emit(o, fname):
    body = build(o)
    body, n = fix_hazards(body)
    hdr = open('cdna_kernels/'+NAME+'.s.ref').read().split('; Override launch')[0]
    out = hdr + f'; @launch grid=(256,1,1) block=(1024,1,1) lds={LDS_SIZE}\n'
    out += f'.amdgcn_target "amdgcn-amd-amdhsa--gfx950"\n.text\n.globl {NAME}_kernel\n.p2align 8\n.type {NAME}_kernel,@function\n{NAME}_kernel:\n'
    out += '\n'.join(('' if l.endswith(':') else '    ')+l for l in body) + '\n'
    out += f'''.section .rodata,"a"
.p2align 6
.amdhsa_kernel {NAME}_kernel
  .amdhsa_next_free_vgpr 128
  .amdhsa_next_free_sgpr 102
  .amdhsa_accum_offset 128
  .amdhsa_group_segment_fixed_size 0
  .amdhsa_kernarg_size 112
  .amdhsa_user_sgpr_count 2
  .amdhsa_user_sgpr_kernarg_segment_ptr 1
  .amdhsa_system_sgpr_workgroup_id_x 1
  .amdhsa_float_denorm_mode_32 3
  .amdhsa_float_denorm_mode_16_64 3
.end_amdhsa_kernel
'''
    open(fname,'w').write(out)
    print(fname, len(body), 'lines', n, 'nops inserted')

if __name__=='__main__':
    ap=argparse.ArgumentParser()
    ap.add_argument('-o', default='k.s')
    ap.add_argument('--stamps', action='store_true')
    ap.add_argument('--local', action='store_true')
    o=ap.parse_args()
    emit(o, o.o)
```

```python
import sys, argparse
from asmlib import fix_hazards
NAME='adaLN_cond__sliding_block_cached__swiglu_ffn__decode'

PP=0x000000; OO=0x100000; ST=0x110000; X1=0x120000; GU=0x130000; LREG=0x140000; GOFF=0x180000
QF=0x300000; QF2=0x310000; HH=0x320000; HH2=0x322000; MT=0x400000; MT2=0x420000; WP=0x440000; DP=0x460000
MP=0x480000; MP2=0x4A0000; FL=0x4C0000; FLB=0x4C8000; WS_USED=0x4D0000
STAMP=0x10000000
L_W=0x0; L_W2=0x10000; L_WM=0x10000; L_KS=0x0; KS_SZ=4352
L_OP=0x18000
L_Y=0x14000; L_H=0x18000
L_ACT=0x20000; L_ACT2=0x18000; L_Q=0x22200; L_FLAGS=0x22800; L_X1S=0x22900; L_STAMP=0x23100; LDS_SIZE=0x23400
F_QREADY=4; F_MODE=8; F_E=12; F_SUB=16; F_Y=20; F_C1=24; F_C3=28; F_CLR=32; F_MOK=36; F_R=40; F_GO=44; F_VGO=48; F_KL=52
sWAVE,sG,sB,sJ,sMODE = 's3','s4','s5','s6','s7'
RK,RV,RWS,RW1,RWM,RC,RX,ROUT,RDBG = 's[8:11]','s[12:15]','s[16:19]','s[20:23]','s[24:27]','s[28:31]','s[60:63]','s[64:67]','s[68:71]'
RWL='s[92:95]'
sTO='s72'
sPAIR='s73'
sW8='s74'
LOG2E=0x3fb8aa3b
SCALE=0x3db504f3

class G:
    def __init__(self, opt):
        self.L=[]; self.o=opt; self.nl=0; self.nstamp=0
    def __call__(self, s):
        for l in s.split('\n'):
            l=l.strip()
            if l: self.L.append(l)
    def lab(self, p='L'):
        self.nl+=1; return f'{p}_{self.nl}'
    def stamp(self, slot, va='v126', vb='v127'):
        if not self.o.stamps: return
        self(f's_memrealtime s[98:99]\ns_waitcnt lgkmcnt(0)\nv_mov_b32 {va}, {L_STAMP+4*slot}\nv_mov_b32 {vb}, s98\nds_write_b32 {va}, {vb}\ns_waitcnt lgkmcnt(0)')
    def stampw(self, wave, slot):
        if not self.o.stamps: return
        l=self.lab('NSW')
        self(f's_cmp_lg_u32 {sWAVE}, {wave}\ns_cbranch_scc1 {l}')
        self.stamp(slot)
        self(f'{l}:')
    def timeout(self, done):
        self(f's_cmp_eq_u32 {sTO}, 0\ns_cbranch_scc1 {done}\ns_sub_u32 {sTO}, {sTO}, 1')
    def lds_spin(self, vflag, off, target, vt, st='s76', sleep=1):
        a=self.lab('SPIN'); d=self.lab('SPD')
        self(f'{a}:\nds_read_b32 {vt}, {vflag} offset:{off}\ns_waitcnt lgkmcnt(0)\nv_readfirstlane_b32 {st}, {vt}\ns_cmp_ge_u32 {st}, {target}\ns_cbranch_scc1 {d}')
        self.timeout(d)
        if sleep: self(f's_sleep {sleep}')
        self(f's_branch {a}\n{d}:')
    def lds_set(self, vflag, off, val, vt):
        self(f'v_mov_b32 {vt}, {val}\nds_write_b32 {vflag}, {vt} offset:{off}')
    def poll(self, loads, regs, vt, sleep=0):
        a=self.lab('POLL'); d=self.lab('PLD')
        self(f'{a}:')
        for l in loads: self(l)
        self('s_waitcnt vmcnt(0)')
        self.chk(regs, vt)
        self(f's_cbranch_vccz {d}')
        self.timeout(d)
        if sleep: self(f's_sleep {sleep}')
        self(f's_branch {a}\n{d}:')
    def chk(self, regs, vt):
        r=list(regs)
        if len(r)==1:
            self(f'v_cmp_eq_u32 vcc, -1, v{r[0]}'); return
        if len(r)==2:
            self(f'v_max_u32 {vt}, v{r[0]}, v{r[1]}')
        else:
            self(f'v_max3_u32 {vt}, v{r[0]}, v{r[1]}, v{r[2]}')
            r=r[3:]
            while len(r)>=2:
                self(f'v_max3_u32 {vt}, {vt}, v{r[0]}, v{r[1]}'); r=r[2:]
            if r: self(f'v_max_u32 {vt}, {vt}, v{r[0]}')
        self(f'v_cmp_eq_u32 vcc, -1, {vt}')
    def nosent(self, regs):
        for r in regs: self(f'v_min_u32 v{r}, -2, v{r}')
    def pub(self, instr, local_ok=False):
        if local_ok:
            a=self.lab('PUBL'); d=self.lab('PUBD')
            self(f's_cmp_eq_u32 {sMODE}, 1\ns_cbranch_scc1 {a}\n{instr} sc1\ns_branch {d}\n{a}:\n{instr}\n{d}:')
        else:
            self(instr+' sc1')
    def unpack(self, src, dlo, dhi):
        self(f'v_lshlrev_b32 v{dlo}, 16, v{src}\nv_and_b32 v{dhi}, 0xffff0000, v{src}')
    def rnd2(self, a, b, t):
        self(f'v_cvt_pk_bf16_f32 v{t}, v{a}, v{b}')
        self.unpack(t, a, b)
    def wave_red(self, op, regs, tmps):
        for mod in ('quad_perm:[1,0,3,2]','quad_perm:[2,3,0,1]','row_half_mirror','row_mirror'):
            for r in regs: self(f'{op}_dpp v{r}, v{r}, v{r} {mod} row_mask:0xf bank_mask:0xf')
        self.red_rows(op, regs, tmps)
    def red_rows(self, op, regs, tmps):
        for sw in ('v_permlane16_swap_b32','v_permlane32_swap_b32'):
            for r,t in zip(regs,tmps): self(f'v_mov_b32 v{t}, v{r}')
            for r,t in zip(regs,tmps): self(f'{sw} v{r}, v{t}')
            for r,t in zip(regs,tmps): self(f'{op} v{r}, v{r}, v{t}')
    def silu_inplace(self, xs, ts):
        self(f's_mov_b32 s77, 0x{(LOG2E|0x80000000):x}')
        for x,t in zip(xs,ts): self(f'v_mul_f32 v{t}, s77, v{x}')
        for x,t in zip(xs,ts): self(f'v_exp_f32 v{t}, v{t}')
        for x,t in zip(xs,ts): self(f'v_add_f32 v{t}, 1.0, v{t}')
        for x,t in zip(xs,ts): self(f'v_rcp_f32 v{t}, v{t}')
        for x,t in zip(xs,ts): self(f'v_mul_f32 v{x}, v{x}, v{t}')
    def silu8(self, src, x0, t0):
        for i in range(4): self.unpack(src+i, x0+2*i, x0+2*i+1)
        self.silu_inplace(list(range(x0,x0+8)), list(range(t0,t0+8)))
        for i in range(4): self(f'v_cvt_pk_bf16_f32 v{src+i}, v{x0+2*i}, v{x0+2*i+1}')
    def ln8(self, src, x0, t0):
        X=list(range(x0,x0+8)); T=list(range(t0,t0+8)); s1,s2,u1,u2=t0+8,t0+9,t0+10,t0+11
        for i in range(4): self.unpack(src+i, x0+2*i, x0+2*i+1)
        self(f'v_readfirstlane_b32 s77, v{x0}')
        for x,t in zip(X,T): self(f'v_subrev_f32 v{t}, s77, v{x}')
        self(f'v_add_f32 v{s1}, v{T[0]}, v{T[1]}\nv_mul_f32 v{s2}, v{T[0]}, v{T[0]}')
        self(f'v_fmac_f32 v{s2}, v{T[1]}, v{T[1]}')
        for t in T[2:]:
            self(f'v_add_f32 v{s1}, v{s1}, v{t}\nv_fmac_f32 v{s2}, v{t}, v{t}')
        self.wave_red('v_add_f32', [s1,s2], [u1,u2])
        self(f'v_mul_f32 v{s1}, 0x3b000000, v{s1}\nv_mul_f32 v{s2}, 0x3b000000, v{s2}')
        self(f'v_fma_f32 v{s2}, -v{s1}, v{s1}, v{s2}\nv_max_f32 v{s2}, 0, v{s2}\nv_add_f32 v{s1}, s77, v{s1}')
        self.rnd2(s1, s2, u1)
        self(f'v_add_f32 v{s2}, 0x3727c5ac, v{s2}')
        self(f'v_cvt_pk_bf16_f32 v{u1}, v{s2}, v{s2}\nv_lshlrev_b32 v{s2}, 16, v{u1}\nv_sqrt_f32 v{s2}, v{s2}')
        self(f'v_cvt_pk_bf16_f32 v{u1}, v{s2}, v{s2}\nv_lshlrev_b32 v{s2}, 16, v{u1}\nv_rcp_f32 v{s2}, v{s2}')
        for x in X: self(f'v_sub_f32 v{x}, v{x}, v{s1}')
        for i in range(4): self.rnd2(X[2*i], X[2*i+1], T[i])
        for x in X: self(f'v_mul_f32 v{x}, v{x}, v{s2}')
        for i in range(4): self.rnd2(X[2*i], X[2*i+1], T[i])
    def dma_voff(self, ve, vo, pitch, vt):
        self(f'v_lshrrev_b32 {vt}, 3, v1\ns_mov_b32 s77, {pitch}\nv_mul_lo_u32 {ve}, {vt}, s77')
        self(f'v_bfe_u32 {vt}, v1, 4, 1\nv_lshlrev_b32 {vt}, 1, {vt}\nv_and_b32 {vo}, 7, v1\nv_xor_b32 {vt}, {vt}, {vo}\nv_lshlrev_b32 {vt}, 4, {vt}\nv_add_u32 {ve}, {ve}, {vt}\nv_xor_b32 {vo}, 64, {ve}')
    def dma(self, srd, voff, s_src, src_imm, s_lds, lds_imm, nt=True):
        self(f's_add_u32 s78, {s_src}, {src_imm}\ns_add_u32 m0, {s_lds}, {lds_imm}')
        self(f'buffer_load_dwordx4 {voff}, {srd}, s78 offen{" nt" if nt else ""} lds')
    def tr_addr(self, vd, s_ct, base, vt, vt2):
        self(f'v_lshrrev_b32 {vt}, 4, v1\nv_lshlrev_b32 {vd}, 10, {vt}\nv_and_b32 {vt}, 1, {vt}\nv_lshlrev_b32 {vt}, 1, {vt}')
        self(f'v_bfe_u32 {vt2}, v1, 3, 1\nv_or_b32 {vt}, {vt}, {vt2}\nv_xor_b32 {vt}, {s_ct}, {vt}\nv_lshl_add_u32 {vd}, {vt}, 5, {vd}')
        self(f'v_bfe_u32 {vt}, v1, 2, 2\nv_lshl_add_u32 {vd}, {vt}, 7, {vd}\nv_and_b32 {vt}, 3, v1\nv_lshl_add_u32 {vd}, {vt}, 3, {vd}\nv_add_u32 {vd}, {base}, {vd}')
    def tr_frags(self, vaddr, r0, msteps):
        for i,m in enumerate(msteps):
            self(f'ds_read_b64_tr_b16 v[{r0+4*i}:{r0+4*i+1}], {vaddr} offset:{m*4096}\nds_read_b64_tr_b16 v[{r0+4*i+2}:{r0+4*i+3}], {vaddr} offset:{m*4096+512}')
    def act_addr(self, vd, base, pitch, vt):
        self(f'v_and_b32 {vt}, 7, v1\nv_mul_u32_u24 {vd}, {pitch}, {vt}\nv_lshrrev_b32 {vt}, 4, v1\nv_lshl_add_u32 {vd}, {vt}, 4, {vd}\nv_add_u32 {vd}, {base}, {vd}')
    def gemv_tile(self, wf0, nk, vact, a0, d0):
        for m in range(nk): self(f'ds_read_b128 v[{a0+4*m}:{a0+4*m+3}], {vact} offset:{m*64}')
        for m in range(nk):
            self(f's_waitcnt lgkmcnt({min(15,nk-1-m)})')
            c = '0' if m==0 else f'v[{d0}:{d0+3}]'
            self(f'v_mfma_f32_16x16x32_bf16 v[{d0}:{d0+3}], v[{wf0+4*m}:{wf0+4*m+3}], v[{a0+4*m}:{a0+4*m+3}], {c}')
    def part_store_addr(self, vd, s_base, vt):
        self(f'v_and_b32 {vt}, 15, v1\nv_lshlrev_b32 {vd}, 6, {vt}\nv_lshrrev_b32 {vt}, 4, v1\nv_lshl_add_u32 {vd}, {vt}, 4, {vd}\nv_add_u32 {vd}, {s_base}, {vd}')

def build(o):
    g=G(o); A=g
    HALF='s_mov_b32 exec_lo, 0x00ff00ff\ns_mov_b32 exec_hi, 0x00ff00ff'
    HI8='s_mov_b32 vcc_lo, 0xff00ff00\ns_mov_b32 vcc_hi, 0xff00ff00'
    SENT='v_mov_b32 v8, -1\nv_mov_b32 v9, -1\nv_mov_b32 v10, -1\nv_mov_b32 v11, -1\nv_lshlrev_b32 v5, 4, v1'
    def lds_inc(off, vt):
        A(f'v_mov_b32 {vt}, 1\ns_mov_b64 exec, 1\nds_add_u32 v3, {vt} offset:{off}\ns_mov_b64 exec, -1')
    def xor_chk(a0, b0, n, vE, vt):
        for i in range(n): A(f'v_xor_b32 v{b0+i}, v{b0+i}, v{a0+i}')
        A(f'v_xor_b32 {vt}, v{b0}, {vE}')
        for i in range(1,n): A(f'v_bitop3_b32 {vt}, {vt}, v{b0+i}, {vE} bitop3:0xf6')
        A(f'v_cmp_ne_u32 vcc, 0, {vt}')
    def xpoll(loads, a0, b0, n, vE, vt, sleep=0):
        a=g.lab('XP'); d=g.lab('XPD')
        A(f'{a}:')
        for l in loads: A(l)
        A('s_waitcnt vmcnt(0)')
        xor_chk(a0,b0,n,vE,vt)
        A(f's_cbranch_vccz {d}')
        g.timeout(d)
        if sleep: A(f's_sleep {sleep}')
        A(f's_branch {a}\n{d}:')
    def get_E(vd): g.lds_spin('v3', F_E, 1, vd, sleep=1)
    def pair_prep(vaddr, delta, vE, vEm, vt):
        A(HI8)
        A(f'v_mov_b32 {vt}, {delta}\nv_cndmask_b32 {vt}, 0, {vt}, vcc\nv_add_u32 {vaddr}, {vaddr}, {vt}\nv_cndmask_b32 {vEm}, 0, {vE}, vcc')
    def get_mode(vt):
        g.lds_spin('v3', F_MOK, 1, vt, sleep=1)
        A(f'ds_read_b32 {vt}, v3 offset:{F_MODE}\ns_waitcnt lgkmcnt(0)')
        A(f'v_readfirstlane_b32 {sMODE}, {vt}\ns_cmp_eq_u32 {sMODE}, 1\ns_cselect_b64 s[92:93], s[58:59], s[100:101]')
    def blk_dma(srd, n, s_src, pitch, s_lds, ve, vo):
        for i in range(n): g.dma(srd, vo if i&1 else ve, s_src, i*8*pitch, s_lds, i*1024)
    def gemv16(wf, vact, d, ab, order=None):
        def rd(gq):
            for m in range(4): A(f'ds_read_b128 v[{ab[gq&1]+4*m}:{ab[gq&1]+4*m+3}], {vact} offset:{(4*gq+m)*64}')
        rd(0); rd(1)
        for gq in range(4):
            for m in range(4):
                A(f's_waitcnt lgkmcnt({(4 if gq<3 else 0)+3-m})')
                c='0' if (gq==0 and m==0) else f'v[{d}:{d+3}]'
                A(f'v_mfma_f32_16x16x32_bf16 v[{d}:{d+3}], v[{wf+16*gq+4*m}:{wf+16*gq+4*m+3}], v[{ab[gq&1]+4*m}:{ab[gq&1]+4*m+3}], {c}')
            if gq<2: rd(gq+2)
    def clear_all_local(fl):
        A(SENT)
        A(f's_cmp_ge_u32 {sJ}, 2\ns_cbranch_scc1 L_CAK')
        A(f's_lshl_b32 s80, {sPAIR}, 10\ns_lshl_b32 s81, {sJ}, 9\ns_add_u32 s81, s81, s80\ns_add_u32 s81, s81, {OO}\ns_mov_b32 exec_hi, 0')
        A(f'buffer_store_dwordx4 v[8:11], v5, {RWL}, s81 offen{fl}\ns_mov_b64 exec, -1')
        A(f's_cmp_lg_u32 {sJ}, 0\ns_cbranch_scc1 L_CAD\ns_add_u32 s80, s80, {X1}')
        A(f'buffer_store_dwordx4 v[8:11], v5, {RWL}, s80 offen{fl}\ns_branch L_CAD')
        A('L_CAK:')
        A(f's_lshl_b32 s80, {sPAIR}, 14\ns_and_b32 s81, {sJ}, 1\ns_lshl_b32 s82, s81, 13\ns_add_u32 s80, s80, s82')
        for i in range(8):
            if i==4: A('s_add_u32 s80, s80, 4096')
            A(f'buffer_store_dwordx4 v[8:11], v5, {RWL}, s80 offen offset:{(i%4)*1024}{fl}')
        A(f's_lshl_b32 s80, {sPAIR}, 10\ns_lshl_b32 s82, s81, 9\ns_add_u32 s82, s82, s80\ns_add_u32 s82, s82, {ST}\ns_mov_b32 exec_hi, 0')
        A(f'buffer_store_dwordx4 v[8:11], v5, {RWL}, s82 offen{fl}\ns_mov_b64 exec, -1')
        A(f's_cmp_lg_u32 {sJ}, 3\ns_cbranch_scc1 L_CAD\ns_add_u32 s80, s80, {GU}')
        A(f'buffer_store_dwordx4 v[8:11], v5, {RWL}, s80 offen{fl}')
        A('L_CAD:')

    A(f"""s_cmp_ge_u32 s2, 256
s_cbranch_scc1 L_END
s_load_dwordx16 s[32:47], s[0:1], 0
s_load_dwordx8 s[48:55], s[0:1], 64
s_load_dwordx4 s[56:59], s[0:1], 96
v_and_b32 v1, 63, v0
v_lshrrev_b32 v2, 6, v0
v_readfirstlane_b32 {sWAVE}, v2
s_and_b32 {sG}, s2, 7
s_bfe_u32 {sB}, s2, 0x30003
s_lshr_b32 {sJ}, s2, 6
s_mov_b32 {sMODE}, 0
s_mov_b32 {sTO}, 0x200000
s_lshl_b32 {sPAIR}, {sG}, 3
s_add_u32 {sPAIR}, {sPAIR}, {sB}
s_and_b32 {sW8}, {sWAVE}, 7
v_mov_b32 v3, {L_FLAGS}
v_lshl_add_u32 v4, v1, 2, v3
v_mov_b32 v5, 0
s_cmp_lg_u32 {sWAVE}, 0
s_cbranch_scc1 L_NOINIT
ds_write_b32 v4, v5""")
    if o.stamps: A(f'ds_write_b32 v4, v5 offset:{L_STAMP-L_FLAGS}')
    A(f"""L_NOINIT:
s_lshl_b32 s76, {sB}, 24
s_lshl_b32 s77, {sG}, 21
s_add_u32 s76, s76, s77
s_add_u32 s76, s76, 0x180000
s_mov_b32 s10, 0x80000
s_mov_b32 s11, 0x20000
s_mov_b32 s14, 0x1c0000
s_mov_b32 s15, 0x20000
s_mov_b32 s18, {WS_USED}
s_mov_b32 s19, 0x20000
s_mov_b32 s26, 0x300000
s_mov_b32 s27, 0x20000
s_mov_b32 s30, 0x2000
s_mov_b32 s31, 0x20000
s_mov_b32 s62, 0x2000
s_mov_b32 s63, 0x20000
s_mov_b32 s66, 0x2000
s_mov_b32 s67, 0x20000
s_mov_b32 s70, 0x100
s_mov_b32 s71, 0x20000
s_mov_b32 s22, 0x400000
s_mov_b32 s23, 0x20000
s_mov_b32 s94, {LREG}
s_mov_b32 s95, 0x20000
s_cmp_eq_u32 {sJ}, 3
s_cselect_b32 s22, 0x1c0000, s22
s_waitcnt lgkmcnt(0)
s_cmp_ge_u32 {sJ}, 2
s_cselect_b64 s[8:9], s[34:35], s[36:37]
s_add_u32 s8, s8, s76
s_addc_u32 s9, s9, 0
s_mov_b64 s[12:13], s[48:49]
s_mov_b64 s[16:17], s[58:59]
s_mov_b64 s[24:25], s[52:53]
s_mov_b64 s[28:29], s[50:51]
s_mov_b64 s[60:61], s[32:33]
s_mov_b64 s[64:65], s[54:55]
s_mov_b64 s[68:69], s[56:57]
s_mov_b64 s[20:21], s[38:39]
s_cmp_eq_u32 {sJ}, 2
s_cselect_b64 s[20:21], s[40:41], s[20:21]
s_cmp_lt_u32 {sB}, 4
s_cselect_b64 s[76:77], s[44:45], s[46:47]
s_cmp_eq_u32 {sJ}, 3
s_cselect_b64 s[20:21], s[76:77], s[20:21]
s_mov_b64 s[92:93], s[58:59]
s_add_u32 s100, s58, {GOFF}
s_addc_u32 s101, s59, 0""")
    RKV=RK; RWD=RV
    A(f's_cmp_lg_u32 s2, 0\ns_cbranch_scc1 L_NOE\ns_cmp_lg_u32 {sWAVE}, 0\ns_cbranch_scc1 L_NOE')
    A(f's_memrealtime s[96:97]\ns_waitcnt lgkmcnt(0)\ns_or_b32 s76, s96, 1\nv_mov_b32 v5, s76\nv_lshlrev_b32 v6, 7, v1\ns_mov_b64 exec, 3\nbuffer_store_dword v5, v6, {RDBG}, 0 offen sc1\ns_mov_b64 exec, -1')
    A('L_NOE:')
    A(f's_cmp_ge_u32 {sJ}, 2\ns_cbranch_scc1 L_PREK')
    A(f's_cmp_eq_u32 {sWAVE}, 13\ns_cbranch_scc1 L_PRE13\ns_cmp_eq_u32 {sWAVE}, 15\ns_cbranch_scc1 L_PREV15')
    A(f's_cmp_lg_u32 {sJ}, 0\ns_cbranch_scc1 L_B0\ns_cmp_ge_u32 {sWAVE}, 12\ns_cbranch_scc1 L_B0\ns_cmp_ge_u32 {sWAVE}, 8\ns_cbranch_scc1 L_PREC')
    A(f's_and_b32 s80, s2, 15\ns_lshr_b32 s81, s2, 4')
    g.dma_voff('v12','v13',6144,'v14')
    A(f's_lshl_b32 s84, s81, 7\ns_lshl_b32 s85, {sWAVE}, 4\ns_add_u32 s84, s84, s85\ns_mul_i32 s84, s84, 6144\ns_lshl_b32 s85, s80, 7\ns_add_u32 s84, s84, s85')
    A(f's_lshl_b32 s85, {sWAVE}, 11\ns_add_u32 s85, s85, {L_WM}')
    blk_dma(RWM, 2, 's84', 6144, 's85', 'v12', 'v13')
    A(f's_cmp_lt_u32 {sWAVE}, 4\ns_cbranch_scc1 L_B0')
    A(f'v_lshlrev_b32 v4, 4, v1\ns_and_b32 s87, {sWAVE}, 3\ns_lshl_b32 s87, s87, 11')
    A(f'buffer_load_dwordx4 v[88:91], v4, {RX}, s87 offen\nbuffer_load_dwordx4 v[92:95], v4, {RX}, s87 offen offset:1024\ns_branch L_B0')
    A('L_PREC:')
    A(f'v_lshlrev_b32 v4, 4, v1\ns_lshl_b32 s83, {sW8}, 11')
    A(f'buffer_load_dwordx4 v[104:107], v4, {RC}, s83 offen\nbuffer_load_dwordx4 v[100:103], v4, {RC}, s83 offen offset:1024\ns_branch L_B0')
    A('L_PREV15:')
    A(SENT)
    A(f's_lshl_b32 s80, {sPAIR}, 10\ns_lshl_b32 s81, {sJ}, 9\ns_add_u32 s81, s81, s80\ns_add_u32 s81, s81, {OO}\ns_mov_b32 exec_hi, 0')
    A(f'buffer_store_dwordx4 v[8:11], v5, {RWL}, s81 offen\ns_mov_b64 exec, -1')
    A(f's_cmp_lg_u32 {sJ}, 0\ns_cbranch_scc1 L_B0\ns_add_u32 s80, s80, {X1}')
    A(f'buffer_store_dwordx4 v[8:11], v5, {RWL}, s80 offen\ns_branch L_B0')
    A('L_PREK:')
    A(f's_cmp_lt_u32 {sWAVE}, 8\ns_cbranch_scc1 L_B0\ns_cmp_eq_u32 {sWAVE}, 14\ns_cbranch_scc1 L_B0\ns_cmp_eq_u32 {sWAVE}, 13\ns_cbranch_scc1 L_PRE13')
    A(SENT)
    A(f's_and_b32 s81, {sJ}, 1\ns_and_b32 s83, s2, 63\ns_lshl_b32 s83, s83, 11')
    A(f's_cmp_ge_u32 {sWAVE}, 12\ns_cbranch_scc1 L_PREK2')
    A(f's_lshl_b32 s80, {sPAIR}, 14\ns_lshl_b32 s82, s81, 13\ns_add_u32 s80, s80, s82\ns_lshl_b32 s82, {sW8}, 11\ns_add_u32 s80, s80, s82')
    A(f'buffer_store_dwordx4 v[8:11], v5, {RWL}, s80 offen\nbuffer_store_dwordx4 v[8:11], v5, {RWL}, s80 offen offset:1024\ns_branch L_B0')
    A('L_PREK2:')
    A(f's_cmp_eq_u32 {sWAVE}, 15\ns_cbranch_scc1 L_PREK3')
    A(f's_lshl_b32 s80, {sPAIR}, 10\ns_lshl_b32 s82, s81, 9\ns_add_u32 s82, s82, s80\ns_add_u32 s82, s82, {ST}\ns_mov_b32 exec_hi, 0')
    A(f'buffer_store_dwordx4 v[8:11], v5, {RWL}, s82 offen\ns_mov_b64 exec, -1')
    A(f's_cmp_eq_u32 {sJ}, 2\ns_cbranch_scc1 L_PREK4\ns_add_u32 s80, s80, {GU}')
    A(f'buffer_store_dwordx4 v[8:11], v5, {RWL}, s80 offen\ns_branch L_B0')
    A(f'L_PREK4:\ns_add_u32 s80, s83, {WP}\ns_branch L_PREK5')
    A(f'L_PREK3:\ns_cmp_lg_u32 {sJ}, 2\ns_cbranch_scc1 L_B0\ns_add_u32 s80, s83, {DP}')
    A(f'L_PREK5:\nbuffer_store_dwordx4 v[8:11], v5, {RWS}, s80 offen sc1\nbuffer_store_dwordx4 v[8:11], v5, {RWS}, s80 offen offset:1024 sc1\ns_branch L_B0')
    A('L_PRE13:')
    if o.codepf:
        A(f's_getpc_b64 s[80:81]\nL_PC:\ns_sub_u32 s80, s80, L_PC-{NAME}_kernel\ns_subb_u32 s81, s81, 0')
        A(f's_lshr_b32 s82, s2, 3\ns_lshl_b32 s82, s82, 10\nv_lshlrev_b32 v4, 4, v1\nv_add_u32 v4, s82, v4\nv_min_u32 v4, L_CODE_END-{NAME}_kernel-16, v4')
        A('global_load_dwordx4 v[100:103], v4, s[80:81]')
    A('L_B0:\ns_barrier')
    g.stampw(0,0)
    A(f's_cmp_eq_u32 {sWAVE}, 14\ns_cbranch_scc1 L_EP')
    A(f's_cmp_eq_u32 {sWAVE}, 15\ns_cbranch_scc1 L_SYNC')
    A(f's_cmp_eq_u32 {sJ}, 0\ns_cbranch_scc1 L_TC\ns_cmp_eq_u32 {sJ}, 1\ns_cbranch_scc1 L_TD')
    A(f's_cmp_lt_u32 {sWAVE}, 8\ns_cbranch_scc1 L_KPATH\ns_cmp_eq_u32 {sWAVE}, 13\ns_cbranch_scc1 L_KPATH')
    A('s_waitcnt vmcnt(0)')
    lds_inc(F_CLR, 'v5')
    A('s_branch L_KPATH')
    A('L_SYNC:\ns_setprio 3\ns_waitcnt vmcnt(0)')
    get_E('v12')
    A(f's_cmp_lt_u32 {sJ}, 2\ns_cbranch_scc1 L_SY1')
    g.lds_spin('v3', F_CLR, 5, 'v7', sleep=1)
    A('L_SY1:')
    A(f's_getreg_b32 s83, hwreg(HW_REG_XCC_ID)\nv_mov_b32 v13, s83\ns_lshl_b32 s84, s2, 7\ns_add_u32 s84, s84, {FL}\nv_mov_b32 v14, s84')
    A(f's_mov_b64 exec, 1\nbuffer_store_dwordx2 v[12:13], v14, {RWS}, 0 offen sc1\ns_mov_b64 exec, -1')
    g.stamp(4)
    A(f's_setprio 0\ns_cmp_ge_u32 {sJ}, 2\ns_cbranch_scc1 L_KPATH\ns_branch L_VWAIT')
    A('L_EP:\ns_setprio 3')
    A(f's_and_b32 s80, s2, 1\ns_lshl_b32 s80, s80, 7\nv_mov_b32 v9, s80\nL_EPL:\nbuffer_load_dword v12, v9, {RDBG}, 0 offen sc1\ns_waitcnt vmcnt(0)\nv_cmp_eq_u32 vcc, 0, v12\ns_cbranch_vccz L_EPD')
    g.timeout('L_EPD')
    A(f's_branch L_EPL\nL_EPD:\nds_write_b32 v3, v12 offset:{F_E}')
    g.stamp(24)
    A(f's_setprio 0\ns_cmp_ge_u32 {sJ}, 2\ns_cbranch_scc1 L_KPATH')
    A(f's_sleep {o.fldelay}\ns_mov_b32 s79, 0')
    A('L_FLAGS:')
    A(f'v_and_b32 v7, 31, v1\nv_lshlrev_b32 v14, 3, v7\nv_add_u32 v14, {sG}, v14\nv_lshrrev_b32 v15, 3, v7\nv_lshlrev_b32 v15, 6, v15\nv_and_b32 v7, 7, v1\nv_add_u32 v15, v15, v7\ns_lshl_b32 s84, {sB}, 3\nv_add_u32 v15, s84, v15')
    A(f's_mov_b32 vcc_lo, 0\ns_mov_b32 vcc_hi, -1\nv_cndmask_b32 v15, v14, v15, vcc\nv_lshlrev_b32 v15, 7, v15\nv_add_u32 v15, {FL}, v15')
    A(f'L_FLP:\nbuffer_load_dwordx2 v[96:97], v15, {RWS}, 0 offen sc1\ns_waitcnt vmcnt(0)\nv_cmp_ne_u32 vcc, v96, v12\ns_cbranch_vccz L_FLD')
    g.timeout('L_FLD')
    A('s_sleep 8\ns_branch L_FLP\nL_FLD:')
    A('s_getreg_b32 s83, hwreg(HW_REG_XCC_ID)')
    A(f'v_cmp_ne_u32 vcc, s83, v97\ns_cmp_eq_u32 vcc_lo, 0\ns_cselect_b32 s84, {1 if o.local else 0}, 0\nv_mov_b32 v14, s84\ns_cmp_eq_u32 s84, 1\ns_cbranch_scc1 L_FLOK')
    A('s_mov_b64 s[92:93], s[100:101]')
    clear_all_local(' sc1')
    A(f's_lshl_b32 s80, s2, 7\ns_add_u32 s80, s80, {FLB}\nv_mov_b32 v5, s80\ns_mov_b32 s80, {FLB-FL}\ns_waitcnt vmcnt(0)')
    A(f's_mov_b64 exec, 1\nbuffer_store_dword v12, v5, {RWS}, 0 offen sc1\ns_mov_b64 exec, -1')
    A(f'L_FBP:\nbuffer_load_dword v8, v15, {RWS}, s80 offen sc1\ns_waitcnt vmcnt(0)\nv_cmp_ne_u32 vcc, v8, v12\ns_cmp_eq_u32 vcc_lo, 0\ns_cbranch_scc1 L_FLOK')
    g.timeout('L_FLOK')
    A('s_sleep 4\ns_branch L_FBP')
    A(f'L_FLOK:\nds_write_b32 v3, v14 offset:{F_MODE}\ns_waitcnt lgkmcnt(0)')
    g.lds_set('v3', F_MOK, 1, 'v7')
    g.stamp(5)
    A('s_cmp_eq_u32 s79, 1\ns_cbranch_scc1 L_KFLB\ns_branch L_VWAIT')

    A('L_TC:')
    A(f's_cmp_ge_u32 {sWAVE}, 12\ns_cbranch_scc1 L_C_MT\ns_cmp_ge_u32 {sWAVE}, 8\ns_cbranch_scc1 L_C_S\ns_cmp_ge_u32 {sWAVE}, 4\ns_cbranch_scc1 L_C_LN')
    g.tr_addr('v5', sWAVE, L_WM, 'v6', 'v7')
    A(f's_lshl_b32 s84, s81, 8\ns_add_u32 s84, s84, {L_ACT}')
    g.act_addr('v6', 's84', 1056, 'v7')
    A(f's_lshl_b32 s86, s2, 11\ns_lshl_b32 s84, {sWAVE}, 9\ns_add_u32 s86, s86, s84\ns_add_u32 s86, s86, {MP}')
    A('v_and_b32 v7, 7, v1\nv_lshlrev_b32 v4, 6, v7\nv_lshrrev_b32 v7, 4, v1\nv_lshl_add_u32 v4, v7, 4, v4')
    A('s_waitcnt vmcnt(0)')
    lds_inc(F_C1, 'v7')
    get_E('v12')
    pair_prep('v4', MP2-MP, 'v12', 'v12', 'v7')
    g.lds_spin('v3', F_C1, 12, 'v7', sleep=0)
    g.tr_frags('v5', 48, range(4))
    g.gemv_tile(48, 4, 'v6', 64, 80)
    for r in range(4): A(f'v_xor_b32 v{80+r}, v{80+r}, v12')
    A(f'buffer_store_dwordx4 v[80:83], v4, {RWS}, s86 offen sc1')
    lds_inc(F_C1, 'v7')
    g.stampw(0,1)
    A('s_branch L_VWAIT')
    A('L_C_LN:')
    A('s_waitcnt vmcnt(2)')
    lds_inc(F_C1, 'v5')
    A('s_waitcnt vmcnt(0)')
    A(f's_add_u32 s87, s87, {L_Y}\nv_add_u32 v4, s87, v4')
    for k,src in enumerate((88,92)):
        g.ln8(src, 48, 56)
        for i in range(4): A(f'v_cvt_pk_bf16_f32 v{src+i}, v{48+2*i}, v{49+2*i}')
        A(f'ds_write_b128 v4, v[{src}:{src+3}] offset:{k*1024}')
    A('s_waitcnt lgkmcnt(0)')
    lds_inc(F_Y, 'v5')
    A('s_branch L_VWAIT')
    A('L_C_S:')
    A(f's_mul_i32 s85, {sW8}, 2112\ns_add_u32 s85, s85, {L_ACT}\nv_add_u32 v5, s85, v4')
    A('s_waitcnt vmcnt(1)')
    g.silu8(104, 16, 24)
    A('ds_write_b128 v5, v[104:107]\ns_waitcnt vmcnt(0)')
    g.silu8(100, 16, 24)
    A('ds_write_b128 v5, v[100:103] offset:1056\ns_waitcnt lgkmcnt(0)')
    lds_inc(F_C1, 'v5')
    A(f's_cmp_lg_u32 {sWAVE}, 8\ns_cbranch_scc1 L_VWAIT')
    A('s_setprio 3')
    get_E('v15')
    A('v_lshrrev_b32 v7, 4, v1\nv_lshlrev_b32 v5, 14, v7\nv_bfe_u32 v6, v1, 1, 3\nv_lshl_add_u32 v5, v6, 6, v5\nv_and_b32 v7, 1, v1\nv_lshl_add_u32 v5, v7, 4, v5')
    A(f's_lshr_b32 s80, s2, 1\ns_lshl_b32 s80, s80, 9\ns_and_b32 s81, s2, 1\ns_lshl_b32 s81, s81, 5\ns_add_u32 s80, s80, s81\ns_add_u32 s80, s80, {MP}\ns_add_u32 s81, s80, 0x10000\ns_add_u32 s82, s80, {MP2-MP}\ns_add_u32 s83, s81, {MP2-MP}')
    A(f'v_lshlrev_b32 v6, 10, v6\nv_lshl_add_u32 v6, v7, 3, v6\ns_lshl_b32 s84, s2, 4\ns_add_u32 s84, s84, {L_Y}\nv_add_u32 v6, s84, v6')
    A(f'v_and_b32 v7, 15, v1\nv_lshlrev_b32 v8, 3, v7\nv_bfe_u32 v7, v1, 4, 1\nv_mul_u32_u24 v9, {HH2-HH}, v7\nv_add_u32 v8, v8, v9\nv_mul_lo_u32 v9, v7, v15\ns_lshl_b32 s84, s2, 7\ns_add_u32 s84, s84, {HH}')
    g.lds_spin('v3', F_Y, 4, 'v7', sleep=1)
    A('ds_read_b64 v[10:11], v6')
    g.lds_spin('v3', F_C1, 16, 'v7', sleep=1)
    if o.mpdelay: A(f's_sleep {o.mpdelay}')
    xpoll([f'buffer_load_dwordx4 v[{16+4*k}:{19+4*k}], v5, {RWS}, s{80+k} offen sc1' for k in range(4)], 16, 24, 8, 'v15', 'v7', sleep=o.mpsleep)
    for r in range(4): A(f'v_add_f32 v{16+r}, v{16+r}, v{20+r}')
    for r in range(4): A(f'v_mov_b32 v{20+r}, v{16+r}')
    for r in range(4): A(f'v_permlane32_swap_b32 v{16+r}, v{20+r}')
    for r in range(4): A(f'v_add_f32 v{16+r}, v{16+r}, v{20+r}')
    g.rnd2(16,17,12); g.rnd2(18,19,13)
    for r in range(4): A(f'v_mov_b32 v{20+r}, v{16+r}')
    for r in range(4): A(f'v_permlane16_swap_b32 v{16+r}, v{20+r}')
    for r in range(4): A(f'v_add_f32 v{20+r}, 1.0, v{20+r}')
    g.rnd2(20,21,12); g.rnd2(22,23,13)
    g.unpack(10,24,25); g.unpack(11,26,27)
    for r in range(4): A(f'v_mul_f32 v{24+r}, v{24+r}, v{20+r}')
    g.rnd2(24,25,12); g.rnd2(26,27,13)
    for r in range(4): A(f'v_add_f32 v{24+r}, v{24+r}, v{16+r}')
    A('v_cvt_pk_bf16_f32 v10, v24, v25\nv_cvt_pk_bf16_f32 v11, v26, v27\nv_xor_b32 v10, v10, v9\nv_xor_b32 v11, v11, v9\ns_mov_b32 exec_hi, 0')
    A(f'buffer_store_dwordx2 v[10:11], v8, {RWS}, s84 offen sc1\ns_mov_b64 exec, -1')
    g.lds_set('v3', F_R, 1, 'v7')
    A('s_setprio 0')
    g.stamp(25)
    A('s_branch L_VWAIT')
    A('L_C_MT:')
    A(f'v_lshrrev_b32 v7, 2, v1\nv_mul_u32_u24 v12, 6144, v7\nv_and_b32 v7, 3, v1\nv_lshl_add_u32 v12, v7, 4, v12')
    A(f's_and_b32 s85, {sWAVE}, 1\ns_mul_i32 s88, s85, {256*6144}\ns_lshl_b32 s89, s2, 6\ns_add_u32 s88, s88, s89\ns_add_u32 s88, s88, 2048\ns_lshl_b32 s89, s85, 14')
    A(f'v_lshrrev_b32 v7, 4, v1\nv_lshlrev_b32 v6, 9, v7\nv_bfe_u32 v7, v1, 2, 2\nv_lshl_add_u32 v6, v7, 6, v6\nv_and_b32 v7, 3, v1\nv_lshl_add_u32 v6, v7, 3, v6\ns_lshl_b32 s84, s85, 5\nv_add_u32 v6, s84, v6')
    g.act_addr('v8', L_ACT, 1056, 'v7')
    A(f'v_and_b32 v7, 7, v1\nv_lshlrev_b32 v9, 12, v7\nv_lshrrev_b32 v7, 4, v1\nv_lshl_add_u32 v9, v7, 3, v9\ns_lshl_b32 s86, s2, 6\ns_add_u32 s86, s86, s84\ns_add_u32 s86, s86, {MT}')
    if o.mtearly==0: g.lds_spin('v3', F_R, 1, 'v7', sleep=2)
    A('s_setprio 1')
    for i in range(16): g.dma(RWM, 'v12', 's88', i*16*6144, 's89', L_W+i*1024)
    lds_inc(F_GO, 'v7')
    get_E('v10')
    pair_prep('v9', MT2-MT, 'v10', 'v10', 'v7')
    A('s_waitcnt vmcnt(0)')
    lds_inc(F_SUB, 'v7')
    g.lds_spin('v3', F_SUB, 2, 'v7', sleep=1)
    g.lds_spin('v3', F_C1, 12, 'v7', sleep=1)
    def rdm(gq):
        for m in range(4):
            mm=4*gq+m; o_=16*(gq&1)+4*m
            A(f'ds_read_b64_tr_b16 v[{32+o_}:{33+o_}], v6 offset:{mm*2048}\nds_read_b64_tr_b16 v[{34+o_}:{35+o_}], v6 offset:{mm*2048+256}')
            A(f'ds_read_b128 v[{64+o_}:{67+o_}], v8 offset:{mm*64}')
    rdm(0)
    for gq in range(4):
        if gq<3: rdm(gq+1); A('s_waitcnt lgkmcnt(12)')
        else: A('s_waitcnt lgkmcnt(0)')
        for m in range(4):
            o_=16*(gq&1)+4*m
            c='0' if (gq==0 and m==0) else 'v[12:15]'
            A(f'v_mfma_f32_16x16x32_bf16 v[12:15], v[{32+o_}:{35+o_}], v[{64+o_}:{67+o_}], {c}')
    A('v_cvt_pk_bf16_f32 v100, v12, v13\nv_cvt_pk_bf16_f32 v101, v14, v15\nv_xor_b32 v100, v100, v10\nv_xor_b32 v101, v101, v10')
    A(f'buffer_store_dwordx2 v[100:101], v9, {RWS}, s86 offen sc1\ns_setprio 0')
    A('s_branch L_VW_C')

    A('L_TD:')
    A(f's_cmp_ge_u32 {sWAVE}, 12\ns_cbranch_scc1 L_VWAIT\ns_cmp_ge_u32 {sWAVE}, 8\ns_cbranch_scc1 L_D_H')
    g.dma_voff('v12','v13',8192,'v14')
    A(f's_lshl_b32 s85, {sWAVE}, 13\ns_lshl_b32 s84, {sWAVE}, 19\ns_lshl_b32 s86, {sPAIR}, 7\ns_add_u32 s84, s84, s86')
    blk_dma(RW1, 8, 's84', 8192, 's85', 'v12', 'v13')
    lds_inc(F_GO, 'v7')
    A('s_waitcnt vmcnt(0)')
    lds_inc(F_SUB, 'v7')
    A(f's_cmp_ge_u32 {sWAVE}, 4\ns_cbranch_scc1 L_VWAIT')
    g.tr_addr('v5', sWAVE, L_W, 'v6', 'v7')
    g.act_addr('v6', L_H, 1056, 'v7')
    A(f's_lshl_b32 s86, {sPAIR}, 10\ns_lshl_b32 s84, {sWAVE}, 5\ns_add_u32 s86, s86, s84\ns_add_u32 s86, s86, {QF}')
    A(f'v_and_b32 v7, 7, v1\nv_lshlrev_b32 v4, 7, v7\nv_lshrrev_b32 v7, 4, v1\nv_lshl_add_u32 v4, v7, 3, v4')
    get_E('v12')
    pair_prep('v4', QF2-QF, 'v12', 'v12', 'v7')
    g.lds_spin('v3', F_SUB, 8, 'v7', sleep=1)
    g.tr_frags('v5', 16, range(16))
    g.stampw(0,16)
    get_mode('v7')
    A('s_setprio 3')
    g.lds_spin('v3', F_C3, 4, 'v7', sleep=0)
    gemv16(16, 'v6', 8, [80,96])
    A('v_cvt_pk_bf16_f32 v14, v8, v9\nv_cvt_pk_bf16_f32 v15, v10, v11\nv_xor_b32 v14, v14, v12\nv_xor_b32 v15, v15, v12')
    g.pub(f'buffer_store_dwordx2 v[14:15], v4, {RWS}, s86 offen', True)
    lds_inc(F_VGO, 'v7')
    A('s_setprio 0')
    g.stampw(0,3)
    A('s_branch L_VWAIT')
    A('L_D_H:\ns_setprio 3')
    A(f'v_lshlrev_b32 v4, 4, v1\ns_lshl_b32 s80, {sW8}, 11\ns_add_u32 s81, s80, {HH2}\ns_add_u32 s80, s80, {HH}')
    A(f'v_and_b32 v7, 7, v1\nv_mul_u32_u24 v6, 1056, v7\nv_lshrrev_b32 v7, 3, v1\nv_lshl_add_u32 v6, v7, 4, v6\ns_lshl_b32 s84, {sW8}, 8\ns_add_u32 s84, s84, {L_H}\nv_add_u32 v6, s84, v6')
    get_E('v15')
    g.lds_spin('v3', F_SUB, o.hdelay, 'v7', sleep=1)
    xpoll([f'buffer_load_dwordx4 v[16:19], v4, {RWS}, s80 offen sc1', f'buffer_load_dwordx4 v[20:23], v4, {RWS}, s80 offen offset:1024 sc1',
           f'buffer_load_dwordx4 v[24:27], v4, {RWS}, s81 offen sc1', f'buffer_load_dwordx4 v[28:31], v4, {RWS}, s81 offen offset:1024 sc1'], 16, 24, 8, 'v15', 'v7', sleep=o.mpsleep)
    A('ds_write_b128 v6, v[16:19]\nds_write_b128 v6, v[20:23] offset:128\ns_waitcnt lgkmcnt(0)')
    lds_inc(F_C3, 'v5')
    A('s_setprio 0')
    g.stampw(8,2)
    A('L_VWAIT:')
    A(f's_cmp_eq_u32 {sJ}, 1\ns_cbranch_scc1 L_VW_D')
    pm=0
    for w in o.cpre: pm|=1<<w
    if pm: A(f's_mov_b32 s80, {pm}\ns_lshr_b32 s80, s80, {sWAVE}\ns_bitcmp1_b32 s80, 0\ns_cbranch_scc1 L_VPATH')
    g.lds_spin('v3', F_R, 1, 'v7', sleep=2)
    g.lds_spin('v3', F_GO, 2, 'v7', sleep=1)
    A('L_VW_C:')
    cm=0
    for w in o.cearly: cm|=1<<w
    A(f's_mov_b32 s80, {cm}\ns_lshr_b32 s80, s80, {sWAVE}\ns_bitcmp1_b32 s80, 0\ns_cbranch_scc1 L_VPATH')
    A(f's_cmp_lg_u32 {sWAVE}, 9\ns_cbranch_scc1 L_VW_D2')
    get_E('v12')
    A(f's_lshl_b32 s80, {sPAIR}, 10\ns_add_u32 s80, s80, {QF}\ns_add_u32 s81, s80, {QF2-QF}\nv_mov_b32 v5, 0')
    xpoll([f'buffer_load_dword v16, v5, {RWS}, s80 offen sc1', f'buffer_load_dword v17, v5, {RWS}, s81 offen sc1'], 16, 17, 1, 'v12', 'v7', sleep=4)
    g.lds_set('v3', F_VGO, 4, 'v7')
    A('s_branch L_VPATH\nL_VW_D:')
    em=0
    for w in o.dearly: em|=1<<w
    A(f's_mov_b32 s80, {em}\ns_lshr_b32 s80, s80, {sWAVE}\ns_bitcmp1_b32 s80, 0\ns_cbranch_scc0 L_VW_D2')
    g.lds_spin('v3', F_GO, 8, 'v7', sleep=1)
    A('s_branch L_VPATH\nL_VW_D2:')
    g.lds_spin('v3', F_VGO, 4, 'v7', sleep=2)
    A('L_VPATH:')
    A(f'v_lshrrev_b32 v5, 3, v1\nv_lshlrev_b32 v2, 11, v5\nv_and_b32 v5, 7, v1\nv_lshl_add_u32 v2, v5, 4, v2')
    A(f's_lshl_b32 s80, {sWAVE}, 15\ns_lshl_b32 s81, {sJ}, 7\ns_add_u32 s80, s80, s81\ns_add_u32 s81, s80, 16384')
    for blk in range(2):
        for u in range(8):
            r=8+32*blk+4*u
            A(f'buffer_load_dwordx4 v[{r}:{r+3}], v2, {RKV}, s{80+blk} offen offset:{u*256} nt')
    lds_inc(F_KL, 'v7')
    g.stampw(0,22); g.stampw(11,23)
    if o.stamps:
        A(f's_cmp_lg_u32 {sWAVE}, 15\ns_cbranch_scc1 L_NS26\ns_waitcnt vmcnt(0)')
        g.stamp(26)
        A('L_NS26:')
    A('s_mov_b32 s88, 0x05040100\ns_mov_b32 s89, 0x07060302')
    A(f'v_bfe_u32 v7, v1, 3, 1\nv_lshlrev_b32 v6, 10, v7\nv_and_b32 v7, 7, v1\nv_lshl_add_u32 v6, v7, 5, v6\nv_lshrrev_b32 v7, 5, v1\nv_lshl_add_u32 v6, v7, 2, v6')
    A(f's_lshl_b32 s84, {sWAVE}, 11\ns_add_u32 s84, s84, {L_OP}\nv_add_u32 v6, s84, v6')
    A(f'v_lshrrev_b32 v7, 4, v1\nv_lshlrev_b32 v4, 7, v7\nv_and_b32 v7, 7, v1\nv_lshl_add_u32 v4, v7, 4, v4\ns_lshl_b32 s84, {sPAIR}, 14\ns_lshl_b32 s85, {sWAVE}, 10\ns_add_u32 s84, s84, s85')
    get_mode('v7')
    PL=[f'buffer_load_dwordx4 v[72:75], v4, {RWL}, s84 offen sc1', f'buffer_load_dwordx4 v[80:83], v4, {RWL}, s84 offen offset:512 sc1']
    PR=[72,73,74,75,80,81,82,83]
    TB=[88,8]
    def perms(blk):
        B=8+32*blk
        for w in range(4):
            t=TB[blk]+8*w
            for a in range(4): A(f'v_perm_b32 v{t+a}, v{B+4*(2*a+1)+w}, v{B+4*(2*a)+w}, s88')
            for a in range(4): A(f'v_perm_b32 v{t+4+a}, v{B+4*(2*a+1)+w}, v{B+4*(2*a)+w}, s89')
    A(f'ds_read_b32 v7, v3 offset:{F_KL}\ns_waitcnt lgkmcnt(0)\nv_readfirstlane_b32 s85, v7\ns_cmp_lt_u32 s85, {o.pgate}\ns_cbranch_scc1 L_PE')
    for l in PL: A(l)
    A('s_waitcnt vmcnt(10)')
    perms(0)
    A('s_waitcnt vmcnt(2)')
    perms(1)
    A('s_waitcnt vmcnt(0)')
    g.chk(PR, 'v7')
    A('s_cbranch_vccz L_PD\ns_branch L_PP')
    A('L_PE:\ns_waitcnt vmcnt(8)')
    perms(0)
    A('s_waitcnt vmcnt(0)')
    perms(1)
    g.lds_spin('v3', F_KL, o.pgate, 'v7', sleep=2)
    A('L_PP:')
    g.poll(PL, PR, 'v7', sleep=o.psleep)
    A('L_PD:')
    g.stampw(0,8); g.stampw(11,9)
    A(HI8)
    for blk in range(2):
        for r in range(4): A(f'v_cndmask_b32 v{76+8*blk+r}, 0, v{72+8*blk+r}, vcc')
    A('s_not_b64 vcc, vcc')
    for blk in range(2):
        for r in range(4): A(f'v_cndmask_b32 v{72+8*blk+r}, 0, v{72+8*blk+r}, vcc')
    Dd=40
    for blk in range(2):
        for q in range(2):
            for w in range(4):
                t=TB[blk]+8*w+4*q; d=Dd+4*w
                c0='0' if (blk==0 and q==0) else f'v[{d}:{d+3}]'
                A(f'v_mfma_f32_16x16x32_bf16 v[{d}:{d+3}], v[{72+8*blk+4*q}:{75+8*blk+4*q}], v[{t}:{t+3}], {c0}')
    A('s_mov_b32 exec_lo, 0xff0000ff\ns_mov_b32 exec_hi, 0xff0000ff')
    for wp in range(2):
        for h in range(4): A(f'ds_write2_b32 v6, v{Dd+8*wp+h}, v{Dd+8*wp+4+h} offset0:{64*h+4*wp} offset1:{64*h+4*wp+2}')
    A('s_mov_b64 exec, -1')
    A(f'v_lshrrev_b32 v5, 3, v1\nv_lshlrev_b32 v4, 12, v5\nv_and_b32 v5, 7, v1\nv_lshl_add_u32 v4, v5, 4, v4\ns_lshl_b32 s85, {sW8}, 7\ns_add_u32 s84, s85, {L_OP}\nv_add_u32 v4, s84, v4')
    A(f'v_lshlrev_b32 v5, 3, v1\ns_lshl_b32 s84, {sPAIR}, 10\ns_lshr_b32 s85, s85, 1\ns_add_u32 s84, s84, s85\ns_lshl_b32 s85, {sJ}, 9\ns_add_u32 s84, s84, s85\ns_add_u32 s84, s84, {OO}')
    A('s_waitcnt lgkmcnt(0)\ns_barrier')
    A(f's_cmp_lt_u32 {sWAVE}, 8\ns_cbranch_scc1 L_VT')
    for k in range(4): A(f'ds_read_b128 v[{8+4*k}:{11+4*k}], v4 offset:{k*1024}')
    A('s_waitcnt lgkmcnt(0)')
    for r in range(4): A(f'v_add_f32 v{8+r}, v{8+r}, v{12+r}\nv_add_f32 v{16+r}, v{16+r}, v{20+r}')
    for r in range(4): A(f'v_add_f32 v{8+r}, v{8+r}, v{16+r}')
    for r in range(4): A(f'v_add_f32_dpp v{8+r}, v{8+r}, v{8+r} row_ror:8 row_mask:0xf bank_mask:0xf')
    g.red_rows('v_add_f32', [8,9,10,11], [12,13,14,15])
    A('v_cvt_pk_bf16_f32 v12, v8, v9\nv_cvt_pk_bf16_f32 v13, v10, v11')
    g.nosent([12,13])
    A('s_mov_b64 exec, 0xff')
    g.pub(f'buffer_store_dwordx2 v[12:13], v5, {RWL}, s84 offen', True)
    A('s_mov_b64 exec, -1')
    g.stampw(8,10)
    if o.stamps:
        A(f's_cmp_lg_u32 {sJ}, 1\ns_cbranch_scc1 L_END\ns_cmp_eq_u32 {sWAVE}, 8\ns_cbranch_scc1 L_DUMP')
    A('s_branch L_END')
    A('L_VT:')
    A(f's_cmp_lg_u32 {sJ}, 0\ns_cbranch_scc1 L_END\ns_cmp_ge_u32 {sWAVE}, 3\ns_cbranch_scc1 L_END')
    A(f'ds_read_b32 v13, v3 offset:{F_E}')
    A(f's_cmp_eq_u32 {sWAVE}, 2\ns_cbranch_scc1 L_FIN')
    A(f'v_lshlrev_b32 v4, 4, v1\ns_lshl_b32 s80, {sWAVE}, 10\nv_add_u32 v4, s80, v4')
    A(f'v_bfe_u32 v6, v1, 2, 3\nv_lshrrev_b32 v7, 5, v1\nv_lshlrev_b32 v7, 5, v7\nv_and_b32 v8, 3, v1\nv_lshl_add_u32 v7, v8, 3, v7\ns_lshl_b32 s81, {sWAVE}, 6\nv_add_u32 v7, s81, v7')
    A(f'v_lshl_add_u32 v5, v6, 10, v7\ns_lshl_b32 s81, {sB}, 7\nv_lshl_add_u32 v9, v6, 12, v7\ns_add_u32 s80, s81, {MT}')
    A(f'buffer_load_dwordx2 v[56:57], v5, {RX}, s81 offen')
    A(f's_add_u32 s81, s80, {MT2-MT}\ns_waitcnt lgkmcnt(0)')
    xpoll([f'buffer_load_dwordx2 v[60:61], v9, {RWS}, s80 offen sc1', f'buffer_load_dwordx2 v[62:63], v9, {RWS}, s81 offen sc1'], 60, 62, 2, 'v13', 'v12')
    g.unpack(60,48,49); g.unpack(61,50,51)
    g.unpack(56,52,53); g.unpack(57,54,55)
    A(f'v_lshl_add_u32 v5, v6, 7, v7\ns_lshl_b32 s82, {sPAIR}, 10\ns_add_u32 s82, s82, {X1}')
    A(f'v_lshlrev_b32 v8, 1, v5\nv_add_u32 v8, {L_X1S}, v8')
    A(f's_lshl_b32 s80, {sB}, 14\ns_add_u32 s80, s80, {WP}')
    for k in range(4): A(f's_add_u32 s{88+k}, s80, {k*4096}')
    g.poll([f'buffer_load_dwordx4 v[{16+4*k}:{19+4*k}], v4, {RWS}, s{88+(k>>1)} offen offset:{(k&1)*2048} sc1' for k in range(8)], range(16,48), 'v12')
    for r in range(4):
        A(f'v_add_f32 v{16+r}, v{16+r}, v{20+r}\nv_add_f32 v{24+r}, v{24+r}, v{28+r}\nv_add_f32 v{32+r}, v{32+r}, v{36+r}\nv_add_f32 v{40+r}, v{40+r}, v{44+r}')
        A(f'v_add_f32 v{16+r}, v{16+r}, v{24+r}\nv_add_f32 v{32+r}, v{32+r}, v{40+r}\nv_add_f32 v{16+r}, v{16+r}, v{32+r}')
    g.rnd2(16,17,12); g.rnd2(18,19,13)
    for r in range(4): A(f'v_mul_f32 v{16+r}, v{16+r}, v{48+r}')
    g.rnd2(16,17,12); g.rnd2(18,19,13)
    for r in range(4): A(f'v_add_f32 v{16+r}, v{16+r}, v{52+r}')
    g.rnd2(16,17,12); g.rnd2(18,19,13)
    g.nosent([12,13])
    g.pub(f'buffer_store_dwordx2 v[12:13], v5, {RWL}, s82 offen', True)
    A('ds_write_b128 v8, v[16:19]')
    g.stampw(0,12)
    A('s_waitcnt lgkmcnt(0)\ns_barrier')
    A('s_branch L_END')
    A('L_FIN:')
    A(f'v_lshrrev_b32 v5, 4, v1\nv_lshlrev_b32 v4, 9, v5\nv_and_b32 v5, 15, v1\nv_lshl_add_u32 v4, v5, 2, v4\ns_lshl_b32 s80, {sG}, 6\nv_add_u32 v4, s80, v4')
    A(f's_lshl_b32 s80, {sG}, 12\ns_lshl_b32 s81, {sB}, 7\ns_add_u32 s80, s80, s81\ns_add_u32 s80, s80, {MT+3072}\nv_lshrrev_b32 v5, 1, v1\nv_lshlrev_b32 v5, 2, v5')
    A(f's_add_u32 s81, s80, {MT2-MT}\ns_waitcnt lgkmcnt(0)')
    xpoll([f'buffer_load_dword v50, v5, {RWS}, s80 offen sc1', f'buffer_load_dword v51, v5, {RWS}, s81 offen sc1'], 50, 51, 1, 'v13', 'v12', sleep=4)
    g.unpack(50,48,49)
    A('s_mov_b32 vcc_lo, 0xaaaaaaaa\ns_mov_b32 vcc_hi, 0xaaaaaaaa\nv_cndmask_b32 v48, v48, v49, vcc')
    A(f's_lshl_b32 s80, {sB}, 14\ns_add_u32 s80, s80, {DP}')
    for k in range(4): A(f's_add_u32 s{88+k}, s80, {k*4096}')
    A(f's_lshl_b32 s81, {sG}, 8\ns_add_u32 s81, s81, {L_X1S}\nv_lshlrev_b32 v6, 2, v1\nv_add_u32 v6, s81, v6')
    A(f'v_lshlrev_b32 v7, 1, v1\ns_lshl_b32 s82, {sG}, 10\ns_lshl_b32 s83, {sB}, 7\ns_add_u32 s82, s82, s83')
    A('s_barrier')
    A('ds_read_b32 v50, v6')
    g.poll([f'buffer_load_dword v{16+k}, v4, {RWS}, s{88+(k>>1)} offen offset:{(k&1)*2048} sc1' for k in range(7)], range(16,23), 'v12')
    A('v_add_f32 v16, v16, v17\nv_add_f32 v18, v18, v19\nv_add_f32 v20, v20, v21\nv_add_f32 v16, v16, v18\nv_add_f32 v20, v20, v22\nv_add_f32 v16, v16, v20')
    g.rnd2(16,17,12)
    A('v_mul_f32 v16, v16, v48')
    g.rnd2(16,17,12)
    A('s_waitcnt lgkmcnt(0)\nv_add_f32 v16, v16, v50\nv_cvt_pk_bf16_f32 v12, v16, v16')
    A(f'buffer_store_short v12, v7, {ROUT}, s82 offen')
    g.stamp(15)
    A('s_branch L_DUMP')

    A('L_KPATH:')
    A(f'v_lshlrev_b32 v4, 4, v1\ns_and_b32 s86, {sJ}, 1\ns_lshl_b32 s80, s86, 18\ns_lshl_b32 s81, {sWAVE}, 14\ns_add_u32 s80, s80, s81')
    if o.thr:
        A(f's_cmp_lt_u32 {sWAVE}, {o.thrw}\ns_cbranch_scc1 L_KGO')
        g.lds_spin('v3', F_GO, o.thrw, 'v5', sleep=1)
        A('L_KGO:')
    for T in range(4):
        if T: A('s_add_u32 s80, s80, 4096')
        if o.thr and 1<=T<=o.thr:
            l=g.lab('KT')
            A(f's_cmp_ge_u32 {sWAVE}, {o.thrw}\ns_cbranch_scc1 {l}\ns_waitcnt vmcnt(0)')
            if T==o.thr: lds_inc(F_GO, 'v5')
            A(f'{l}:')
        for m in range(4):
            r=16+16*T+4*m
            A(f'buffer_load_dwordx4 v[{r}:{r+3}], v4, {RKV}, s80 offen offset:{m*1024} nt')
    g.stampw(11,20)
    A(f's_mul_i32 s81, {sWAVE}, {KS_SZ}\ns_add_u32 s81, s81, {L_KS}')
    A('v_lshrrev_b32 v6, 4, v1\nv_and_b32 v7, 15, v1\nv_mul_u32_u24 v4, 272, v6\nv_lshl_add_u32 v4, v7, 4, v4\nv_add_u32 v4, s81, v4')
    A('v_mul_u32_u24 v5, 272, v7\nv_lshl_add_u32 v5, v6, 4, v5\nv_add_u32 v5, s81, v5')
    for T in range(4):
        A(f's_waitcnt vmcnt({12-4*T})')
        for m in range(4): A(f'ds_write_b128 v4, v[{16+16*T+4*m}:{19+16*T+4*m}] offset:{m*1088}')
        A('s_waitcnt lgkmcnt(0)')
        for m in range(4): A(f'ds_read_b128 v[{16+16*T+4*m}:{19+16*T+4*m}], v5 offset:{m*64}')
        A('s_waitcnt lgkmcnt(0)')
    lds_inc(F_KL, 'v7')
    g.stampw(15,18); g.stampw(3,21)
    A('s_setprio 2')
    A(f's_cmp_ge_u32 {sWAVE}, 2\ns_cbranch_scc1 L_QPX')
    get_E('v12')
    A(f's_cmp_eq_u32 {sWAVE}, 0\ns_cbranch_scc1 L_QP0\ns_mov_b32 s79, 1\ns_branch L_FLAGS\nL_KFLB:\ns_branch L_QPX\nL_QP0:')
    A(f's_lshl_b32 s80, {sG}, 13\ns_lshl_b32 s81, {sB}, 7\ns_add_u32 s80, s80, s81\ns_add_u32 s80, s80, {QF}\ns_add_u32 s81, s80, {QF2-QF}')
    A(f'v_lshrrev_b32 v6, 3, v1\nv_lshlrev_b32 v5, 10, v6\nv_and_b32 v7, 7, v1\nv_lshl_add_u32 v5, v7, 4, v5')
    A(f'v_lshrrev_b32 v6, 4, v1\nv_mul_u32_u24 v13, 272, v6\nv_and_b32 v7, 15, v1\nv_lshl_add_u32 v13, v7, 4, v13\nv_add_u32 v13, {L_Q}, v13')
    if o.qdelay: g.lds_spin('v3', F_KL, o.qdelay, 'v7', sleep=2)
    xpoll([f'buffer_load_dwordx4 v[96:99], v5, {RWS}, s80 offen sc1', f'buffer_load_dwordx4 v[100:103], v5, {RWS}, s81 offen sc1'], 96, 100, 4, 'v12', 'v7', sleep=o.qsleep)
    A('ds_write_b128 v13, v[96:99]\ns_waitcnt lgkmcnt(0)')
    g.lds_set('v3', F_QREADY, 1, 'v7')
    g.stamp(6)
    A('L_QPX:')
    A(f'v_and_b32 v6, 3, v1\nv_mul_u32_u24 v6, 272, v6\nv_lshrrev_b32 v7, 4, v1\nv_lshl_add_u32 v6, v7, 4, v6\nv_add_u32 v6, {L_Q}, v6')
    A('v_bfe_u32 v5, v1, 2, 2\nv_lshlrev_b32 v4, 7, v5\nv_lshrrev_b32 v5, 5, v1\nv_lshl_add_u32 v4, v5, 6, v4\nv_and_b32 v5, 3, v1\nv_lshl_add_u32 v4, v5, 4, v4\nv_bfe_u32 v5, v1, 4, 1\nv_lshl_add_u32 v4, v5, 3, v4')
    A(f's_and_b32 s86, {sJ}, 1\ns_lshl_b32 s81, {sPAIR}, 14\ns_lshl_b32 s82, s86, 13\ns_add_u32 s81, s81, s82\ns_lshl_b32 s82, {sWAVE}, 9\ns_add_u32 s81, s81, s82')
    A(f'v_and_b32 v5, 3, v1\nv_lshlrev_b32 v5, 3, v5\ns_lshl_b32 s82, {sPAIR}, 10\ns_add_u32 s82, s82, {ST}\ns_lshl_b32 s84, s86, 9\ns_add_u32 s83, s82, s84\ns_xor_b32 s84, s84, 512\ns_add_u32 s82, s82, s84')
    A(f'v_lshlrev_b32 v14, 3, v1\nv_add_u32 v14, {L_X1S}, v14\ns_lshl_b32 s84, {sWAVE}, 5\nv_add_u32 v13, s84, v14\nv_add_u32 v15, {L_X1S+512}, v5')
    get_mode('v7')
    g.lds_spin('v3', F_QREADY, 1, 'v7', sleep=0)
    for m in range(4): A(f'ds_read_b128 v[{96+4*m}:{99+4*m}], v6 offset:{m*64}')
    for m in range(4):
        A(f's_waitcnt lgkmcnt({3-m})')
        for T in range(4):
            r=16+16*T+4*m; d=80+4*T
            c='0' if m==0 else f'v[{d}:{d+3}]'
            A(f'v_mfma_f32_16x16x32_bf16 v[{d}:{d+3}], v[{r}:{r+3}], v[{96+4*m}:{99+4*m}], {c}')
    for T in range(1,4):
        mk = 0x000f000f << (4*T)
        A(f's_mov_b32 vcc_lo, 0x{mk:x}\ns_mov_b32 vcc_hi, 0x{mk:x}')
        for r in range(4): A(f'v_cndmask_b32 v{80+r}, v{80+r}, v{80+4*T+r}, vcc')
    g.rnd2(80,81,8); g.rnd2(82,83,9)
    for r in range(4): A(f'v_mul_f32 v{80+r}, 0x{SCALE:x}, v{80+r}')
    g.rnd2(80,81,8); g.rnd2(82,83,9)
    A('v_max3_f32 v10, v80, v81, v82\nv_max_f32 v10, v10, v83')
    A('v_max_f32_dpp v10, v10, v10 row_ror:4 row_mask:0xf bank_mask:0xf\nv_max_f32_dpp v10, v10, v10 row_ror:8 row_mask:0xf bank_mask:0xf')
    g.red_rows('v_max_f32', [10], [12])
    for r in range(4): A(f'v_sub_f32 v{84+r}, v{80+r}, v10')
    for r in range(4): A(f'v_mul_f32 v{84+r}, 0x{LOG2E:x}, v{84+r}')
    for r in range(4): A(f'v_exp_f32 v{84+r}, v{84+r}')
    A('v_add_f32 v11, v84, v85\nv_add_f32 v12, v86, v87\nv_add_f32 v11, v11, v12')
    A('v_add_f32_dpp v11, v11, v11 row_ror:4 row_mask:0xf bank_mask:0xf\nv_add_f32_dpp v11, v11, v11 row_ror:8 row_mask:0xf bank_mask:0xf')
    g.red_rows('v_add_f32', [11], [12])
    A('s_mov_b64 exec, 15\nds_write_b64 v13, v[10:11]\ns_mov_b64 exec, -1\ns_waitcnt lgkmcnt(0)\ns_barrier')
    A('ds_read_b64 v[24:25], v14\ns_waitcnt lgkmcnt(0)')
    A('v_max_f32_dpp v10, v24, v24 row_ror:4 row_mask:0xf bank_mask:0xf\nv_max_f32_dpp v10, v10, v10 row_ror:8 row_mask:0xf bank_mask:0xf')
    g.red_rows('v_max_f32', [10], [12])
    A(f'v_sub_f32 v24, v24, v10\nv_mul_f32 v24, 0x{LOG2E:x}, v24\nv_exp_f32 v24, v24\nv_mul_f32 v11, v24, v25')
    A('v_add_f32_dpp v11, v11, v11 row_ror:4 row_mask:0xf bank_mask:0xf\nv_add_f32_dpp v11, v11, v11 row_ror:8 row_mask:0xf bank_mask:0xf')
    g.red_rows('v_add_f32', [11], [12])
    g.nosent([10,11])
    g.stampw(15,19)
    A(f's_cmp_lg_u32 {sWAVE}, 0\ns_cbranch_scc1 L_STW')
    A('s_mov_b64 exec, 15')
    g.pub(f'buffer_store_dwordx2 v[10:11], v5, {RWL}, s83 offen', True)
    A('s_mov_b64 exec, -1')
    g.poll([f'buffer_load_dwordx2 v[26:27], v5, {RWL}, s82 offen sc1'], [26,27], 'v12', sleep=o.stsleep)
    A(f'ds_write_b64 v15, v[26:27]\ns_waitcnt lgkmcnt(0)')
    A('L_STW:\ns_barrier')
    A('ds_read_b64 v[26:27], v15\ns_waitcnt lgkmcnt(0)')
    A('v_max_f32 v28, v10, v26')
    A(f'v_sub_f32 v24, v10, v28\nv_sub_f32 v26, v26, v28\nv_mul_f32 v24, 0x{LOG2E:x}, v24\nv_mul_f32 v26, 0x{LOG2E:x}, v26\nv_exp_f32 v24, v24\nv_exp_f32 v26, v26')
    for r in range(4): A(f'v_sub_f32 v{80+r}, v{80+r}, v28')
    A('v_mul_f32 v11, v24, v11\nv_mul_f32 v27, v26, v27\nv_add_f32 v11, v11, v27')
    for r in range(4): A(f'v_mul_f32 v{80+r}, 0x{LOG2E:x}, v{80+r}')
    for r in range(4): A(f'v_exp_f32 v{80+r}, v{80+r}')
    A('v_rcp_f32 v12, v11\nv_fma_f32 v13, -v11, v12, 1.0\nv_fmac_f32 v12, v13, v12')
    for r in range(4): A(f'v_mul_f32 v{80+r}, v{80+r}, v12')
    A('v_cvt_pk_bf16_f32 v8, v80, v81\nv_cvt_pk_bf16_f32 v9, v82, v83')
    g.nosent([8,9])
    g.pub(f'buffer_store_dwordx2 v[8:9], v4, {RWL}, s81 offen', True)
    g.stampw(15,7)
    A(f's_cmp_eq_u32 {sJ}, 3\ns_cbranch_scc1 L_KW3')
    g.dma_voff('v12','v13',1024,'v14')
    A(f's_lshl_b32 s82, {sG}, 19\ns_lshl_b32 s83, {sWAVE}, 15\ns_add_u32 s82, s82, s83\ns_lshl_b32 s84, {sB}, 7\ns_add_u32 s82, s82, s84\ns_lshl_b32 s83, {sWAVE}, 12')
    blk_dma(RW1, 4, 's82', 1024, 's83', 'v12', 'v13')
    if not o.dnlate:
        A(f's_cmp_eq_u32 {sG}, 7\ns_cbranch_scc1 L_KWD0')
        A(f's_lshl_b32 s82, {sG}, 18\ns_lshl_b32 s83, {sWAVE}, 14\ns_add_u32 s82, s82, s83\ns_add_u32 s82, s82, s84\ns_lshl_b32 s83, {sWAVE}, 11\ns_add_u32 s83, s83, {L_W2}')
        blk_dma(RWD, 2, 's82', 1024, 's83', 'v12', 'v13')
        A('s_waitcnt vmcnt(2)\ns_branch L_KWD1\nL_KWD0:\ns_waitcnt vmcnt(0)\nL_KWD1:\ns_barrier')
    else:
        A('s_waitcnt vmcnt(0)\ns_barrier')
    A(f's_and_b32 s82, s2, 63\ns_and_b32 s84, {sWAVE}, 3')
    A(f's_cmp_ge_u32 {sWAVE}, 12\ns_cbranch_scc1 L_WO\ns_cmp_ge_u32 {sWAVE}, 8\ns_cbranch_scc1 L_DN')
    A(f'v_lshlrev_b32 v4, 4, v1\ns_lshl_b32 s80, {sG}, 13\ns_lshl_b32 s81, {sWAVE}, 10\ns_add_u32 s80, s80, s81\ns_add_u32 s85, s80, {GU}\ns_add_u32 s80, s80, {OO}')
    A(f's_mul_i32 s81, {sWAVE}, 1056\ns_add_u32 s81, s81, {L_ACT}\nv_add_u32 v5, s81, v4')
    A(f'v_bfe_u32 v7, v1, 1, 3\nv_mul_u32_u24 v6, 544, v7\nv_lshrrev_b32 v7, 4, v1\nv_lshl_add_u32 v6, v7, 5, v6\nv_and_b32 v7, 1, v1\nv_lshl_add_u32 v6, v7, 4, v6\ns_lshl_b32 s82, {sWAVE}, 7\ns_add_u32 s82, s82, {L_ACT2}\nv_add_u32 v6, s82, v6\ns_add_u32 s86, s85, 4096')
    g.poll([f'buffer_load_dwordx4 v[16:19], v4, {RWL}, s80 offen sc1'], range(16,20), 'v12', sleep=o.osleep)
    A('ds_write_b128 v5, v[16:19]\ns_waitcnt lgkmcnt(0)\ns_barrier')
    A(f's_cmp_ge_u32 {sWAVE}, 4\ns_cbranch_scc1 L_END\ns_cmp_eq_u32 {sG}, 7\ns_cbranch_scc1 L_END')
    g.poll([f'buffer_load_dwordx4 v[16:19], v4, {RWL}, s85 offen sc1', f'buffer_load_dwordx4 v[20:23], v4, {RWL}, s86 offen sc1'], range(16,24), 'v12')
    for i in range(8): g.unpack(16+i, 32+2*i, 33+2*i)
    for i in range(8): A(f'v_mul_f32 v{32+i}, v{32+i}, v{40+i}')
    for i in range(4): A(f'v_cvt_pk_bf16_f32 v{16+i}, v{32+2*i}, v{33+2*i}')
    A('ds_write_b128 v6, v[16:19]\ns_waitcnt lgkmcnt(0)\ns_barrier')
    A('s_branch L_END')
    A('L_WO:')
    g.tr_addr('v5', 's84', L_W, 'v6', 'v7')
    g.tr_frags('v5', 16, [4*((mp>>1)&3)+2*(mp>>3)+(mp&1) for mp in range(16)])
    g.act_addr('v6', L_ACT, 1056, 'v7')
    A(f's_lshl_b32 s83, s82, 11\ns_lshl_b32 s85, s84, 9\ns_add_u32 s83, s83, s85\ns_add_u32 s83, s83, {WP}')
    g.part_store_addr('v4', 's83', 'v7')
    A('s_waitcnt vmcnt(0) lgkmcnt(0)\ns_barrier')
    gemv16(16, 'v6', 8, [80,96])
    g.nosent(range(8,12))
    A(HALF)
    A(f'buffer_store_dwordx4 v[8:11], v4, {RWS}, 0 offen sc1')
    A('s_mov_b64 exec, -1')
    g.stampw(12,11)
    if o.stamps:
        A(f's_cmp_lg_u32 {sG}, 7\ns_cbranch_scc1 L_END\ns_cmp_eq_u32 {sWAVE}, 12\ns_cbranch_scc1 L_DUMP')
    A('s_branch L_END')
    A('L_DN:')
    g.tr_addr('v5', 's84', L_W2, 'v6', 'v7')
    g.act_addr('v6', L_ACT2, 544, 'v7')
    A(f's_lshl_b32 s83, s82, 11\ns_lshl_b32 s85, s84, 9\ns_add_u32 s83, s83, s85\ns_add_u32 s83, s83, {DP}')
    g.part_store_addr('v4', 's83', 'v7')
    A('s_waitcnt vmcnt(0)\ns_barrier')
    A(f's_cmp_eq_u32 {sG}, 7\ns_cbranch_scc1 L_END')
    if o.dnlate:
        A(f's_lshl_b32 s82, {sG}, 18\ns_lshl_b32 s83, s84, 16\ns_add_u32 s82, s82, s83\ns_lshl_b32 s83, {sB}, 7\ns_add_u32 s82, s82, s83\ns_lshl_b32 s83, s84, 13\ns_add_u32 s83, s83, {L_W2}')
        blk_dma(RWD, 8, 's82', 1024, 's83', 'v12', 'v13')
        A('s_waitcnt vmcnt(0)')
        lds_inc(F_SUB, 'v7')
        g.lds_spin('v3', F_SUB, 4, 'v7', sleep=0)
    g.tr_frags('v5', 16, range(8))
    A('s_waitcnt lgkmcnt(0)\ns_barrier')
    g.gemv_tile(16, 8, 'v6', 48, 8)
    g.nosent(range(8,12))
    A(HALF)
    A(f'buffer_store_dwordx4 v[8:11], v4, {RWS}, 0 offen sc1')
    A('s_mov_b64 exec, -1')
    g.stampw(8,14)
    if o.stamps:
        A(f's_cmp_eq_u32 {sWAVE}, 8\ns_cbranch_scc1 L_DUMP')
    A('s_branch L_END')
    A('L_KW3:')
    if o.stamps:
        A(f's_cmp_lg_u32 {sG}, 7\ns_cbranch_scc1 L_KW3a\ns_cmp_eq_u32 {sWAVE}, 15\ns_cbranch_scc1 L_DUMP\ns_branch L_END\nL_KW3a:')
    else:
        A(f's_cmp_eq_u32 {sG}, 7\ns_cbranch_scc1 L_END')
    g.dma_voff('v12','v13',3584,'v14')
    A(f's_mul_i32 s82, {sWAVE}, {32*3584}\ns_lshl_b32 s83, {sG}, 2\ns_and_b32 s84, {sB}, 3\ns_add_u32 s83, s83, s84\ns_lshl_b32 s83, s83, 7\ns_add_u32 s82, s82, s83\ns_lshl_b32 s83, {sWAVE}, 12')
    if o.gulate:
        A(f's_cmp_lg_u32 {sWAVE}, 0\ns_cbranch_scc1 L_GUW\ns_lshl_b32 s80, {sPAIR}, 10\ns_add_u32 s80, s80, {OO}\nv_mov_b32 v5, 0')
        g.poll([f'buffer_load_dword v16, v5, {RWL}, s80 offen sc1'], [16], 'v7', sleep=4)
        A('L_GUW:\ns_barrier')
    blk_dma(RW1, 4, 's82', 3584, 's83', 'v12', 'v13')
    A('s_waitcnt vmcnt(0)\ns_barrier')
    A(f's_cmp_ge_u32 {sWAVE}, 12\ns_cbranch_scc1 L_GU\ns_cmp_ge_u32 {sWAVE}, 8\ns_cbranch_scc1 L_END')
    A(f'v_lshlrev_b32 v4, 4, v1\ns_lshl_b32 s80, {sWAVE}, 12\ns_add_u32 s80, s80, {MT}\ns_add_u32 s81, s80, {MT2-MT}')
    A(f'ds_read_b32 v13, v3 offset:{F_E}\ns_waitcnt lgkmcnt(0)')
    xpoll([f'buffer_load_dwordx4 v[48:51], v4, {RWS}, s80 offen offset:1024 sc1', f'buffer_load_dwordx4 v[52:55], v4, {RWS}, s80 offen offset:2048 sc1',
           f'buffer_load_dwordx4 v[56:59], v4, {RWS}, s81 offen offset:1024 sc1', f'buffer_load_dwordx4 v[60:63], v4, {RWS}, s81 offen offset:2048 sc1'], 48, 56, 8, 'v13', 'v12', sleep=8)
    for i in range(8): g.unpack(48+i, 32+2*i, 33+2*i)
    for i in range(8): A(f'v_add_f32 v{40+i}, 1.0, v{40+i}')
    for i in range(4): g.rnd2(40+2*i,41+2*i,13)
    A(f's_mul_i32 s81, {sWAVE}, 1056\ns_add_u32 s81, s81, {L_ACT}\nv_add_u32 v5, s81, v4')
    A(f'v_lshrrev_b32 v7, 3, v1\nv_lshlrev_b32 v4, 10, v7\nv_and_b32 v7, 7, v1\nv_lshl_add_u32 v4, v7, 4, v4')
    A(f's_lshl_b32 s80, {sG}, 13\ns_lshl_b32 s81, {sWAVE}, 7\ns_add_u32 s80, s80, s81\ns_add_u32 s80, s80, {X1}')
    g.poll([f'buffer_load_dwordx4 v[8:11], v4, {RWL}, s80 offen sc1'], range(8,12), 'v12', sleep=o.osleep)
    g.ln8(8, 16, 48)
    for i in range(8): A(f'v_mul_f32 v{16+i}, v{16+i}, v{40+i}')
    for i in range(4): g.rnd2(16+2*i,17+2*i,48+i)
    for i in range(8): A(f'v_add_f32 v{16+i}, v{16+i}, v{32+i}')
    for i in range(4): A(f'v_cvt_pk_bf16_f32 v{8+i}, v{16+2*i}, v{17+2*i}')
    A('ds_write_b128 v5, v[8:11]\ns_waitcnt lgkmcnt(0)\ns_barrier')
    A('s_branch L_END')
    A('L_GU:')
    A(f's_and_b32 s84, {sWAVE}, 3')
    g.tr_addr('v5', 's84', L_W, 'v6', 'v7')
    g.tr_frags('v5', 16, range(16))
    g.act_addr('v6', L_ACT, 1056, 'v7')
    A(f's_lshl_b32 s83, {sPAIR}, 10\ns_lshl_b32 s85, s84, 8\ns_add_u32 s83, s83, s85\ns_add_u32 s83, s83, {GU}')
    A('v_and_b32 v7, 15, v1\nv_lshlrev_b32 v4, 5, v7\nv_lshrrev_b32 v7, 4, v1\nv_lshl_add_u32 v4, v7, 3, v4')
    A('s_waitcnt lgkmcnt(0)\ns_barrier')
    gemv16(16, 'v6', 8, [80,96])
    g.rnd2(8,9,12); g.rnd2(10,11,13)
    A(f's_cmp_ge_u32 {sB}, 4\ns_cbranch_scc1 L_T2U')
    g.silu_inplace([8,9,10,11],[16,17,18,19])
    A('v_cvt_pk_bf16_f32 v12, v8, v9\nv_cvt_pk_bf16_f32 v13, v10, v11')
    A('L_T2U:')
    g.nosent([12,13])
    A(HALF)
    g.pub(f'buffer_store_dwordx2 v[12:13], v4, {RWL}, s83 offen', True)
    A('s_mov_b64 exec, -1')
    g.stampw(12,13)
    if o.stamps:
        A(f's_cmp_lg_u32 {sWAVE}, 12\ns_cbranch_scc1 L_END')
    A('L_DUMP:')
    if o.stamps:
        A(f'v_lshlrev_b32 v4, 2, v1\nv_add_u32 v5, {L_STAMP}, v4\nds_read_b32 v6, v5\nv_mov_b32 v7, 0\nv_lshlrev_b32 v4, 3, v1')
        A(f's_add_u32 s80, s58, 0x{STAMP:x}\ns_addc_u32 s81, s59, 0\ns_lshl_b32 s82, s2, 8\ns_add_u32 s80, s80, s82\ns_addc_u32 s81, s81, 0')
        A('s_waitcnt lgkmcnt(0)\ns_mov_b32 exec_hi, 0\nglobal_store_dwordx2 v4, v[6:7], s[80:81]')
    A('L_END:\ns_endpgm\nL_CODE_END:')
    return g.L

def emit(o, fname):
    body = build(o)
    body, n = fix_hazards(body)
    hdr = open('cdna_kernels/'+NAME+'.s.ref').read().split('; Override launch')[0]
    out = hdr + f'; @launch grid=(256,1,1) block=(1024,1,1) lds={LDS_SIZE}\n'
    out += f'.amdgcn_target "amdgcn-amd-amdhsa--gfx950"\n.text\n.globl {NAME}_kernel\n.p2align 8\n.type {NAME}_kernel,@function\n{NAME}_kernel:\n'
    out += '\n'.join(('' if l.endswith(':') else '    ')+l for l in body) + '\n'
    out += f'''.section .rodata,"a"
.p2align 6
.amdhsa_kernel {NAME}_kernel
  .amdhsa_next_free_vgpr 128
  .amdhsa_next_free_sgpr 102
  .amdhsa_accum_offset 128
  .amdhsa_group_segment_fixed_size 0
  .amdhsa_kernarg_size 112
  .amdhsa_user_sgpr_count 2
  .amdhsa_user_sgpr_kernarg_segment_ptr 1
  .amdhsa_system_sgpr_workgroup_id_x 1
  .amdhsa_float_denorm_mode_32 3
  .amdhsa_float_denorm_mode_16_64 3
.end_amdhsa_kernel
'''
    open(fname,'w').write(out)
    print(fname, len(body), 'lines', n, 'nops inserted')

if __name__=='__main__':
    ap=argparse.ArgumentParser()
    ap.add_argument('-o', default='k.s')
    ap.add_argument('--stamps', action='store_true')
    ap.add_argument('--local', action='store_true')
    for k,d in dict(codepf=1,mpdelay=0,mpsleep=2,fldelay=40,hdelay=8,mtearly=0,pgate=12,psleep=4,thr=0,thrw=4,qdelay=8,qsleep=2,stsleep=0,osleep=0,gulate=1,dnlate=1).items():
        ap.add_argument('--'+k, type=int, default=d)
    ap.add_argument('--dearly', type=lambda x:[int(t) for t in x.split(',') if t], default=[4,5,6,7])
    ap.add_argument('--cearly', type=lambda x:[int(t) for t in x.split(',') if t], default=[])
    ap.add_argument('--cpre', type=lambda x:[int(t) for t in x.split(',') if t], default=[])
    o=ap.parse_args()
    emit(o, o.o)
```

```python
import sys, argparse
from asmlib import fix_hazards
NAME='adaLN_cond__sliding_block_cached__swiglu_ffn__decode'

PP=0x000000; OO=0x100000; ST=0x110000; X1=0x120000; GU=0x130000; LREG=0x140000; GOFF=0x180000
QF=0x300000; QF2=0x310000; HH=0x320000; HH2=0x322000; MT=0x400000; MT2=0x420000; WP=0x440000; DP=0x460000
MP=0x480000; MP2=0x4A0000; FL=0x4C0000; FLB=0x4C8000; WS_USED=0x4D0000
STAMP=0x10000000
L_W=0x0; L_W2=0x10000; L_WM=0x10000; L_KS=0x0; KS_SZ=4352
L_OP=0x18000
L_Y=0x14000; L_H=0x18000
L_ACT=0x20000; L_ACT2=0x18000; L_Q=0x22200; L_FLAGS=0x22800; L_X1S=0x22900; L_STAMP=0x23100; LDS_SIZE=0x23400
F_QREADY=4; F_MODE=8; F_E=12; F_SUB=16; F_Y=20; F_C1=24; F_C3=28; F_CLR=32; F_MOK=36; F_R=40; F_GO=44; F_VGO=48; F_KL=52
sWAVE,sG,sB,sJ,sMODE = 's3','s4','s5','s6','s7'
RK,RV,RWS,RW1,RWM,RC,RX,ROUT,RDBG = 's[8:11]','s[12:15]','s[16:19]','s[20:23]','s[24:27]','s[28:31]','s[60:63]','s[64:67]','s[68:71]'
RWL='s[92:95]'
sTO='s72'
sPAIR='s73'
sW8='s74'
LOG2E=0x3fb8aa3b
SCALE=0x3db504f3

class G:
    def __init__(self, opt):
        self.L=[]; self.o=opt; self.nl=0; self.nstamp=0
    def __call__(self, s):
        for l in s.split('\n'):
            l=l.strip()
            if l: self.L.append(l)
    def lab(self, p='L'):
        self.nl+=1; return f'{p}_{self.nl}'
    def stamp(self, slot, va='v126', vb='v127'):
        if not self.o.stamps: return
        self(f's_memrealtime s[98:99]\ns_waitcnt lgkmcnt(0)\nv_mov_b32 {va}, {L_STAMP+4*slot}\nv_mov_b32 {vb}, s98\nds_write_b32 {va}, {vb}\ns_waitcnt lgkmcnt(0)')
    def stampw(self, wave, slot):
        if not self.o.stamps: return
        l=self.lab('NSW')
        self(f's_cmp_lg_u32 {sWAVE}, {wave}\ns_cbranch_scc1 {l}')
        self.stamp(slot)
        self(f'{l}:')
    def timeout(self, done):
        self(f's_cmp_eq_u32 {sTO}, 0\ns_cbranch_scc1 {done}\ns_sub_u32 {sTO}, {sTO}, 1')
    def lds_spin(self, vflag, off, target, vt, st='s76', sleep=1):
        a=self.lab('SPIN'); d=self.lab('SPD')
        self(f'{a}:\nds_read_b32 {vt}, {vflag} offset:{off}\ns_waitcnt lgkmcnt(0)\nv_readfirstlane_b32 {st}, {vt}\ns_cmp_ge_u32 {st}, {target}\ns_cbranch_scc1 {d}')
        self.timeout(d)
        if sleep: self(f's_sleep {sleep}')
        self(f's_branch {a}\n{d}:')
    def lds_set(self, vflag, off, val, vt):
        self(f'v_mov_b32 {vt}, {val}\nds_write_b32 {vflag}, {vt} offset:{off}')
    def poll(self, loads, regs, vt, sleep=0):
        a=self.lab('POLL'); d=self.lab('PLD')
        self(f'{a}:')
        for l in loads: self(l)
        self('s_waitcnt vmcnt(0)')
        self.chk(regs, vt)
        self(f's_cbranch_vccz {d}')
        self.timeout(d)
        if sleep: self(f's_sleep {sleep}')
        self(f's_branch {a}\n{d}:')
    def chk(self, regs, vt):
        r=list(regs)
        if len(r)==1:
            self(f'v_cmp_eq_u32 vcc, -1, v{r[0]}'); return
        if len(r)==2:
            self(f'v_max_u32 {vt}, v{r[0]}, v{r[1]}')
        else:
            self(f'v_max3_u32 {vt}, v{r[0]}, v{r[1]}, v{r[2]}')
            r=r[3:]
            while len(r)>=2:
                self(f'v_max3_u32 {vt}, {vt}, v{r[0]}, v{r[1]}'); r=r[2:]
            if r: self(f'v_max_u32 {vt}, {vt}, v{r[0]}')
        self(f'v_cmp_eq_u32 vcc, -1, {vt}')
    def nosent(self, regs):
        for r in regs: self(f'v_min_u32 v{r}, -2, v{r}')
    def pub(self, instr, local_ok=False):
        if local_ok:
            a=self.lab('PUBL'); d=self.lab('PUBD')
            self(f's_cmp_eq_u32 {sMODE}, 1\ns_cbranch_scc1 {a}\n{instr} sc1\ns_branch {d}\n{a}:\n{instr}\n{d}:')
        else:
            self(instr+' sc1')
    def unpack(self, src, dlo, dhi):
        self(f'v_lshlrev_b32 v{dlo}, 16, v{src}\nv_and_b32 v{dhi}, 0xffff0000, v{src}')
    def rnd2(self, a, b, t):
        self(f'v_cvt_pk_bf16_f32 v{t}, v{a}, v{b}')
        self.unpack(t, a, b)
    def wave_red(self, op, regs, tmps):
        for mod in ('quad_perm:[1,0,3,2]','quad_perm:[2,3,0,1]','row_half_mirror','row_mirror'):
            for r in regs: self(f'{op}_dpp v{r}, v{r}, v{r} {mod} row_mask:0xf bank_mask:0xf')
        self.red_rows(op, regs, tmps)
    def red_rows(self, op, regs, tmps):
        for sw in ('v_permlane16_swap_b32','v_permlane32_swap_b32'):
            for r,t in zip(regs,tmps): self(f'v_mov_b32 v{t}, v{r}')
            for r,t in zip(regs,tmps): self(f'{sw} v{r}, v{t}')
            for r,t in zip(regs,tmps): self(f'{op} v{r}, v{r}, v{t}')
    def silu_inplace(self, xs, ts):
        self(f's_mov_b32 s77, 0x{(LOG2E|0x80000000):x}')
        for x,t in zip(xs,ts): self(f'v_mul_f32 v{t}, s77, v{x}')
        for x,t in zip(xs,ts): self(f'v_exp_f32 v{t}, v{t}')
        for x,t in zip(xs,ts): self(f'v_add_f32 v{t}, 1.0, v{t}')
        for x,t in zip(xs,ts): self(f'v_rcp_f32 v{t}, v{t}')
        for x,t in zip(xs,ts): self(f'v_mul_f32 v{x}, v{x}, v{t}')
    def silu8(self, src, x0, t0):
        for i in range(4): self.unpack(src+i, x0+2*i, x0+2*i+1)
        self.silu_inplace(list(range(x0,x0+8)), list(range(t0,t0+8)))
        for i in range(4): self(f'v_cvt_pk_bf16_f32 v{src+i}, v{x0+2*i}, v{x0+2*i+1}')
    def ln8(self, src, x0, t0):
        X=list(range(x0,x0+8)); T=list(range(t0,t0+8)); s1,s2,u1,u2=t0+8,t0+9,t0+10,t0+11
        for i in range(4): self.unpack(src+i, x0+2*i, x0+2*i+1)
        self(f'v_readfirstlane_b32 s77, v{x0}')
        for x,t in zip(X,T): self(f'v_subrev_f32 v{t}, s77, v{x}')
        self(f'v_add_f32 v{s1}, v{T[0]}, v{T[1]}\nv_mul_f32 v{s2}, v{T[0]}, v{T[0]}')
        self(f'v_fmac_f32 v{s2}, v{T[1]}, v{T[1]}')
        for t in T[2:]:
            self(f'v_add_f32 v{s1}, v{s1}, v{t}\nv_fmac_f32 v{s2}, v{t}, v{t}')
        self.wave_red('v_add_f32', [s1,s2], [u1,u2])
        self(f'v_mul_f32 v{s1}, 0x3b000000, v{s1}\nv_mul_f32 v{s2}, 0x3b000000, v{s2}')
        self(f'v_fma_f32 v{s2}, -v{s1}, v{s1}, v{s2}\nv_max_f32 v{s2}, 0, v{s2}\nv_add_f32 v{s1}, s77, v{s1}')
        self.rnd2(s1, s2, u1)
        self(f'v_add_f32 v{s2}, 0x3727c5ac, v{s2}')
        self(f'v_cvt_pk_bf16_f32 v{u1}, v{s2}, v{s2}\nv_lshlrev_b32 v{s2}, 16, v{u1}\nv_sqrt_f32 v{s2}, v{s2}')
        self(f'v_cvt_pk_bf16_f32 v{u1}, v{s2}, v{s2}\nv_lshlrev_b32 v{s2}, 16, v{u1}\nv_rcp_f32 v{s2}, v{s2}')
        for x in X: self(f'v_sub_f32 v{x}, v{x}, v{s1}')
        for i in range(4): self.rnd2(X[2*i], X[2*i+1], T[i])
        for x in X: self(f'v_mul_f32 v{x}, v{x}, v{s2}')
        for i in range(4): self.rnd2(X[2*i], X[2*i+1], T[i])
    def dma_voff(self, ve, vo, pitch, vt):
        self(f'v_lshrrev_b32 {vt}, 3, v1\ns_mov_b32 s77, {pitch}\nv_mul_lo_u32 {ve}, {vt}, s77')
        self(f'v_bfe_u32 {vt}, v1, 4, 1\nv_lshlrev_b32 {vt}, 1, {vt}\nv_and_b32 {vo}, 7, v1\nv_xor_b32 {vt}, {vt}, {vo}\nv_lshlrev_b32 {vt}, 4, {vt}\nv_add_u32 {ve}, {ve}, {vt}\nv_xor_b32 {vo}, 64, {ve}')
    def dma(self, srd, voff, s_src, src_imm, s_lds, lds_imm, nt=True):
        self(f's_add_u32 s78, {s_src}, {src_imm}\ns_add_u32 m0, {s_lds}, {lds_imm}')
        self(f'buffer_load_dwordx4 {voff}, {srd}, s78 offen{" nt" if nt else ""} lds')
    def tr_addr(self, vd, s_ct, base, vt, vt2):
        self(f'v_lshrrev_b32 {vt}, 4, v1\nv_lshlrev_b32 {vd}, 10, {vt}\nv_and_b32 {vt}, 1, {vt}\nv_lshlrev_b32 {vt}, 1, {vt}')
        self(f'v_bfe_u32 {vt2}, v1, 3, 1\nv_or_b32 {vt}, {vt}, {vt2}\nv_xor_b32 {vt}, {s_ct}, {vt}\nv_lshl_add_u32 {vd}, {vt}, 5, {vd}')
        self(f'v_bfe_u32 {vt}, v1, 2, 2\nv_lshl_add_u32 {vd}, {vt}, 7, {vd}\nv_and_b32 {vt}, 3, v1\nv_lshl_add_u32 {vd}, {vt}, 3, {vd}\nv_add_u32 {vd}, {base}, {vd}')
    def tr_frags(self, vaddr, r0, msteps):
        for i,m in enumerate(msteps):
            self(f'ds_read_b64_tr_b16 v[{r0+4*i}:{r0+4*i+1}], {vaddr} offset:{m*4096}\nds_read_b64_tr_b16 v[{r0+4*i+2}:{r0+4*i+3}], {vaddr} offset:{m*4096+512}')
    def act_addr(self, vd, base, pitch, vt):
        self(f'v_and_b32 {vt}, 7, v1\nv_mul_u32_u24 {vd}, {pitch}, {vt}\nv_lshrrev_b32 {vt}, 4, v1\nv_lshl_add_u32 {vd}, {vt}, 4, {vd}\nv_add_u32 {vd}, {base}, {vd}')
    def gemv_tile(self, wf0, nk, vact, a0, d0):
        for m in range(nk): self(f'ds_read_b128 v[{a0+4*m}:{a0+4*m+3}], {vact} offset:{m*64}')
        for m in range(nk):
            self(f's_waitcnt lgkmcnt({min(15,nk-1-m)})')
            c = '0' if m==0 else f'v[{d0}:{d0+3}]'
            self(f'v_mfma_f32_16x16x32_bf16 v[{d0}:{d0+3}], v[{wf0+4*m}:{wf0+4*m+3}], v[{a0+4*m}:{a0+4*m+3}], {c}')
    def part_store_addr(self, vd, s_base, vt):
        self(f'v_and_b32 {vt}, 15, v1\nv_lshlrev_b32 {vd}, 6, {vt}\nv_lshrrev_b32 {vt}, 4, v1\nv_lshl_add_u32 {vd}, {vt}, 4, {vd}\nv_add_u32 {vd}, {s_base}, {vd}')

def build(o):
    g=G(o); A=g
    HALF='s_mov_b32 exec_lo, 0x00ff00ff\ns_mov_b32 exec_hi, 0x00ff00ff'
    HI8='s_mov_b32 vcc_lo, 0xff00ff00\ns_mov_b32 vcc_hi, 0xff00ff00'
    SENT='v_mov_b32 v8, -1\nv_mov_b32 v9, -1\nv_mov_b32 v10, -1\nv_mov_b32 v11, -1\nv_lshlrev_b32 v5, 4, v1'
    def lds_inc(off, vt):
        A(f'v_mov_b32 {vt}, 1\ns_mov_b64 exec, 1\nds_add_u32 v3, {vt} offset:{off}\ns_mov_b64 exec, -1')
    def xor_chk(a0, b0, n, vE, vt):
        for i in range(n): A(f'v_xor_b32 v{b0+i}, v{b0+i}, v{a0+i}')
        A(f'v_xor_b32 {vt}, v{b0}, {vE}')
        for i in range(1,n): A(f'v_bitop3_b32 {vt}, {vt}, v{b0+i}, {vE} bitop3:0xf6')
        A(f'v_cmp_ne_u32 vcc, 0, {vt}')
    def xpoll(loads, a0, b0, n, vE, vt, sleep=0):
        a=g.lab('XP'); d=g.lab('XPD')
        A(f'{a}:')
        for l in loads: A(l)
        A('s_waitcnt vmcnt(0)')
        xor_chk(a0,b0,n,vE,vt)
        A(f's_cbranch_vccz {d}')
        g.timeout(d)
        if sleep: A(f's_sleep {sleep}')
        A(f's_branch {a}\n{d}:')
    def get_E(vd): g.lds_spin('v3', F_E, 1, vd, sleep=1)
    def pair_prep(vaddr, delta, vE, vEm, vt):
        A(HI8)
        A(f'v_mov_b32 {vt}, {delta}\nv_cndmask_b32 {vt}, 0, {vt}, vcc\nv_add_u32 {vaddr}, {vaddr}, {vt}\nv_cndmask_b32 {vEm}, 0, {vE}, vcc')
    def get_mode(vt):
        g.lds_spin('v3', F_MOK, 1, vt, sleep=1)
        A(f'ds_read_b32 {vt}, v3 offset:{F_MODE}\ns_waitcnt lgkmcnt(0)')
        A(f'v_readfirstlane_b32 {sMODE}, {vt}\ns_cmp_eq_u32 {sMODE}, 1\ns_cselect_b64 s[92:93], s[58:59], s[100:101]')
    def blk_dma(srd, n, s_src, pitch, s_lds, ve, vo):
        for i in range(n): g.dma(srd, vo if i&1 else ve, s_src, i*8*pitch, s_lds, i*1024)
    def gemv16(wf, vact, d, ab, order=None):
        def rd(gq):
            for m in range(4): A(f'ds_read_b128 v[{ab[gq&1]+4*m}:{ab[gq&1]+4*m+3}], {vact} offset:{(4*gq+m)*64}')
        rd(0); rd(1)
        for gq in range(4):
            for m in range(4):
                A(f's_waitcnt lgkmcnt({(4 if gq<3 else 0)+3-m})')
                c='0' if (gq==0 and m==0) else f'v[{d}:{d+3}]'
                A(f'v_mfma_f32_16x16x32_bf16 v[{d}:{d+3}], v[{wf+16*gq+4*m}:{wf+16*gq+4*m+3}], v[{ab[gq&1]+4*m}:{ab[gq&1]+4*m+3}], {c}')
            if gq<2: rd(gq+2)
    def clear_all_local(fl):
        A(SENT)
        A(f's_cmp_ge_u32 {sJ}, 2\ns_cbranch_scc1 L_CAK')
        A(f's_lshl_b32 s80, {sPAIR}, 10\ns_lshl_b32 s81, {sJ}, 9\ns_add_u32 s81, s81, s80\ns_add_u32 s81, s81, {OO}\ns_mov_b32 exec_hi, 0')
        A(f'buffer_store_dwordx4 v[8:11], v5, {RWL}, s81 offen{fl}\ns_mov_b64 exec, -1')
        A(f's_cmp_lg_u32 {sJ}, 0\ns_cbranch_scc1 L_CAD\ns_add_u32 s80, s80, {X1}')
        A(f'buffer_store_dwordx4 v[8:11], v5, {RWL}, s80 offen{fl}\ns_branch L_CAD')
        A('L_CAK:')
        A(f's_lshl_b32 s80, {sPAIR}, 14\ns_and_b32 s81, {sJ}, 1\ns_lshl_b32 s82, s81, 13\ns_add_u32 s80, s80, s82')
        for i in range(8):
            if i==4: A('s_add_u32 s80, s80, 4096')
            A(f'buffer_store_dwordx4 v[8:11], v5, {RWL}, s80 offen offset:{(i%4)*1024}{fl}')
        A(f's_lshl_b32 s80, {sPAIR}, 10\ns_lshl_b32 s82, s81, 9\ns_add_u32 s82, s82, s80\ns_add_u32 s82, s82, {ST}\ns_mov_b32 exec_hi, 0')
        A(f'buffer_store_dwordx4 v[8:11], v5, {RWL}, s82 offen{fl}\ns_mov_b64 exec, -1')
        A(f's_cmp_lg_u32 {sJ}, 3\ns_cbranch_scc1 L_CAD\ns_add_u32 s80, s80, {GU}')
        A(f'buffer_store_dwordx4 v[8:11], v5, {RWL}, s80 offen{fl}')
        A('L_CAD:')

    A(f"""s_cmp_ge_u32 s2, 256
s_cbranch_scc1 L_END
s_load_dwordx16 s[32:47], s[0:1], 0
s_load_dwordx8 s[48:55], s[0:1], 64
s_load_dwordx4 s[56:59], s[0:1], 96
v_and_b32 v1, 63, v0
v_lshrrev_b32 v2, 6, v0
v_readfirstlane_b32 {sWAVE}, v2
s_and_b32 {sG}, s2, 7
s_bfe_u32 {sB}, s2, 0x30003
s_lshr_b32 {sJ}, s2, 6
s_mov_b32 {sMODE}, 0
s_mov_b32 {sTO}, 0x200000
s_lshl_b32 {sPAIR}, {sG}, 3
s_add_u32 {sPAIR}, {sPAIR}, {sB}
s_and_b32 {sW8}, {sWAVE}, 7
v_mov_b32 v3, {L_FLAGS}
v_lshl_add_u32 v4, v1, 2, v3
v_mov_b32 v5, 0
s_cmp_lg_u32 {sWAVE}, 0
s_cbranch_scc1 L_NOINIT
ds_write_b32 v4, v5""")
    if o.stamps: A(f'ds_write_b32 v4, v5 offset:{L_STAMP-L_FLAGS}')
    A(f"""L_NOINIT:
s_lshl_b32 s76, {sB}, 24
s_lshl_b32 s77, {sG}, 21
s_add_u32 s76, s76, s77
s_add_u32 s76, s76, 0x180000
s_mov_b32 s10, 0x80000
s_mov_b32 s11, 0x20000
s_mov_b32 s14, 0x1c0000
s_mov_b32 s15, 0x20000
s_mov_b32 s18, {WS_USED}
s_mov_b32 s19, 0x20000
s_mov_b32 s26, 0x300000
s_mov_b32 s27, 0x20000
s_mov_b32 s30, 0x2000
s_mov_b32 s31, 0x20000
s_mov_b32 s62, 0x2000
s_mov_b32 s63, 0x20000
s_mov_b32 s66, 0x2000
s_mov_b32 s67, 0x20000
s_mov_b32 s70, 0x100
s_mov_b32 s71, 0x20000
s_mov_b32 s22, 0x400000
s_mov_b32 s23, 0x20000
s_mov_b32 s94, {LREG}
s_mov_b32 s95, 0x20000
s_cmp_eq_u32 {sJ}, 3
s_cselect_b32 s22, 0x1c0000, s22
s_waitcnt lgkmcnt(0)
s_cmp_ge_u32 {sJ}, 2
s_cselect_b64 s[8:9], s[34:35], s[36:37]
s_add_u32 s8, s8, s76
s_addc_u32 s9, s9, 0
s_mov_b64 s[12:13], s[48:49]
s_mov_b64 s[16:17], s[58:59]
s_mov_b64 s[24:25], s[52:53]
s_mov_b64 s[28:29], s[50:51]
s_mov_b64 s[60:61], s[32:33]
s_mov_b64 s[64:65], s[54:55]
s_mov_b64 s[68:69], s[56:57]
s_mov_b64 s[20:21], s[38:39]
s_cmp_eq_u32 {sJ}, 2
s_cselect_b64 s[20:21], s[40:41], s[20:21]
s_cmp_lt_u32 {sB}, 4
s_cselect_b64 s[76:77], s[44:45], s[46:47]
s_cmp_eq_u32 {sJ}, 3
s_cselect_b64 s[20:21], s[76:77], s[20:21]
s_mov_b64 s[92:93], s[58:59]
s_add_u32 s100, s58, {GOFF}
s_addc_u32 s101, s59, 0""")
    RKV=RK; RWD=RV
    A(f's_cmp_lg_u32 s2, 0\ns_cbranch_scc1 L_NOE\ns_cmp_lg_u32 {sWAVE}, 0\ns_cbranch_scc1 L_NOE')
    A(f's_memrealtime s[96:97]\ns_waitcnt lgkmcnt(0)\ns_or_b32 s76, s96, 1\nv_mov_b32 v5, s76\nv_lshlrev_b32 v6, 7, v1\ns_mov_b64 exec, 3\nbuffer_store_dword v5, v6, {RDBG}, 0 offen sc1\ns_mov_b64 exec, -1')
    A('L_NOE:')
    A(f's_cmp_ge_u32 {sJ}, 2\ns_cbranch_scc1 L_PREK')
    A(f's_cmp_eq_u32 {sWAVE}, 13\ns_cbranch_scc1 L_PRE13\ns_cmp_eq_u32 {sWAVE}, 15\ns_cbranch_scc1 L_PREV15')
    A(f's_cmp_lg_u32 {sJ}, 0\ns_cbranch_scc1 L_B0\ns_cmp_ge_u32 {sWAVE}, 12\ns_cbranch_scc1 L_B0\ns_cmp_ge_u32 {sWAVE}, 8\ns_cbranch_scc1 L_PREC')
    A(f's_and_b32 s80, s2, 15\ns_lshr_b32 s81, s2, 4')
    g.dma_voff('v12','v13',6144,'v14')
    A(f's_lshl_b32 s84, s81, 7\ns_lshl_b32 s85, {sWAVE}, 4\ns_add_u32 s84, s84, s85\ns_mul_i32 s84, s84, 6144\ns_lshl_b32 s85, s80, 7\ns_add_u32 s84, s84, s85')
    A(f's_lshl_b32 s85, {sWAVE}, 11\ns_add_u32 s85, s85, {L_WM}')
    blk_dma(RWM, 2, 's84', 6144, 's85', 'v12', 'v13')
    A(f's_cmp_lt_u32 {sWAVE}, 4\ns_cbranch_scc1 L_B0')
    A(f'v_lshlrev_b32 v4, 4, v1\ns_and_b32 s87, {sWAVE}, 3\ns_lshl_b32 s87, s87, 11')
    A(f'buffer_load_dwordx4 v[88:91], v4, {RX}, s87 offen\nbuffer_load_dwordx4 v[92:95], v4, {RX}, s87 offen offset:1024\ns_branch L_B0')
    A('L_PREC:')
    A(f'v_lshlrev_b32 v4, 4, v1\ns_lshl_b32 s83, {sW8}, 11')
    A(f'buffer_load_dwordx4 v[104:107], v4, {RC}, s83 offen\nbuffer_load_dwordx4 v[100:103], v4, {RC}, s83 offen offset:1024\ns_branch L_B0')
    A('L_PREV15:')
    A(SENT)
    A(f's_lshl_b32 s80, {sPAIR}, 10\ns_lshl_b32 s81, {sJ}, 9\ns_add_u32 s81, s81, s80\ns_add_u32 s81, s81, {OO}\ns_mov_b32 exec_hi, 0')
    A(f'buffer_store_dwordx4 v[8:11], v5, {RWL}, s81 offen\ns_mov_b64 exec, -1')
    A(f's_cmp_lg_u32 {sJ}, 0\ns_cbranch_scc1 L_B0\ns_add_u32 s80, s80, {X1}')
    A(f'buffer_store_dwordx4 v[8:11], v5, {RWL}, s80 offen\ns_branch L_B0')
    A('L_PREK:')
    A(f's_cmp_lt_u32 {sWAVE}, 8\ns_cbranch_scc1 L_B0\ns_cmp_eq_u32 {sWAVE}, 14\ns_cbranch_scc1 L_B0\ns_cmp_eq_u32 {sWAVE}, 13\ns_cbranch_scc1 L_PRE13')
    A(SENT)
    A(f's_and_b32 s81, {sJ}, 1\ns_and_b32 s83, s2, 63\ns_lshl_b32 s83, s83, 11')
    A(f's_cmp_ge_u32 {sWAVE}, 12\ns_cbranch_scc1 L_PREK2')
    A(f's_lshl_b32 s80, {sPAIR}, 14\ns_lshl_b32 s82, s81, 13\ns_add_u32 s80, s80, s82\ns_lshl_b32 s82, {sW8}, 11\ns_add_u32 s80, s80, s82')
    A(f'buffer_store_dwordx4 v[8:11], v5, {RWL}, s80 offen\nbuffer_store_dwordx4 v[8:11], v5, {RWL}, s80 offen offset:1024\ns_branch L_B0')
    A('L_PREK2:')
    A(f's_cmp_eq_u32 {sWAVE}, 15\ns_cbranch_scc1 L_PREK3')
    A(f's_lshl_b32 s80, {sPAIR}, 10\ns_lshl_b32 s82, s81, 9\ns_add_u32 s82, s82, s80\ns_add_u32 s82, s82, {ST}\ns_mov_b32 exec_hi, 0')
    A(f'buffer_store_dwordx4 v[8:11], v5, {RWL}, s82 offen\ns_mov_b64 exec, -1')
    A(f's_cmp_eq_u32 {sJ}, 2\ns_cbranch_scc1 L_PREK4\ns_add_u32 s80, s80, {GU}')
    A(f'buffer_store_dwordx4 v[8:11], v5, {RWL}, s80 offen\ns_branch L_B0')
    A(f'L_PREK4:\ns_add_u32 s80, s83, {WP}\ns_branch L_PREK5')
    A(f'L_PREK3:\ns_cmp_lg_u32 {sJ}, 2\ns_cbranch_scc1 L_B0\ns_add_u32 s80, s83, {DP}')
    A(f'L_PREK5:\nbuffer_store_dwordx4 v[8:11], v5, {RWS}, s80 offen sc1\nbuffer_store_dwordx4 v[8:11], v5, {RWS}, s80 offen offset:1024 sc1\ns_branch L_B0')
    A('L_PRE13:')
    if o.codepf:
        A(f's_getpc_b64 s[80:81]\nL_PC:\ns_sub_u32 s80, s80, L_PC-{NAME}_kernel\ns_subb_u32 s81, s81, 0')
        A(f's_lshr_b32 s82, s2, 3\ns_lshl_b32 s82, s82, 10\nv_lshlrev_b32 v4, 4, v1\nv_add_u32 v4, s82, v4\nv_min_u32 v4, L_CODE_END-{NAME}_kernel-16, v4')
        A('global_load_dwordx4 v[100:103], v4, s[80:81]')
    A('L_B0:\ns_barrier')
    g.stampw(0,0)
    A(f's_cmp_eq_u32 {sWAVE}, 14\ns_cbranch_scc1 L_EP')
    A(f's_cmp_eq_u32 {sWAVE}, 15\ns_cbranch_scc1 L_SYNC')
    A(f's_cmp_eq_u32 {sJ}, 0\ns_cbranch_scc1 L_TC\ns_cmp_eq_u32 {sJ}, 1\ns_cbranch_scc1 L_TD')
    A(f's_cmp_lt_u32 {sWAVE}, 8\ns_cbranch_scc1 L_KPATH\ns_cmp_eq_u32 {sWAVE}, 13\ns_cbranch_scc1 L_KPATH')
    A('s_waitcnt vmcnt(0)')
    lds_inc(F_CLR, 'v5')
    A('s_branch L_KPATH')
    A('L_SYNC:\ns_setprio 3\ns_waitcnt vmcnt(0)')
    get_E('v12')
    A(f's_cmp_lt_u32 {sJ}, 2\ns_cbranch_scc1 L_SY1')
    g.lds_spin('v3', F_CLR, 5, 'v7', sleep=1)
    A('L_SY1:')
    A(f's_getreg_b32 s83, hwreg(HW_REG_XCC_ID)\nv_mov_b32 v13, s83\ns_lshl_b32 s84, s2, 7\ns_add_u32 s84, s84, {FL}\nv_mov_b32 v14, s84')
    A(f's_mov_b64 exec, 1\nbuffer_store_dwordx2 v[12:13], v14, {RWS}, 0 offen sc1\ns_mov_b64 exec, -1')
    g.stamp(4)
    A(f's_setprio 0\ns_cmp_ge_u32 {sJ}, 2\ns_cbranch_scc1 L_KPATH\ns_branch L_VWAIT')
    A('L_EP:\ns_setprio 3')
    A(f's_and_b32 s80, s2, 1\ns_lshl_b32 s80, s80, 7\nv_mov_b32 v9, s80\nL_EPL:\nbuffer_load_dword v12, v9, {RDBG}, 0 offen sc1\ns_waitcnt vmcnt(0)\nv_cmp_eq_u32 vcc, 0, v12\ns_cbranch_vccz L_EPD')
    g.timeout('L_EPD')
    A(f's_branch L_EPL\nL_EPD:\nds_write_b32 v3, v12 offset:{F_E}')
    g.stamp(24)
    A(f's_setprio 0\ns_cmp_ge_u32 {sJ}, 2\ns_cbranch_scc1 L_KPATH')
    A(f's_sleep {o.fldelay}\ns_mov_b32 s79, 0')
    A('L_FLAGS:')
    A(f'v_and_b32 v7, 31, v1\nv_lshlrev_b32 v14, 3, v7\nv_add_u32 v14, {sG}, v14\nv_lshrrev_b32 v15, 3, v7\nv_lshlrev_b32 v15, 6, v15\nv_and_b32 v7, 7, v1\nv_add_u32 v15, v15, v7\ns_lshl_b32 s84, {sB}, 3\nv_add_u32 v15, s84, v15')
    A(f's_mov_b32 vcc_lo, 0\ns_mov_b32 vcc_hi, -1\nv_cndmask_b32 v15, v14, v15, vcc\nv_lshlrev_b32 v15, 7, v15\nv_add_u32 v15, {FL}, v15')
    A(f'L_FLP:\nbuffer_load_dwordx2 v[96:97], v15, {RWS}, 0 offen sc1\ns_waitcnt vmcnt(0)\nv_cmp_ne_u32 vcc, v96, v12\ns_cbranch_vccz L_FLD')
    g.timeout('L_FLD')
    A('s_sleep 8\ns_branch L_FLP\nL_FLD:')
    A('s_getreg_b32 s83, hwreg(HW_REG_XCC_ID)')
    A(f'v_cmp_ne_u32 vcc, s83, v97\ns_cmp_eq_u32 vcc_lo, 0\ns_cselect_b32 s84, {1 if o.local else 0}, 0\nv_mov_b32 v14, s84\ns_cmp_eq_u32 s84, 1\ns_cbranch_scc1 L_FLOK')
    A('s_mov_b64 s[92:93], s[100:101]')
    clear_all_local(' sc1')
    A(f's_lshl_b32 s80, s2, 7\ns_add_u32 s80, s80, {FLB}\nv_mov_b32 v5, s80\ns_mov_b32 s80, {FLB-FL}\ns_waitcnt vmcnt(0)')
    A(f's_mov_b64 exec, 1\nbuffer_store_dword v12, v5, {RWS}, 0 offen sc1\ns_mov_b64 exec, -1')
    A(f'L_FBP:\nbuffer_load_dword v8, v15, {RWS}, s80 offen sc1\ns_waitcnt vmcnt(0)\nv_cmp_ne_u32 vcc, v8, v12\ns_cmp_eq_u32 vcc_lo, 0\ns_cbranch_scc1 L_FLOK')
    g.timeout('L_FLOK')
    A('s_sleep 4\ns_branch L_FBP')
    A(f'L_FLOK:\nds_write_b32 v3, v14 offset:{F_MODE}\ns_waitcnt lgkmcnt(0)')
    g.lds_set('v3', F_MOK, 1, 'v7')
    g.stamp(5)
    A('s_cmp_eq_u32 s79, 1\ns_cbranch_scc1 L_KFLB\ns_branch L_VWAIT')

    A('L_TC:')
    A(f's_cmp_ge_u32 {sWAVE}, 12\ns_cbranch_scc1 L_C_MT\ns_cmp_ge_u32 {sWAVE}, 8\ns_cbranch_scc1 L_C_S\ns_cmp_ge_u32 {sWAVE}, 4\ns_cbranch_scc1 L_C_LN')
    g.tr_addr('v5', sWAVE, L_WM, 'v6', 'v7')
    A(f's_lshl_b32 s84, s81, 8\ns_add_u32 s84, s84, {L_ACT}')
    g.act_addr('v6', 's84', 1056, 'v7')
    A(f's_lshl_b32 s86, s2, 11\ns_lshl_b32 s84, {sWAVE}, 9\ns_add_u32 s86, s86, s84\ns_add_u32 s86, s86, {MP}')
    A('v_and_b32 v7, 7, v1\nv_lshlrev_b32 v4, 6, v7\nv_lshrrev_b32 v7, 4, v1\nv_lshl_add_u32 v4, v7, 4, v4')
    A('s_waitcnt vmcnt(0)')
    lds_inc(F_C1, 'v7')
    get_E('v12')
    pair_prep('v4', MP2-MP, 'v12', 'v12', 'v7')
    g.lds_spin('v3', F_C1, 12, 'v7', sleep=0)
    g.tr_frags('v5', 48, range(4))
    g.gemv_tile(48, 4, 'v6', 64, 80)
    for r in range(4): A(f'v_xor_b32 v{80+r}, v{80+r}, v12')
    A(f'buffer_store_dwordx4 v[80:83], v4, {RWS}, s86 offen sc1')
    lds_inc(F_C1, 'v7')
    g.stampw(0,1)
    A('s_branch L_VWAIT')
    A('L_C_LN:')
    A('s_waitcnt vmcnt(2)')
    lds_inc(F_C1, 'v5')
    A('s_waitcnt vmcnt(0)')
    A(f's_add_u32 s87, s87, {L_Y}\nv_add_u32 v4, s87, v4')
    for k,src in enumerate((88,92)):
        g.ln8(src, 48, 56)
        for i in range(4): A(f'v_cvt_pk_bf16_f32 v{src+i}, v{48+2*i}, v{49+2*i}')
        A(f'ds_write_b128 v4, v[{src}:{src+3}] offset:{k*1024}')
    A('s_waitcnt lgkmcnt(0)')
    lds_inc(F_Y, 'v5')
    A('s_branch L_VWAIT')
    A('L_C_S:')
    A(f's_mul_i32 s85, {sW8}, 2112\ns_add_u32 s85, s85, {L_ACT}\nv_add_u32 v5, s85, v4')
    A('s_waitcnt vmcnt(1)')
    g.silu8(104, 16, 24)
    A('ds_write_b128 v5, v[104:107]\ns_waitcnt vmcnt(0)')
    g.silu8(100, 16, 24)
    A('ds_write_b128 v5, v[100:103] offset:1056\ns_waitcnt lgkmcnt(0)')
    lds_inc(F_C1, 'v5')
    A(f's_cmp_lg_u32 {sWAVE}, 8\ns_cbranch_scc1 L_VWAIT')
    A('s_setprio 3')
    get_E('v15')
    A('v_lshrrev_b32 v7, 4, v1\nv_lshlrev_b32 v5, 14, v7\nv_bfe_u32 v6, v1, 1, 3\nv_lshl_add_u32 v5, v6, 6, v5\nv_and_b32 v7, 1, v1\nv_lshl_add_u32 v5, v7, 4, v5')
    A(f's_lshr_b32 s80, s2, 1\ns_lshl_b32 s80, s80, 9\ns_and_b32 s81, s2, 1\ns_lshl_b32 s81, s81, 5\ns_add_u32 s80, s80, s81\ns_add_u32 s80, s80, {MP}\ns_add_u32 s81, s80, 0x10000\ns_add_u32 s82, s80, {MP2-MP}\ns_add_u32 s83, s81, {MP2-MP}')
    A(f'v_lshlrev_b32 v6, 10, v6\nv_lshl_add_u32 v6, v7, 3, v6\ns_lshl_b32 s84, s2, 4\ns_add_u32 s84, s84, {L_Y}\nv_add_u32 v6, s84, v6')
    A(f'v_and_b32 v7, 15, v1\nv_lshlrev_b32 v8, 3, v7\nv_bfe_u32 v7, v1, 4, 1\nv_mul_u32_u24 v9, {HH2-HH}, v7\nv_add_u32 v8, v8, v9\nv_mul_lo_u32 v9, v7, v15\ns_lshl_b32 s84, s2, 7\ns_add_u32 s84, s84, {HH}')
    g.lds_spin('v3', F_Y, 4, 'v7', sleep=1)
    A('ds_read_b64 v[10:11], v6')
    g.lds_spin('v3', F_C1, 16, 'v7', sleep=1)
    if o.mpdelay: A(f's_sleep {o.mpdelay}')
    xpoll([f'buffer_load_dwordx4 v[{16+4*k}:{19+4*k}], v5, {RWS}, s{80+k} offen sc1' for k in range(4)], 16, 24, 8, 'v15', 'v7', sleep=o.mpsleep)
    for r in range(4): A(f'v_add_f32 v{16+r}, v{16+r}, v{20+r}')
    for r in range(4): A(f'v_mov_b32 v{20+r}, v{16+r}')
    for r in range(4): A(f'v_permlane32_swap_b32 v{16+r}, v{20+r}')
    for r in range(4): A(f'v_add_f32 v{16+r}, v{16+r}, v{20+r}')
    g.rnd2(16,17,12); g.rnd2(18,19,13)
    for r in range(4): A(f'v_mov_b32 v{20+r}, v{16+r}')
    for r in range(4): A(f'v_permlane16_swap_b32 v{16+r}, v{20+r}')
    for r in range(4): A(f'v_add_f32 v{20+r}, 1.0, v{20+r}')
    g.rnd2(20,21,12); g.rnd2(22,23,13)
    g.unpack(10,24,25); g.unpack(11,26,27)
    for r in range(4): A(f'v_mul_f32 v{24+r}, v{24+r}, v{20+r}')
    g.rnd2(24,25,12); g.rnd2(26,27,13)
    for r in range(4): A(f'v_add_f32 v{24+r}, v{24+r}, v{16+r}')
    A('v_cvt_pk_bf16_f32 v10, v24, v25\nv_cvt_pk_bf16_f32 v11, v26, v27\nv_xor_b32 v10, v10, v9\nv_xor_b32 v11, v11, v9\ns_mov_b32 exec_hi, 0')
    A(f'buffer_store_dwordx2 v[10:11], v8, {RWS}, s84 offen sc1\ns_mov_b64 exec, -1')
    g.lds_set('v3', F_R, 1, 'v7')
    A('s_setprio 0')
    g.stamp(25)
    A('s_branch L_VWAIT')
    A('L_C_MT:')
    A(f'v_lshrrev_b32 v7, 2, v1\nv_mul_u32_u24 v12, 6144, v7\nv_and_b32 v7, 3, v1\nv_lshl_add_u32 v12, v7, 4, v12')
    A(f's_and_b32 s85, {sWAVE}, 1\ns_mul_i32 s88, s85, {256*6144}\ns_lshl_b32 s89, s2, 6\ns_add_u32 s88, s88, s89\ns_add_u32 s88, s88, 2048\ns_lshl_b32 s89, s85, 14')
    A(f'v_lshrrev_b32 v7, 4, v1\nv_lshlrev_b32 v6, 9, v7\nv_bfe_u32 v7, v1, 2, 2\nv_lshl_add_u32 v6, v7, 6, v6\nv_and_b32 v7, 3, v1\nv_lshl_add_u32 v6, v7, 3, v6\ns_lshl_b32 s84, s85, 5\nv_add_u32 v6, s84, v6')
    g.act_addr('v8', L_ACT, 1056, 'v7')
    A(f'v_and_b32 v7, 7, v1\nv_lshlrev_b32 v9, 12, v7\nv_lshrrev_b32 v7, 4, v1\nv_lshl_add_u32 v9, v7, 3, v9\ns_lshl_b32 s86, s2, 6\ns_add_u32 s86, s86, s84\ns_add_u32 s86, s86, {MT}')
    if o.mtearly==0: g.lds_spin('v3', F_R, 1, 'v7', sleep=2)
    A('s_setprio 1')
    for i in range(16): g.dma(RWM, 'v12', 's88', i*16*6144, 's89', L_W+i*1024)
    lds_inc(F_GO, 'v7')
    get_E('v10')
    pair_prep('v9', MT2-MT, 'v10', 'v10', 'v7')
    A('s_waitcnt vmcnt(0)')
    lds_inc(F_SUB, 'v7')
    g.lds_spin('v3', F_SUB, 2, 'v7', sleep=1)
    g.lds_spin('v3', F_C1, 12, 'v7', sleep=1)
    def rdm(gq):
        for m in range(4):
            mm=4*gq+m; o_=16*(gq&1)+4*m
            A(f'ds_read_b64_tr_b16 v[{32+o_}:{33+o_}], v6 offset:{mm*2048}\nds_read_b64_tr_b16 v[{34+o_}:{35+o_}], v6 offset:{mm*2048+256}')
            A(f'ds_read_b128 v[{64+o_}:{67+o_}], v8 offset:{mm*64}')
    rdm(0)
    for gq in range(4):
        if gq<3: rdm(gq+1); A('s_waitcnt lgkmcnt(12)')
        else: A('s_waitcnt lgkmcnt(0)')
        for m in range(4):
            o_=16*(gq&1)+4*m
            c='0' if (gq==0 and m==0) else 'v[12:15]'
            A(f'v_mfma_f32_16x16x32_bf16 v[12:15], v[{32+o_}:{35+o_}], v[{64+o_}:{67+o_}], {c}')
    A('v_cvt_pk_bf16_f32 v100, v12, v13\nv_cvt_pk_bf16_f32 v101, v14, v15\nv_xor_b32 v100, v100, v10\nv_xor_b32 v101, v101, v10')
    A(f'buffer_store_dwordx2 v[100:101], v9, {RWS}, s86 offen sc1\ns_setprio 0')
    A('s_branch L_VW_C')

    A('L_TD:')
    A(f's_cmp_ge_u32 {sWAVE}, 12\ns_cbranch_scc1 L_VWAIT\ns_cmp_ge_u32 {sWAVE}, 8\ns_cbranch_scc1 L_D_H')
    g.dma_voff('v12','v13',8192,'v14')
    A(f's_lshl_b32 s85, {sWAVE}, 13\ns_lshl_b32 s84, {sWAVE}, 19\ns_lshl_b32 s86, {sPAIR}, 7\ns_add_u32 s84, s84, s86')
    blk_dma(RW1, 8, 's84', 8192, 's85', 'v12', 'v13')
    lds_inc(F_GO, 'v7')
    A('s_waitcnt vmcnt(0)')
    lds_inc(F_SUB, 'v7')
    A(f's_cmp_ge_u32 {sWAVE}, 4\ns_cbranch_scc1 L_VWAIT')
    g.tr_addr('v5', sWAVE, L_W, 'v6', 'v7')
    g.act_addr('v6', L_H, 1056, 'v7')
    A(f's_lshl_b32 s86, {sPAIR}, 10\ns_lshl_b32 s84, {sWAVE}, 5\ns_add_u32 s86, s86, s84\ns_add_u32 s86, s86, {QF}')
    A(f'v_and_b32 v7, 7, v1\nv_lshlrev_b32 v4, 7, v7\nv_lshrrev_b32 v7, 4, v1\nv_lshl_add_u32 v4, v7, 3, v4')
    get_E('v12')
    pair_prep('v4', QF2-QF, 'v12', 'v12', 'v7')
    g.lds_spin('v3', F_SUB, 8, 'v7', sleep=1)
    g.tr_frags('v5', 16, range(16))
    g.stampw(0,16)
    get_mode('v7')
    A('s_setprio 3')
    g.lds_spin('v3', F_C3, 4, 'v7', sleep=0)
    gemv16(16, 'v6', 8, [80,96])
    A('v_cvt_pk_bf16_f32 v14, v8, v9\nv_cvt_pk_bf16_f32 v15, v10, v11\nv_xor_b32 v14, v14, v12\nv_xor_b32 v15, v15, v12')
    g.pub(f'buffer_store_dwordx2 v[14:15], v4, {RWS}, s86 offen', True)
    lds_inc(F_VGO, 'v7')
    A('s_setprio 0')
    g.stampw(0,3)
    A('s_branch L_VWAIT')
    A('L_D_H:\ns_setprio 3')
    A(f'v_lshlrev_b32 v4, 4, v1\ns_lshl_b32 s80, {sW8}, 11\ns_add_u32 s81, s80, {HH2}\ns_add_u32 s80, s80, {HH}')
    A(f'v_and_b32 v7, 7, v1\nv_mul_u32_u24 v6, 1056, v7\nv_lshrrev_b32 v7, 3, v1\nv_lshl_add_u32 v6, v7, 4, v6\ns_lshl_b32 s84, {sW8}, 8\ns_add_u32 s84, s84, {L_H}\nv_add_u32 v6, s84, v6')
    get_E('v15')
    g.lds_spin('v3', F_SUB, o.hdelay, 'v7', sleep=1)
    xpoll([f'buffer_load_dwordx4 v[16:19], v4, {RWS}, s80 offen sc1', f'buffer_load_dwordx4 v[20:23], v4, {RWS}, s80 offen offset:1024 sc1',
           f'buffer_load_dwordx4 v[24:27], v4, {RWS}, s81 offen sc1', f'buffer_load_dwordx4 v[28:31], v4, {RWS}, s81 offen offset:1024 sc1'], 16, 24, 8, 'v15', 'v7', sleep=o.mpsleep)
    A('ds_write_b128 v6, v[16:19]\nds_write_b128 v6, v[20:23] offset:128\ns_waitcnt lgkmcnt(0)')
    lds_inc(F_C3, 'v5')
    A('s_setprio 0')
    g.stampw(8,2)
    A('L_VWAIT:')
    A(f's_cmp_eq_u32 {sJ}, 1\ns_cbranch_scc1 L_VW_D')
    pm=0
    for w in o.cpre: pm|=1<<w
    if pm: A(f's_mov_b32 s80, {pm}\ns_lshr_b32 s80, s80, {sWAVE}\ns_bitcmp1_b32 s80, 0\ns_cbranch_scc1 L_VPATH')
    g.lds_spin('v3', F_R, 1, 'v7', sleep=2)
    g.lds_spin('v3', F_GO, 2, 'v7', sleep=1)
    A('L_VW_C:')
    cm=0
    for w in o.cearly: cm|=1<<w
    A(f's_mov_b32 s80, {cm}\ns_lshr_b32 s80, s80, {sWAVE}\ns_bitcmp1_b32 s80, 0\ns_cbranch_scc1 L_VPATH')
    A(f's_cmp_lg_u32 {sWAVE}, 9\ns_cbranch_scc1 L_VW_D2')
    get_E('v12')
    A(f's_lshl_b32 s80, {sPAIR}, 10\ns_add_u32 s80, s80, {QF}\ns_add_u32 s81, s80, {QF2-QF}\nv_mov_b32 v5, 0')
    xpoll([f'buffer_load_dword v16, v5, {RWS}, s80 offen sc1', f'buffer_load_dword v17, v5, {RWS}, s81 offen sc1'], 16, 17, 1, 'v12', 'v7', sleep=4)
    g.lds_set('v3', F_VGO, 4, 'v7')
    A('s_branch L_VPATH\nL_VW_D:')
    em=0
    for w in o.dearly: em|=1<<w
    A(f's_mov_b32 s80, {em}\ns_lshr_b32 s80, s80, {sWAVE}\ns_bitcmp1_b32 s80, 0\ns_cbranch_scc0 L_VW_D2')
    g.lds_spin('v3', F_GO, 8, 'v7', sleep=1)
    A('s_branch L_VPATH\nL_VW_D2:')
    g.lds_spin('v3', F_VGO, 4, 'v7', sleep=2)
    A('L_VPATH:')
    A(f'v_lshrrev_b32 v5, 3, v1\nv_lshlrev_b32 v2, 11, v5\nv_and_b32 v5, 7, v1\nv_lshl_add_u32 v2, v5, 4, v2')
    A(f's_lshl_b32 s80, {sWAVE}, 15\ns_lshl_b32 s81, {sJ}, 7\ns_add_u32 s80, s80, s81\ns_add_u32 s81, s80, 16384')
    for blk in range(2):
        for u in range(8):
            r=8+32*blk+4*u
            A(f'buffer_load_dwordx4 v[{r}:{r+3}], v2, {RKV}, s{80+blk} offen offset:{u*256} nt')
    lds_inc(F_KL, 'v7')
    g.stampw(0,22); g.stampw(11,23)
    if o.stamps:
        A(f's_cmp_lg_u32 {sWAVE}, 15\ns_cbranch_scc1 L_NS26\ns_waitcnt vmcnt(0)')
        g.stamp(26)
        A('L_NS26:')
    A('s_mov_b32 s88, 0x05040100\ns_mov_b32 s89, 0x07060302')
    A(f'v_bfe_u32 v7, v1, 3, 1\nv_lshlrev_b32 v6, 10, v7\nv_and_b32 v7, 7, v1\nv_lshl_add_u32 v6, v7, 5, v6\nv_lshrrev_b32 v7, 5, v1\nv_lshl_add_u32 v6, v7, 2, v6')
    A(f's_lshl_b32 s84, {sWAVE}, 11\ns_add_u32 s84, s84, {L_OP}\nv_add_u32 v6, s84, v6')
    A(f'v_lshrrev_b32 v7, 4, v1\nv_lshlrev_b32 v4, 7, v7\nv_and_b32 v7, 7, v1\nv_lshl_add_u32 v4, v7, 4, v4\ns_lshl_b32 s84, {sPAIR}, 14\ns_lshl_b32 s85, {sWAVE}, 10\ns_add_u32 s84, s84, s85')
    get_mode('v7')
    PL=[f'buffer_load_dwordx4 v[72:75], v4, {RWL}, s84 offen sc1', f'buffer_load_dwordx4 v[80:83], v4, {RWL}, s84 offen offset:512 sc1']
    PR=[72,73,74,75,80,81,82,83]
    TB=[88,8]
    def perms(blk):
        B=8+32*blk
        for w in range(4):
            t=TB[blk]+8*w
            for a in range(4): A(f'v_perm_b32 v{t+a}, v{B+4*(2*a+1)+w}, v{B+4*(2*a)+w}, s88')
            for a in range(4): A(f'v_perm_b32 v{t+4+a}, v{B+4*(2*a+1)+w}, v{B+4*(2*a)+w}, s89')
    A(f'ds_read_b32 v7, v3 offset:{F_KL}\ns_waitcnt lgkmcnt(0)\nv_readfirstlane_b32 s85, v7\ns_cmp_lt_u32 s85, {o.pgate}\ns_cbranch_scc1 L_PE')
    for l in PL: A(l)
    A('s_waitcnt vmcnt(10)')
    perms(0)
    A('s_waitcnt vmcnt(2)')
    perms(1)
    A('s_waitcnt vmcnt(0)')
    g.chk(PR, 'v7')
    A('s_cbranch_vccz L_PD\ns_branch L_PP')
    A('L_PE:\ns_waitcnt vmcnt(8)')
    perms(0)
    A('s_waitcnt vmcnt(0)')
    perms(1)
    g.lds_spin('v3', F_KL, o.pgate, 'v7', sleep=2)
    A('L_PP:')
    g.poll(PL, PR, 'v7', sleep=o.psleep)
    A('L_PD:')
    g.stampw(0,8); g.stampw(11,9)
    A(HI8)
    for blk in range(2):
        for r in range(4): A(f'v_cndmask_b32 v{76+8*blk+r}, 0, v{72+8*blk+r}, vcc')
    A('s_not_b64 vcc, vcc')
    for blk in range(2):
        for r in range(4): A(f'v_cndmask_b32 v{72+8*blk+r}, 0, v{72+8*blk+r}, vcc')
    Dd=40
    for blk in range(2):
        for q in range(2):
            for w in range(4):
                t=TB[blk]+8*w+4*q; d=Dd+4*w
                c0='0' if (blk==0 and q==0) else f'v[{d}:{d+3}]'
                A(f'v_mfma_f32_16x16x32_bf16 v[{d}:{d+3}], v[{72+8*blk+4*q}:{75+8*blk+4*q}], v[{t}:{t+3}], {c0}')
    A('s_mov_b32 exec_lo, 0xff0000ff\ns_mov_b32 exec_hi, 0xff0000ff')
    for wp in range(2):
        for h in range(4): A(f'ds_write2_b32 v6, v{Dd+8*wp+h}, v{Dd+8*wp+4+h} offset0:{64*h+4*wp} offset1:{64*h+4*wp+2}')
    A('s_mov_b64 exec, -1')
    A(f'v_lshrrev_b32 v5, 3, v1\nv_lshlrev_b32 v4, 12, v5\nv_and_b32 v5, 7, v1\nv_lshl_add_u32 v4, v5, 4, v4\ns_lshl_b32 s85, {sW8}, 7\ns_add_u32 s84, s85, {L_OP}\nv_add_u32 v4, s84, v4')
    A(f'v_lshlrev_b32 v5, 3, v1\ns_lshl_b32 s84, {sPAIR}, 10\ns_lshr_b32 s85, s85, 1\ns_add_u32 s84, s84, s85\ns_lshl_b32 s85, {sJ}, 9\ns_add_u32 s84, s84, s85\ns_add_u32 s84, s84, {OO}')
    A('s_waitcnt lgkmcnt(0)\ns_barrier')
    A(f's_cmp_lt_u32 {sWAVE}, 8\ns_cbranch_scc1 L_VT')
    for k in range(4): A(f'ds_read_b128 v[{8+4*k}:{11+4*k}], v4 offset:{k*1024}')
    A('s_waitcnt lgkmcnt(0)')
    for r in range(4): A(f'v_add_f32 v{8+r}, v{8+r}, v{12+r}\nv_add_f32 v{16+r}, v{16+r}, v{20+r}')
    for r in range(4): A(f'v_add_f32 v{8+r}, v{8+r}, v{16+r}')
    for r in range(4): A(f'v_add_f32_dpp v{8+r}, v{8+r}, v{8+r} row_ror:8 row_mask:0xf bank_mask:0xf')
    g.red_rows('v_add_f32', [8,9,10,11], [12,13,14,15])
    A('v_cvt_pk_bf16_f32 v12, v8, v9\nv_cvt_pk_bf16_f32 v13, v10, v11')
    g.nosent([12,13])
    A('s_mov_b64 exec, 0xff')
    g.pub(f'buffer_store_dwordx2 v[12:13], v5, {RWL}, s84 offen', True)
    A('s_mov_b64 exec, -1')
    g.stampw(8,10)
    if o.stamps:
        A(f's_cmp_lg_u32 {sJ}, 1\ns_cbranch_scc1 L_END\ns_cmp_eq_u32 {sWAVE}, 8\ns_cbranch_scc1 L_DUMP')
    A('s_branch L_END')
    A('L_VT:')
    A(f's_cmp_lg_u32 {sJ}, 0\ns_cbranch_scc1 L_END\ns_cmp_ge_u32 {sWAVE}, 3\ns_cbranch_scc1 L_END')
    A(f'ds_read_b32 v13, v3 offset:{F_E}')
    A(f's_cmp_eq_u32 {sWAVE}, 2\ns_cbranch_scc1 L_FIN')
    A(f'v_lshlrev_b32 v4, 4, v1\ns_lshl_b32 s80, {sWAVE}, 10\nv_add_u32 v4, s80, v4')
    A(f'v_bfe_u32 v6, v1, 2, 3\nv_lshrrev_b32 v7, 5, v1\nv_lshlrev_b32 v7, 5, v7\nv_and_b32 v8, 3, v1\nv_lshl_add_u32 v7, v8, 3, v7\ns_lshl_b32 s81, {sWAVE}, 6\nv_add_u32 v7, s81, v7')
    A(f'v_lshl_add_u32 v5, v6, 10, v7\ns_lshl_b32 s81, {sB}, 7\nv_lshl_add_u32 v9, v6, 12, v7\ns_add_u32 s80, s81, {MT}')
    A(f'buffer_load_dwordx2 v[56:57], v5, {RX}, s81 offen')
    A(f's_add_u32 s81, s80, {MT2-MT}\ns_waitcnt lgkmcnt(0)')
    xpoll([f'buffer_load_dwordx2 v[60:61], v9, {RWS}, s80 offen sc1', f'buffer_load_dwordx2 v[62:63], v9, {RWS}, s81 offen sc1'], 60, 62, 2, 'v13', 'v12')
    g.unpack(60,48,49); g.unpack(61,50,51)
    g.unpack(56,52,53); g.unpack(57,54,55)
    A(f'v_lshl_add_u32 v5, v6, 7, v7\ns_lshl_b32 s82, {sPAIR}, 10\ns_add_u32 s82, s82, {X1}')
    A(f'v_lshlrev_b32 v8, 1, v5\nv_add_u32 v8, {L_X1S}, v8')
    A(f's_lshl_b32 s80, {sB}, 14\ns_add_u32 s80, s80, {WP}')
    for k in range(4): A(f's_add_u32 s{88+k}, s80, {k*4096}')
    g.poll([f'buffer_load_dwordx4 v[{16+4*k}:{19+4*k}], v4, {RWS}, s{88+(k>>1)} offen offset:{(k&1)*2048} sc1' for k in range(8)], range(16,48), 'v12')
    for r in range(4):
        A(f'v_add_f32 v{16+r}, v{16+r}, v{20+r}\nv_add_f32 v{24+r}, v{24+r}, v{28+r}\nv_add_f32 v{32+r}, v{32+r}, v{36+r}\nv_add_f32 v{40+r}, v{40+r}, v{44+r}')
        A(f'v_add_f32 v{16+r}, v{16+r}, v{24+r}\nv_add_f32 v{32+r}, v{32+r}, v{40+r}\nv_add_f32 v{16+r}, v{16+r}, v{32+r}')
    g.rnd2(16,17,12); g.rnd2(18,19,13)
    for r in range(4): A(f'v_mul_f32 v{16+r}, v{16+r}, v{48+r}')
    g.rnd2(16,17,12); g.rnd2(18,19,13)
    for r in range(4): A(f'v_add_f32 v{16+r}, v{16+r}, v{52+r}')
    g.rnd2(16,17,12); g.rnd2(18,19,13)
    g.nosent([12,13])
    g.pub(f'buffer_store_dwordx2 v[12:13], v5, {RWL}, s82 offen', True)
    A('ds_write_b128 v8, v[16:19]')
    g.stampw(0,12)
    A('s_waitcnt lgkmcnt(0)\ns_barrier')
    A('s_branch L_END')
    A('L_FIN:')
    A(f'v_lshrrev_b32 v5, 4, v1\nv_lshlrev_b32 v4, 9, v5\nv_and_b32 v5, 15, v1\nv_lshl_add_u32 v4, v5, 2, v4\ns_lshl_b32 s80, {sG}, 6\nv_add_u32 v4, s80, v4')
    A(f's_lshl_b32 s80, {sG}, 12\ns_lshl_b32 s81, {sB}, 7\ns_add_u32 s80, s80, s81\ns_add_u32 s80, s80, {MT+3072}\nv_lshrrev_b32 v5, 1, v1\nv_lshlrev_b32 v5, 2, v5')
    A(f's_add_u32 s81, s80, {MT2-MT}\ns_waitcnt lgkmcnt(0)')
    xpoll([f'buffer_load_dword v50, v5, {RWS}, s80 offen sc1', f'buffer_load_dword v51, v5, {RWS}, s81 offen sc1'], 50, 51, 1, 'v13', 'v12', sleep=4)
    g.unpack(50,48,49)
    A('s_mov_b32 vcc_lo, 0xaaaaaaaa\ns_mov_b32 vcc_hi, 0xaaaaaaaa\nv_cndmask_b32 v48, v48, v49, vcc')
    A(f's_lshl_b32 s80, {sB}, 14\ns_add_u32 s80, s80, {DP}')
    for k in range(4): A(f's_add_u32 s{88+k}, s80, {k*4096}')
    A(f's_lshl_b32 s81, {sG}, 8\ns_add_u32 s81, s81, {L_X1S}\nv_lshlrev_b32 v6, 2, v1\nv_add_u32 v6, s81, v6')
    A(f'v_lshlrev_b32 v7, 1, v1\ns_lshl_b32 s82, {sG}, 10\ns_lshl_b32 s83, {sB}, 7\ns_add_u32 s82, s82, s83')
    A('s_barrier')
    A('ds_read_b32 v50, v6')
    g.poll([f'buffer_load_dword v{16+k}, v4, {RWS}, s{88+(k>>1)} offen offset:{(k&1)*2048} sc1' for k in range(7)], range(16,23), 'v12')
    A('v_add_f32 v16, v16, v17\nv_add_f32 v18, v18, v19\nv_add_f32 v20, v20, v21\nv_add_f32 v16, v16, v18\nv_add_f32 v20, v20, v22\nv_add_f32 v16, v16, v20')
    g.rnd2(16,17,12)
    A('v_mul_f32 v16, v16, v48')
    g.rnd2(16,17,12)
    A('s_waitcnt lgkmcnt(0)\nv_add_f32 v16, v16, v50\nv_cvt_pk_bf16_f32 v12, v16, v16')
    A(f'buffer_store_short v12, v7, {ROUT}, s82 offen')
    g.stamp(15)
    A('s_branch L_DUMP')

    A('L_KPATH:')
    A(f'v_lshlrev_b32 v4, 4, v1\ns_and_b32 s86, {sJ}, 1\ns_lshl_b32 s80, s86, 18\ns_lshl_b32 s81, {sWAVE}, 14\ns_add_u32 s80, s80, s81')
    if o.thr:
        A(f's_cmp_lt_u32 {sWAVE}, {o.thrw}\ns_cbranch_scc1 L_KGO')
        g.lds_spin('v3', F_GO, o.thrw, 'v5', sleep=1)
        A('L_KGO:')
    for T in range(4):
        if T: A('s_add_u32 s80, s80, 4096')
        if o.thr and 1<=T<=o.thr:
            l=g.lab('KT')
            A(f's_cmp_ge_u32 {sWAVE}, {o.thrw}\ns_cbranch_scc1 {l}\ns_waitcnt vmcnt(0)')
            if T==o.thr: lds_inc(F_GO, 'v5')
            A(f'{l}:')
        for m in range(4):
            r=16+16*T+4*m
            A(f'buffer_load_dwordx4 v[{r}:{r+3}], v4, {RKV}, s80 offen offset:{m*1024} nt')
    g.stampw(11,20)
    A(f's_mul_i32 s81, {sWAVE}, {KS_SZ}\ns_add_u32 s81, s81, {L_KS}')
    A('v_lshrrev_b32 v6, 4, v1\nv_and_b32 v7, 15, v1\nv_mul_u32_u24 v4, 272, v6\nv_lshl_add_u32 v4, v7, 4, v4\nv_add_u32 v4, s81, v4')
    A('v_mul_u32_u24 v5, 272, v7\nv_lshl_add_u32 v5, v6, 4, v5\nv_add_u32 v5, s81, v5')
    for T in range(4):
        A(f's_waitcnt vmcnt({12-4*T})')
        for m in range(4): A(f'ds_write_b128 v4, v[{16+16*T+4*m}:{19+16*T+4*m}] offset:{m*1088}')
        A('s_waitcnt lgkmcnt(0)')
        for m in range(4): A(f'ds_read_b128 v[{16+16*T+4*m}:{19+16*T+4*m}], v5 offset:{m*64}')
        A('s_waitcnt lgkmcnt(0)')
    lds_inc(F_KL, 'v7')
    g.stampw(15,18); g.stampw(3,21)
    A('s_setprio 2')
    A(f's_cmp_ge_u32 {sWAVE}, 2\ns_cbranch_scc1 L_QPX')
    get_E('v12')
    A(f's_cmp_eq_u32 {sWAVE}, 0\ns_cbranch_scc1 L_QP0\ns_mov_b32 s79, 1\ns_branch L_FLAGS\nL_KFLB:\ns_branch L_QPX\nL_QP0:')
    A(f's_lshl_b32 s80, {sG}, 13\ns_lshl_b32 s81, {sB}, 7\ns_add_u32 s80, s80, s81\ns_add_u32 s80, s80, {QF}\ns_add_u32 s81, s80, {QF2-QF}')
    A(f'v_lshrrev_b32 v6, 3, v1\nv_lshlrev_b32 v5, 10, v6\nv_and_b32 v7, 7, v1\nv_lshl_add_u32 v5, v7, 4, v5')
    A(f'v_lshrrev_b32 v6, 4, v1\nv_mul_u32_u24 v13, 272, v6\nv_and_b32 v7, 15, v1\nv_lshl_add_u32 v13, v7, 4, v13\nv_add_u32 v13, {L_Q}, v13')
    if o.qdelay: g.lds_spin('v3', F_KL, o.qdelay, 'v7', sleep=2)
    xpoll([f'buffer_load_dwordx4 v[96:99], v5, {RWS}, s80 offen sc1', f'buffer_load_dwordx4 v[100:103], v5, {RWS}, s81 offen sc1'], 96, 100, 4, 'v12', 'v7', sleep=o.qsleep)
    A('ds_write_b128 v13, v[96:99]\ns_waitcnt lgkmcnt(0)')
    g.lds_set('v3', F_QREADY, 1, 'v7')
    g.stamp(6)
    A('L_QPX:')
    A(f'v_and_b32 v6, 3, v1\nv_mul_u32_u24 v6, 272, v6\nv_lshrrev_b32 v7, 4, v1\nv_lshl_add_u32 v6, v7, 4, v6\nv_add_u32 v6, {L_Q}, v6')
    A('v_bfe_u32 v5, v1, 2, 2\nv_lshlrev_b32 v4, 7, v5\nv_lshrrev_b32 v5, 5, v1\nv_lshl_add_u32 v4, v5, 6, v4\nv_and_b32 v5, 3, v1\nv_lshl_add_u32 v4, v5, 4, v4\nv_bfe_u32 v5, v1, 4, 1\nv_lshl_add_u32 v4, v5, 3, v4')
    A(f's_and_b32 s86, {sJ}, 1\ns_lshl_b32 s81, {sPAIR}, 14\ns_lshl_b32 s82, s86, 13\ns_add_u32 s81, s81, s82\ns_lshl_b32 s82, {sWAVE}, 9\ns_add_u32 s81, s81, s82')
    A(f'v_and_b32 v5, 3, v1\nv_lshlrev_b32 v5, 3, v5\ns_lshl_b32 s82, {sPAIR}, 10\ns_add_u32 s82, s82, {ST}\ns_lshl_b32 s84, s86, 9\ns_add_u32 s83, s82, s84\ns_xor_b32 s84, s84, 512\ns_add_u32 s82, s82, s84')
    A(f'v_lshlrev_b32 v14, 3, v1\nv_add_u32 v14, {L_X1S}, v14\ns_lshl_b32 s84, {sWAVE}, 5\nv_add_u32 v13, s84, v14\nv_add_u32 v15, {L_X1S+512}, v5')
    get_mode('v7')
    g.lds_spin('v3', F_QREADY, 1, 'v7', sleep=0)
    for m in range(4): A(f'ds_read_b128 v[{96+4*m}:{99+4*m}], v6 offset:{m*64}')
    for m in range(4):
        A(f's_waitcnt lgkmcnt({3-m})')
        for T in range(4):
            r=16+16*T+4*m; d=80+4*T
            c='0' if m==0 else f'v[{d}:{d+3}]'
            A(f'v_mfma_f32_16x16x32_bf16 v[{d}:{d+3}], v[{r}:{r+3}], v[{96+4*m}:{99+4*m}], {c}')
    for T in range(1,4):
        mk = 0x000f000f << (4*T)
        A(f's_mov_b32 vcc_lo, 0x{mk:x}\ns_mov_b32 vcc_hi, 0x{mk:x}')
        for r in range(4): A(f'v_cndmask_b32 v{80+r}, v{80+r}, v{80+4*T+r}, vcc')
    g.rnd2(80,81,8); g.rnd2(82,83,9)
    for r in range(4): A(f'v_mul_f32 v{80+r}, 0x{SCALE:x}, v{80+r}')
    g.rnd2(80,81,8); g.rnd2(82,83,9)
    A('v_max3_f32 v10, v80, v81, v82\nv_max_f32 v10, v10, v83')
    A('v_max_f32_dpp v10, v10, v10 row_ror:4 row_mask:0xf bank_mask:0xf\nv_max_f32_dpp v10, v10, v10 row_ror:8 row_mask:0xf bank_mask:0xf')
    g.red_rows('v_max_f32', [10], [12])
    for r in range(4): A(f'v_sub_f32 v{84+r}, v{80+r}, v10')
    for r in range(4): A(f'v_mul_f32 v{84+r}, 0x{LOG2E:x}, v{84+r}')
    for r in range(4): A(f'v_exp_f32 v{84+r}, v{84+r}')
    A('v_add_f32 v11, v84, v85\nv_add_f32 v12, v86, v87\nv_add_f32 v11, v11, v12')
    A('v_add_f32_dpp v11, v11, v11 row_ror:4 row_mask:0xf bank_mask:0xf\nv_add_f32_dpp v11, v11, v11 row_ror:8 row_mask:0xf bank_mask:0xf')
    g.red_rows('v_add_f32', [11], [12])
    A('s_mov_b64 exec, 15\nds_write_b64 v13, v[10:11]\ns_mov_b64 exec, -1\ns_waitcnt lgkmcnt(0)\ns_barrier')
    A('ds_read_b64 v[24:25], v14\ns_waitcnt lgkmcnt(0)')
    A('v_max_f32_dpp v10, v24, v24 row_ror:4 row_mask:0xf bank_mask:0xf\nv_max_f32_dpp v10, v10, v10 row_ror:8 row_mask:0xf bank_mask:0xf')
    g.red_rows('v_max_f32', [10], [12])
    A(f'v_sub_f32 v24, v24, v10\nv_mul_f32 v24, 0x{LOG2E:x}, v24\nv_exp_f32 v24, v24\nv_mul_f32 v11, v24, v25')
    A('v_add_f32_dpp v11, v11, v11 row_ror:4 row_mask:0xf bank_mask:0xf\nv_add_f32_dpp v11, v11, v11 row_ror:8 row_mask:0xf bank_mask:0xf')
    g.red_rows('v_add_f32', [11], [12])
    g.nosent([10,11])
    g.stampw(15,19)
    A(f's_cmp_lg_u32 {sWAVE}, 0\ns_cbranch_scc1 L_STW')
    A('s_mov_b64 exec, 15')
    g.pub(f'buffer_store_dwordx2 v[10:11], v5, {RWL}, s83 offen', True)
    A('s_mov_b64 exec, -1')
    g.poll([f'buffer_load_dwordx2 v[26:27], v5, {RWL}, s82 offen sc1'], [26,27], 'v12', sleep=o.stsleep)
    A(f'ds_write_b64 v15, v[26:27]\ns_waitcnt lgkmcnt(0)')
    A('L_STW:\ns_barrier')
    A('ds_read_b64 v[26:27], v15\ns_waitcnt lgkmcnt(0)')
    A('v_max_f32 v28, v10, v26')
    A(f'v_sub_f32 v24, v10, v28\nv_sub_f32 v26, v26, v28\nv_mul_f32 v24, 0x{LOG2E:x}, v24\nv_mul_f32 v26, 0x{LOG2E:x}, v26\nv_exp_f32 v24, v24\nv_exp_f32 v26, v26')
    for r in range(4): A(f'v_sub_f32 v{80+r}, v{80+r}, v28')
    A('v_mul_f32 v11, v24, v11\nv_mul_f32 v27, v26, v27\nv_add_f32 v11, v11, v27')
    for r in range(4): A(f'v_mul_f32 v{80+r}, 0x{LOG2E:x}, v{80+r}')
    for r in range(4): A(f'v_exp_f32 v{80+r}, v{80+r}')
    A('v_rcp_f32 v12, v11\nv_fma_f32 v13, -v11, v12, 1.0\nv_fmac_f32 v12, v13, v12')
    for r in range(4): A(f'v_mul_f32 v{80+r}, v{80+r}, v12')
    A('v_cvt_pk_bf16_f32 v8, v80, v81\nv_cvt_pk_bf16_f32 v9, v82, v83')
    g.nosent([8,9])
    g.pub(f'buffer_store_dwordx2 v[8:9], v4, {RWL}, s81 offen', True)
    g.stampw(15,7)
    A(f's_cmp_eq_u32 {sJ}, 3\ns_cbranch_scc1 L_KW3')
    g.dma_voff('v12','v13',1024,'v14')
    A(f's_lshl_b32 s82, {sG}, 19\ns_lshl_b32 s83, {sWAVE}, 15\ns_add_u32 s82, s82, s83\ns_lshl_b32 s84, {sB}, 7\ns_add_u32 s82, s82, s84\ns_lshl_b32 s83, {sWAVE}, 12')
    blk_dma(RW1, 4, 's82', 1024, 's83', 'v12', 'v13')
    if not o.dnlate:
        A(f's_cmp_eq_u32 {sG}, 7\ns_cbranch_scc1 L_KWD0')
        A(f's_lshl_b32 s82, {sG}, 18\ns_lshl_b32 s83, {sWAVE}, 14\ns_add_u32 s82, s82, s83\ns_add_u32 s82, s82, s84\ns_lshl_b32 s83, {sWAVE}, 11\ns_add_u32 s83, s83, {L_W2}')
        blk_dma(RWD, 2, 's82', 1024, 's83', 'v12', 'v13')
        A('s_waitcnt vmcnt(2)\ns_branch L_KWD1\nL_KWD0:\ns_waitcnt vmcnt(0)\nL_KWD1:\ns_barrier')
    else:
        A('s_waitcnt vmcnt(0)\ns_barrier')
    A(f's_and_b32 s82, s2, 63\ns_and_b32 s84, {sWAVE}, 3')
    A(f's_cmp_ge_u32 {sWAVE}, 12\ns_cbranch_scc1 L_WO\ns_cmp_ge_u32 {sWAVE}, 8\ns_cbranch_scc1 L_DN')
    A(f'v_lshlrev_b32 v4, 4, v1\ns_lshl_b32 s80, {sG}, 13\ns_lshl_b32 s81, {sWAVE}, 10\ns_add_u32 s80, s80, s81\ns_add_u32 s85, s80, {GU}\ns_add_u32 s80, s80, {OO}')
    A(f's_mul_i32 s81, {sWAVE}, 1056\ns_add_u32 s81, s81, {L_ACT}\nv_add_u32 v5, s81, v4')
    A(f'v_bfe_u32 v7, v1, 1, 3\nv_mul_u32_u24 v6, 544, v7\nv_lshrrev_b32 v7, 4, v1\nv_lshl_add_u32 v6, v7, 5, v6\nv_and_b32 v7, 1, v1\nv_lshl_add_u32 v6, v7, 4, v6\ns_lshl_b32 s82, {sWAVE}, 7\ns_add_u32 s82, s82, {L_ACT2}\nv_add_u32 v6, s82, v6\ns_add_u32 s86, s85, 4096')
    g.poll([f'buffer_load_dwordx4 v[16:19], v4, {RWL}, s80 offen sc1'], range(16,20), 'v12', sleep=o.osleep)
    A('ds_write_b128 v5, v[16:19]\ns_waitcnt lgkmcnt(0)\ns_barrier')
    A(f's_cmp_ge_u32 {sWAVE}, 4\ns_cbranch_scc1 L_END\ns_cmp_eq_u32 {sG}, 7\ns_cbranch_scc1 L_END')
    g.poll([f'buffer_load_dwordx4 v[16:19], v4, {RWL}, s85 offen sc1', f'buffer_load_dwordx4 v[20:23], v4, {RWL}, s86 offen sc1'], range(16,24), 'v12')
    for i in range(8): g.unpack(16+i, 32+2*i, 33+2*i)
    for i in range(8): A(f'v_mul_f32 v{32+i}, v{32+i}, v{40+i}')
    for i in range(4): A(f'v_cvt_pk_bf16_f32 v{16+i}, v{32+2*i}, v{33+2*i}')
    A('ds_write_b128 v6, v[16:19]\ns_waitcnt lgkmcnt(0)\ns_barrier')
    A('s_branch L_END')
    A('L_WO:')
    g.tr_addr('v5', 's84', L_W, 'v6', 'v7')
    g.tr_frags('v5', 16, [4*((mp>>1)&3)+2*(mp>>3)+(mp&1) for mp in range(16)])
    g.act_addr('v6', L_ACT, 1056, 'v7')
    A(f's_lshl_b32 s83, s82, 11\ns_lshl_b32 s85, s84, 9\ns_add_u32 s83, s83, s85\ns_add_u32 s83, s83, {WP}')
    g.part_store_addr('v4', 's83', 'v7')
    A('s_waitcnt vmcnt(0) lgkmcnt(0)\ns_barrier')
    gemv16(16, 'v6', 8, [80,96])
    g.nosent(range(8,12))
    A(HALF)
    A(f'buffer_store_dwordx4 v[8:11], v4, {RWS}, 0 offen sc1')
    A('s_mov_b64 exec, -1')
    g.stampw(12,11)
    if o.stamps:
        A(f's_cmp_lg_u32 {sG}, 7\ns_cbranch_scc1 L_END\ns_cmp_eq_u32 {sWAVE}, 12\ns_cbranch_scc1 L_DUMP')
    A('s_branch L_END')
    A('L_DN:')
    g.tr_addr('v5', 's84', L_W2, 'v6', 'v7')
    g.act_addr('v6', L_ACT2, 544, 'v7')
    A(f's_lshl_b32 s83, s82, 11\ns_lshl_b32 s85, s84, 9\ns_add_u32 s83, s83, s85\ns_add_u32 s83, s83, {DP}')
    g.part_store_addr('v4', 's83', 'v7')
    A('s_waitcnt vmcnt(0)\ns_barrier')
    A(f's_cmp_eq_u32 {sG}, 7\ns_cbranch_scc1 L_END')
    if o.dnlate:
        A(f's_lshl_b32 s82, {sG}, 18\ns_lshl_b32 s83, s84, 16\ns_add_u32 s82, s82, s83\ns_lshl_b32 s83, {sB}, 7\ns_add_u32 s82, s82, s83\ns_lshl_b32 s83, s84, 13\ns_add_u32 s83, s83, {L_W2}')
        blk_dma(RWD, 8, 's82', 1024, 's83', 'v12', 'v13')
        A('s_waitcnt vmcnt(0)')
        lds_inc(F_SUB, 'v7')
        g.lds_spin('v3', F_SUB, 4, 'v7', sleep=0)
    g.tr_frags('v5', 16, range(8))
    A('s_waitcnt lgkmcnt(0)\ns_barrier')
    g.gemv_tile(16, 8, 'v6', 48, 8)
    g.nosent(range(8,12))
    A(HALF)
    A(f'buffer_store_dwordx4 v[8:11], v4, {RWS}, 0 offen sc1')
    A('s_mov_b64 exec, -1')
    g.stampw(8,14)
    if o.stamps:
        A(f's_cmp_eq_u32 {sWAVE}, 8\ns_cbranch_scc1 L_DUMP')
    A('s_branch L_END')
    A('L_KW3:')
    if o.stamps:
        A(f's_cmp_lg_u32 {sG}, 7\ns_cbranch_scc1 L_KW3a\ns_cmp_eq_u32 {sWAVE}, 15\ns_cbranch_scc1 L_DUMP\ns_branch L_END\nL_KW3a:')
    else:
        A(f's_cmp_eq_u32 {sG}, 7\ns_cbranch_scc1 L_END')
    g.dma_voff('v12','v13',3584,'v14')
    A(f's_mul_i32 s82, {sWAVE}, {32*3584}\ns_lshl_b32 s83, {sG}, 2\ns_and_b32 s84, {sB}, 3\ns_add_u32 s83, s83, s84\ns_lshl_b32 s83, s83, 7\ns_add_u32 s82, s82, s83\ns_lshl_b32 s83, {sWAVE}, 12')
    if o.gulate:
        A(f's_cmp_lg_u32 {sWAVE}, 0\ns_cbranch_scc1 L_GUW\ns_lshl_b32 s80, {sPAIR}, 10\ns_add_u32 s80, s80, {OO}\nv_mov_b32 v5, 0')
        g.poll([f'buffer_load_dword v16, v5, {RWL}, s80 offen sc1'], [16], 'v7', sleep=4)
        A('L_GUW:\ns_barrier')
    blk_dma(RW1, 4, 's82', 3584, 's83', 'v12', 'v13')
    A('s_waitcnt vmcnt(0)\ns_barrier')
    A(f's_cmp_ge_u32 {sWAVE}, 12\ns_cbranch_scc1 L_GU\ns_cmp_ge_u32 {sWAVE}, 8\ns_cbranch_scc1 L_END')
    A(f'v_lshlrev_b32 v4, 4, v1\ns_lshl_b32 s80, {sWAVE}, 12\ns_add_u32 s80, s80, {MT}\ns_add_u32 s81, s80, {MT2-MT}')
    A(f'ds_read_b32 v13, v3 offset:{F_E}\ns_waitcnt lgkmcnt(0)')
    xpoll([f'buffer_load_dwordx4 v[48:51], v4, {RWS}, s80 offen offset:1024 sc1', f'buffer_load_dwordx4 v[52:55], v4, {RWS}, s80 offen offset:2048 sc1',
           f'buffer_load_dwordx4 v[56:59], v4, {RWS}, s81 offen offset:1024 sc1', f'buffer_load_dwordx4 v[60:63], v4, {RWS}, s81 offen offset:2048 sc1'], 48, 56, 8, 'v13', 'v12', sleep=8)
    for i in range(8): g.unpack(48+i, 32+2*i, 33+2*i)
    for i in range(8): A(f'v_add_f32 v{40+i}, 1.0, v{40+i}')
    for i in range(4): g.rnd2(40+2*i,41+2*i,13)
    A(f's_mul_i32 s81, {sWAVE}, 1056\ns_add_u32 s81, s81, {L_ACT}\nv_add_u32 v5, s81, v4')
    A(f'v_lshrrev_b32 v7, 3, v1\nv_lshlrev_b32 v4, 10, v7\nv_and_b32 v7, 7, v1\nv_lshl_add_u32 v4, v7, 4, v4')
    A(f's_lshl_b32 s80, {sG}, 13\ns_lshl_b32 s81, {sWAVE}, 7\ns_add_u32 s80, s80, s81\ns_add_u32 s80, s80, {X1}')
    g.poll([f'buffer_load_dwordx4 v[8:11], v4, {RWL}, s80 offen sc1'], range(8,12), 'v12', sleep=o.osleep)
    g.ln8(8, 16, 48)
    for i in range(8): A(f'v_mul_f32 v{16+i}, v{16+i}, v{40+i}')
    for i in range(4): g.rnd2(16+2*i,17+2*i,48+i)
    for i in range(8): A(f'v_add_f32 v{16+i}, v{16+i}, v{32+i}')
    for i in range(4): A(f'v_cvt_pk_bf16_f32 v{8+i}, v{16+2*i}, v{17+2*i}')
    A('ds_write_b128 v5, v[8:11]\ns_waitcnt lgkmcnt(0)\ns_barrier')
    A('s_branch L_END')
    A('L_GU:')
    A(f's_and_b32 s84, {sWAVE}, 3')
    g.tr_addr('v5', 's84', L_W, 'v6', 'v7')
    g.tr_frags('v5', 16, range(16))
    g.act_addr('v6', L_ACT, 1056, 'v7')
    A(f's_lshl_b32 s83, {sPAIR}, 10\ns_lshl_b32 s85, s84, 8\ns_add_u32 s83, s83, s85\ns_add_u32 s83, s83, {GU}')
    A('v_and_b32 v7, 15, v1\nv_lshlrev_b32 v4, 5, v7\nv_lshrrev_b32 v7, 4, v1\nv_lshl_add_u32 v4, v7, 3, v4')
    A('s_waitcnt lgkmcnt(0)\ns_barrier')
    gemv16(16, 'v6', 8, [80,96])
    g.rnd2(8,9,12); g.rnd2(10,11,13)
    A(f's_cmp_ge_u32 {sB}, 4\ns_cbranch_scc1 L_T2U')
    g.silu_inplace([8,9,10,11],[16,17,18,19])
    A('v_cvt_pk_bf16_f32 v12, v8, v9\nv_cvt_pk_bf16_f32 v13, v10, v11')
    A('L_T2U:')
    g.nosent([12,13])
    A(HALF)
    g.pub(f'buffer_store_dwordx2 v[12:13], v4, {RWL}, s83 offen', True)
    A('s_mov_b64 exec, -1')
    g.stampw(12,13)
    if o.stamps:
        A(f's_cmp_lg_u32 {sWAVE}, 12\ns_cbranch_scc1 L_END')
    A('L_DUMP:')
    if o.stamps:
        A(f'v_lshlrev_b32 v4, 2, v1\nv_add_u32 v5, {L_STAMP}, v4\nds_read_b32 v6, v5\nv_mov_b32 v7, 0\nv_lshlrev_b32 v4, 3, v1')
        A(f's_add_u32 s80, s58, 0x{STAMP:x}\ns_addc_u32 s81, s59, 0\ns_lshl_b32 s82, s2, 8\ns_add_u32 s80, s80, s82\ns_addc_u32 s81, s81, 0')
        A('s_waitcnt lgkmcnt(0)\ns_mov_b32 exec_hi, 0\nglobal_store_dwordx2 v4, v[6:7], s[80:81]')
        if o.dbgst:
            A('s_mov_b64 exec, -1\nv_mov_b32 v8, 0')
            for i,sl in enumerate(o.dbgst): A(f'v_writelane_b32 v8, {sl}, {i+1}')
            A(f'v_lshlrev_b32 v8, 2, v8\nv_add_u32 v8, {L_STAMP}, v8\nds_read_b32 v9, v8\nds_read_b32 v10, v3 offset:{F_E}\nv_lshlrev_b32 v11, 2, v1\ns_waitcnt lgkmcnt(0)')
            A(f'v_cmp_ne_u32 vcc, 0, v9\nv_sub_u32 v9, v9, v10\nv_add_u32 v9, 1000, v9\ns_and_b32 exec_lo, vcc_lo, 0xfffe\ns_mov_b32 exec_hi, 0\ns_cbranch_execz L_END')
            A(f'buffer_atomic_umax v9, v11, {RDBG}, 0 offen sc1')
    A('L_END:\ns_endpgm\nL_CODE_END:')
    return g.L

def emit(o, fname):
    body = build(o)
    body, n = fix_hazards(body)
    hdr = open('cdna_kernels/'+NAME+'.s.ref').read().split('; Override launch')[0]
    out = hdr + f'; @launch grid=(256,1,1) block=(1024,1,1) lds={LDS_SIZE}\n'
    out += f'.amdgcn_target "amdgcn-amd-amdhsa--gfx950"\n.text\n.globl {NAME}_kernel\n.p2align 8\n.type {NAME}_kernel,@function\n{NAME}_kernel:\n'
    out += '\n'.join(('' if l.endswith(':') else '    ')+l for l in body) + '\n'
    out += f'''.section .rodata,"a"
.p2align 6
.amdhsa_kernel {NAME}_kernel
  .amdhsa_next_free_vgpr 128
  .amdhsa_next_free_sgpr 102
  .amdhsa_accum_offset 128
  .amdhsa_group_segment_fixed_size 0
  .amdhsa_kernarg_size 112
  .amdhsa_user_sgpr_count 2
  .amdhsa_user_sgpr_kernarg_segment_ptr 1
  .amdhsa_system_sgpr_workgroup_id_x 1
  .amdhsa_float_denorm_mode_32 3
  .amdhsa_float_denorm_mode_16_64 3
.end_amdhsa_kernel
'''
    open(fname,'w').write(out)
    print(fname, len(body), 'lines', n, 'nops inserted')

if __name__=='__main__':
    ap=argparse.ArgumentParser()
    ap.add_argument('-o', default='k.s')
    ap.add_argument('--stamps', action='store_true')
    ap.add_argument('--local', action='store_true')
    for k,d in dict(codepf=1,mpdelay=0,mpsleep=2,fldelay=40,hdelay=8,mtearly=0,pgate=12,psleep=4,thr=0,thrw=4,qdelay=8,qsleep=2,stsleep=0,osleep=0,gulate=1,dnlate=1).items():
        ap.add_argument('--'+k, type=int, default=d)
    ap.add_argument('--dearly', type=lambda x:[int(t) for t in x.split(',') if t], default=[4,5,6,7])
    ap.add_argument('--cearly', type=lambda x:[int(t) for t in x.split(',') if t], default=[])
    ap.add_argument('--cpre', type=lambda x:[int(t) for t in x.split(',') if t], default=[])
    ap.add_argument('--dbgst', type=lambda x:[int(t) for t in x.split(',') if t], default=[])
    o=ap.parse_args()
    emit(o, o.o)
```

```python
import sys, argparse
from asmlib import fix_hazards
NAME='adaLN_cond__sliding_block_cached__swiglu_ffn__decode'

PP=0x000000; OO=0x100000; ST=0x110000; X1=0x120000; GU=0x130000; LREG=0x140000; GOFF=0x180000
QF=0x300000; QF2=0x310000; HH=0x320000; HH2=0x322000; MT=0x400000; MT2=0x420000; WP=0x440000; DP=0x460000
MP=0x480000; MP2=0x4A0000; FL=0x4C0000; FLB=0x4C8000; WS_USED=0x4D0000
STAMP=0x10000000
L_W=0x0; L_W2=0x10000; L_WM=0x10000; L_KS=0x0; KS_SZ=4352
L_OP=0x18000
L_Y=0x14000; L_H=0x18000
L_ACT=0x20000; L_ACT2=0x18000; L_Q=0x22200; L_FLAGS=0x22800; L_X1S=0x22900; L_STAMP=0x23100; LDS_SIZE=0x23400
F_QREADY=4; F_MODE=8; F_E=12; F_SUB=16; F_Y=20; F_C1=24; F_C3=28; F_CLR=32; F_MOK=36; F_R=40; F_GO=44; F_VGO=48; F_KL=52
sWAVE,sG,sB,sJ,sMODE = 's3','s4','s5','s6','s7'
RK,RV,RWS,RW1,RWM,RC,RX,ROUT,RDBG = 's[8:11]','s[12:15]','s[16:19]','s[20:23]','s[24:27]','s[28:31]','s[60:63]','s[64:67]','s[68:71]'
RWL='s[92:95]'
sTO='s72'
sPAIR='s73'
sW8='s74'
LOG2E=0x3fb8aa3b
SCALE=0x3db504f3

class G:
    def __init__(self, opt):
        self.L=[]; self.o=opt; self.nl=0; self.nstamp=0
    def __call__(self, s):
        for l in s.split('\n'):
            l=l.strip()
            if l: self.L.append(l)
    def lab(self, p='L'):
        self.nl+=1; return f'{p}_{self.nl}'
    def stamp(self, slot, va='v126', vb='v127'):
        if not self.o.stamps: return
        self(f's_memrealtime s[98:99]\ns_waitcnt lgkmcnt(0)\nv_mov_b32 {va}, {L_STAMP+4*slot}\nv_mov_b32 {vb}, s98\nds_write_b32 {va}, {vb}\ns_waitcnt lgkmcnt(0)')
    def stampw(self, wave, slot):
        if not self.o.stamps: return
        l=self.lab('NSW')
        self(f's_cmp_lg_u32 {sWAVE}, {wave}\ns_cbranch_scc1 {l}')
        self.stamp(slot)
        self(f'{l}:')
    def timeout(self, done):
        self(f's_cmp_eq_u32 {sTO}, 0\ns_cbranch_scc1 {done}\ns_sub_u32 {sTO}, {sTO}, 1')
    def lds_spin(self, vflag, off, target, vt, st='s76', sleep=1):
        a=self.lab('SPIN'); d=self.lab('SPD')
        self(f'{a}:\nds_read_b32 {vt}, {vflag} offset:{off}\ns_waitcnt lgkmcnt(0)\nv_readfirstlane_b32 {st}, {vt}\ns_cmp_ge_u32 {st}, {target}\ns_cbranch_scc1 {d}')
        self.timeout(d)
        if sleep: self(f's_sleep {sleep}')
        self(f's_branch {a}\n{d}:')
    def lds_set(self, vflag, off, val, vt):
        self(f'v_mov_b32 {vt}, {val}\nds_write_b32 {vflag}, {vt} offset:{off}')
    def poll(self, loads, regs, vt, sleep=0):
        a=self.lab('POLL'); d=self.lab('PLD')
        self(f'{a}:')
        for l in loads: self(l)
        self('s_waitcnt vmcnt(0)')
        self.chk(regs, vt)
        self(f's_cbranch_vccz {d}')
        self.timeout(d)
        if sleep: self(f's_sleep {sleep}')
        self(f's_branch {a}\n{d}:')
    def chk(self, regs, vt):
        r=list(regs)
        if len(r)==1:
            self(f'v_cmp_eq_u32 vcc, -1, v{r[0]}'); return
        if len(r)==2:
            self(f'v_max_u32 {vt}, v{r[0]}, v{r[1]}')
        else:
            self(f'v_max3_u32 {vt}, v{r[0]}, v{r[1]}, v{r[2]}')
            r=r[3:]
            while len(r)>=2:
                self(f'v_max3_u32 {vt}, {vt}, v{r[0]}, v{r[1]}'); r=r[2:]
            if r: self(f'v_max_u32 {vt}, {vt}, v{r[0]}')
        self(f'v_cmp_eq_u32 vcc, -1, {vt}')
    def nosent(self, regs):
        for r in regs: self(f'v_min_u32 v{r}, -2, v{r}')
    def pub(self, instr, local_ok=False):
        if local_ok:
            a=self.lab('PUBL'); d=self.lab('PUBD')
            self(f's_cmp_eq_u32 {sMODE}, 1\ns_cbranch_scc1 {a}\n{instr} sc1\ns_branch {d}\n{a}:\n{instr}\n{d}:')
        else:
            self(instr+' sc1')
    def unpack(self, src, dlo, dhi):
        self(f'v_lshlrev_b32 v{dlo}, 16, v{src}\nv_and_b32 v{dhi}, 0xffff0000, v{src}')
    def rnd2(self, a, b, t):
        self(f'v_cvt_pk_bf16_f32 v{t}, v{a}, v{b}')
        self.unpack(t, a, b)
    def wave_red(self, op, regs, tmps):
        for mod in ('quad_perm:[1,0,3,2]','quad_perm:[2,3,0,1]','row_half_mirror','row_mirror'):
            for r in regs: self(f'{op}_dpp v{r}, v{r}, v{r} {mod} row_mask:0xf bank_mask:0xf')
        self.red_rows(op, regs, tmps)
    def red_rows(self, op, regs, tmps):
        for sw in ('v_permlane16_swap_b32','v_permlane32_swap_b32'):
            for r,t in zip(regs,tmps): self(f'v_mov_b32 v{t}, v{r}')
            for r,t in zip(regs,tmps): self(f'{sw} v{r}, v{t}')
            for r,t in zip(regs,tmps): self(f'{op} v{r}, v{r}, v{t}')
    def silu_inplace(self, xs, ts):
        self(f's_mov_b32 s77, 0x{(LOG2E|0x80000000):x}')
        for x,t in zip(xs,ts): self(f'v_mul_f32 v{t}, s77, v{x}')
        for x,t in zip(xs,ts): self(f'v_exp_f32 v{t}, v{t}')
        for x,t in zip(xs,ts): self(f'v_add_f32 v{t}, 1.0, v{t}')
        for x,t in zip(xs,ts): self(f'v_rcp_f32 v{t}, v{t}')
        for x,t in zip(xs,ts): self(f'v_mul_f32 v{x}, v{x}, v{t}')
    def silu8(self, src, x0, t0):
        for i in range(4): self.unpack(src+i, x0+2*i, x0+2*i+1)
        self.silu_inplace(list(range(x0,x0+8)), list(range(t0,t0+8)))
        for i in range(4): self(f'v_cvt_pk_bf16_f32 v{src+i}, v{x0+2*i}, v{x0+2*i+1}')
    def ln8(self, src, x0, t0):
        X=list(range(x0,x0+8)); T=list(range(t0,t0+8)); s1,s2,u1,u2=t0+8,t0+9,t0+10,t0+11
        for i in range(4): self.unpack(src+i, x0+2*i, x0+2*i+1)
        self(f'v_readfirstlane_b32 s77, v{x0}')
        for x,t in zip(X,T): self(f'v_subrev_f32 v{t}, s77, v{x}')
        self(f'v_add_f32 v{s1}, v{T[0]}, v{T[1]}\nv_mul_f32 v{s2}, v{T[0]}, v{T[0]}')
        self(f'v_fmac_f32 v{s2}, v{T[1]}, v{T[1]}')
        for t in T[2:]:
            self(f'v_add_f32 v{s1}, v{s1}, v{t}\nv_fmac_f32 v{s2}, v{t}, v{t}')
        self.wave_red('v_add_f32', [s1,s2], [u1,u2])
        self(f'v_mul_f32 v{s1}, 0x3b000000, v{s1}\nv_mul_f32 v{s2}, 0x3b000000, v{s2}')
        self(f'v_fma_f32 v{s2}, -v{s1}, v{s1}, v{s2}\nv_max_f32 v{s2}, 0, v{s2}\nv_add_f32 v{s1}, s77, v{s1}')
        self.rnd2(s1, s2, u1)
        self(f'v_add_f32 v{s2}, 0x3727c5ac, v{s2}')
        self(f'v_cvt_pk_bf16_f32 v{u1}, v{s2}, v{s2}\nv_lshlrev_b32 v{s2}, 16, v{u1}\nv_sqrt_f32 v{s2}, v{s2}')
        self(f'v_cvt_pk_bf16_f32 v{u1}, v{s2}, v{s2}\nv_lshlrev_b32 v{s2}, 16, v{u1}\nv_rcp_f32 v{s2}, v{s2}')
        for x in X: self(f'v_sub_f32 v{x}, v{x}, v{s1}')
        for i in range(4): self.rnd2(X[2*i], X[2*i+1], T[i])
        for x in X: self(f'v_mul_f32 v{x}, v{x}, v{s2}')
        for i in range(4): self.rnd2(X[2*i], X[2*i+1], T[i])
    def dma_voff(self, ve, vo, pitch, vt):
        self(f'v_lshrrev_b32 {vt}, 3, v1\ns_mov_b32 s77, {pitch}\nv_mul_lo_u32 {ve}, {vt}, s77')
        self(f'v_bfe_u32 {vt}, v1, 4, 1\nv_lshlrev_b32 {vt}, 1, {vt}\nv_and_b32 {vo}, 7, v1\nv_xor_b32 {vt}, {vt}, {vo}\nv_lshlrev_b32 {vt}, 4, {vt}\nv_add_u32 {ve}, {ve}, {vt}\nv_xor_b32 {vo}, 64, {ve}')
    def dma(self, srd, voff, s_src, src_imm, s_lds, lds_imm, nt=True):
        self(f's_add_u32 s78, {s_src}, {src_imm}\ns_add_u32 m0, {s_lds}, {lds_imm}')
        self(f'buffer_load_dwordx4 {voff}, {srd}, s78 offen{" nt" if nt else ""} lds')
    def tr_addr(self, vd, s_ct, base, vt, vt2):
        self(f'v_lshrrev_b32 {vt}, 4, v1\nv_lshlrev_b32 {vd}, 10, {vt}\nv_and_b32 {vt}, 1, {vt}\nv_lshlrev_b32 {vt}, 1, {vt}')
        self(f'v_bfe_u32 {vt2}, v1, 3, 1\nv_or_b32 {vt}, {vt}, {vt2}\nv_xor_b32 {vt}, {s_ct}, {vt}\nv_lshl_add_u32 {vd}, {vt}, 5, {vd}')
        self(f'v_bfe_u32 {vt}, v1, 2, 2\nv_lshl_add_u32 {vd}, {vt}, 7, {vd}\nv_and_b32 {vt}, 3, v1\nv_lshl_add_u32 {vd}, {vt}, 3, {vd}\nv_add_u32 {vd}, {base}, {vd}')
    def tr_frags(self, vaddr, r0, msteps):
        for i,m in enumerate(msteps):
            self(f'ds_read_b64_tr_b16 v[{r0+4*i}:{r0+4*i+1}], {vaddr} offset:{m*4096}\nds_read_b64_tr_b16 v[{r0+4*i+2}:{r0+4*i+3}], {vaddr} offset:{m*4096+512}')
    def act_addr(self, vd, base, pitch, vt):
        self(f'v_and_b32 {vt}, 7, v1\nv_mul_u32_u24 {vd}, {pitch}, {vt}\nv_lshrrev_b32 {vt}, 4, v1\nv_lshl_add_u32 {vd}, {vt}, 4, {vd}\nv_add_u32 {vd}, {base}, {vd}')
    def gemv_tile(self, wf0, nk, vact, a0, d0):
        for m in range(nk): self(f'ds_read_b128 v[{a0+4*m}:{a0+4*m+3}], {vact} offset:{m*64}')
        for m in range(nk):
            self(f's_waitcnt lgkmcnt({min(15,nk-1-m)})')
            c = '0' if m==0 else f'v[{d0}:{d0+3}]'
            self(f'v_mfma_f32_16x16x32_bf16 v[{d0}:{d0+3}], v[{wf0+4*m}:{wf0+4*m+3}], v[{a0+4*m}:{a0+4*m+3}], {c}')
    def part_store_addr(self, vd, s_base, vt):
        self(f'v_and_b32 {vt}, 15, v1\nv_lshlrev_b32 {vd}, 6, {vt}\nv_lshrrev_b32 {vt}, 4, v1\nv_lshl_add_u32 {vd}, {vt}, 4, {vd}\nv_add_u32 {vd}, {s_base}, {vd}')

def build(o):
    g=G(o); A=g
    HALF='s_mov_b32 exec_lo, 0x00ff00ff\ns_mov_b32 exec_hi, 0x00ff00ff'
    HI8='s_mov_b32 vcc_lo, 0xff00ff00\ns_mov_b32 vcc_hi, 0xff00ff00'
    SENT='v_mov_b32 v8, -1\nv_mov_b32 v9, -1\nv_mov_b32 v10, -1\nv_mov_b32 v11, -1\nv_lshlrev_b32 v5, 4, v1'
    def lds_inc(off, vt):
        A(f'v_mov_b32 {vt}, 1\ns_mov_b64 exec, 1\nds_add_u32 v3, {vt} offset:{off}\ns_mov_b64 exec, -1')
    def xor_chk(a0, b0, n, vE, vt):
        for i in range(n): A(f'v_xor_b32 v{b0+i}, v{b0+i}, v{a0+i}')
        A(f'v_xor_b32 {vt}, v{b0}, {vE}')
        for i in range(1,n): A(f'v_bitop3_b32 {vt}, {vt}, v{b0+i}, {vE} bitop3:0xf6')
        A(f'v_cmp_ne_u32 vcc, 0, {vt}')
    def xpoll(loads, a0, b0, n, vE, vt, sleep=0):
        a=g.lab('XP'); d=g.lab('XPD')
        A(f'{a}:')
        for l in loads: A(l)
        A('s_waitcnt vmcnt(0)')
        xor_chk(a0,b0,n,vE,vt)
        A(f's_cbranch_vccz {d}')
        g.timeout(d)
        if sleep: A(f's_sleep {sleep}')
        A(f's_branch {a}\n{d}:')
    def get_E(vd): g.lds_spin('v3', F_E, 1, vd, sleep=1)
    def pair_prep(vaddr, delta, vE, vEm, vt):
        A(HI8)
        A(f'v_mov_b32 {vt}, {delta}\nv_cndmask_b32 {vt}, 0, {vt}, vcc\nv_add_u32 {vaddr}, {vaddr}, {vt}\nv_cndmask_b32 {vEm}, 0, {vE}, vcc')
    def get_mode(vt):
        g.lds_spin('v3', F_MOK, 1, vt, sleep=1)
        A(f'ds_read_b32 {vt}, v3 offset:{F_MODE}\ns_waitcnt lgkmcnt(0)')
        A(f'v_readfirstlane_b32 {sMODE}, {vt}\ns_cmp_eq_u32 {sMODE}, 1\ns_cselect_b64 s[92:93], s[58:59], s[100:101]')
    def blk_dma(srd, n, s_src, pitch, s_lds, ve, vo):
        for i in range(n): g.dma(srd, vo if i&1 else ve, s_src, i*8*pitch, s_lds, i*1024)
    def gemv16(wf, vact, d, ab, order=None):
        def rd(gq):
            for m in range(4): A(f'ds_read_b128 v[{ab[gq&1]+4*m}:{ab[gq&1]+4*m+3}], {vact} offset:{(4*gq+m)*64}')
        rd(0); rd(1)
        for gq in range(4):
            for m in range(4):
                A(f's_waitcnt lgkmcnt({(4 if gq<3 else 0)+3-m})')
                c='0' if (gq==0 and m==0) else f'v[{d}:{d+3}]'
                A(f'v_mfma_f32_16x16x32_bf16 v[{d}:{d+3}], v[{wf+16*gq+4*m}:{wf+16*gq+4*m+3}], v[{ab[gq&1]+4*m}:{ab[gq&1]+4*m+3}], {c}')
            if gq<2: rd(gq+2)
    def clear_all_local(fl):
        A(SENT)
        A(f's_cmp_ge_u32 {sJ}, 2\ns_cbranch_scc1 L_CAK')
        A(f's_lshl_b32 s80, {sPAIR}, 10\ns_lshl_b32 s81, {sJ}, 9\ns_add_u32 s81, s81, s80\ns_add_u32 s81, s81, {OO}\ns_mov_b32 exec_hi, 0')
        A(f'buffer_store_dwordx4 v[8:11], v5, {RWL}, s81 offen{fl}\ns_mov_b64 exec, -1')
        A(f's_cmp_lg_u32 {sJ}, 0\ns_cbranch_scc1 L_CAD\ns_add_u32 s80, s80, {X1}')
        A(f'buffer_store_dwordx4 v[8:11], v5, {RWL}, s80 offen{fl}\ns_branch L_CAD')
        A('L_CAK:')
        A(f's_lshl_b32 s80, {sPAIR}, 14\ns_and_b32 s81, {sJ}, 1\ns_lshl_b32 s82, s81, 13\ns_add_u32 s80, s80, s82')
        for i in range(8):
            if i==4: A('s_add_u32 s80, s80, 4096')
            A(f'buffer_store_dwordx4 v[8:11], v5, {RWL}, s80 offen offset:{(i%4)*1024}{fl}')
        A(f's_lshl_b32 s80, {sPAIR}, 10\ns_lshl_b32 s82, s81, 9\ns_add_u32 s82, s82, s80\ns_add_u32 s82, s82, {ST}\ns_mov_b32 exec_hi, 0')
        A(f'buffer_store_dwordx4 v[8:11], v5, {RWL}, s82 offen{fl}\ns_mov_b64 exec, -1')
        A(f's_cmp_lg_u32 {sJ}, 3\ns_cbranch_scc1 L_CAD\ns_add_u32 s80, s80, {GU}')
        A(f'buffer_store_dwordx4 v[8:11], v5, {RWL}, s80 offen{fl}')
        A('L_CAD:')

    A(f"""s_cmp_ge_u32 s2, 256
s_cbranch_scc1 L_END
s_load_dwordx16 s[32:47], s[0:1], 0
s_load_dwordx8 s[48:55], s[0:1], 64
s_load_dwordx4 s[56:59], s[0:1], 96
v_and_b32 v1, 63, v0
v_lshrrev_b32 v2, 6, v0
v_readfirstlane_b32 {sWAVE}, v2
s_and_b32 {sG}, s2, 7
s_bfe_u32 {sB}, s2, 0x30003
s_lshr_b32 {sJ}, s2, 6
s_mov_b32 {sMODE}, 0
s_mov_b32 {sTO}, 0x200000
s_lshl_b32 {sPAIR}, {sG}, 3
s_add_u32 {sPAIR}, {sPAIR}, {sB}
s_and_b32 {sW8}, {sWAVE}, 7
v_mov_b32 v3, {L_FLAGS}
v_lshl_add_u32 v4, v1, 2, v3
v_mov_b32 v5, 0
s_cmp_lg_u32 {sWAVE}, 0
s_cbranch_scc1 L_NOINIT
ds_write_b32 v4, v5""")
    if o.stamps: A(f'ds_write_b32 v4, v5 offset:{L_STAMP-L_FLAGS}')
    A(f"""L_NOINIT:
s_lshl_b32 s76, {sB}, 24
s_lshl_b32 s77, {sG}, 21
s_add_u32 s76, s76, s77
s_add_u32 s76, s76, 0x180000
s_mov_b32 s10, 0x80000
s_mov_b32 s11, 0x20000
s_mov_b32 s14, 0x1c0000
s_mov_b32 s15, 0x20000
s_mov_b32 s18, {WS_USED}
s_mov_b32 s19, 0x20000
s_mov_b32 s26, 0x300000
s_mov_b32 s27, 0x20000
s_mov_b32 s30, 0x2000
s_mov_b32 s31, 0x20000
s_mov_b32 s62, 0x2000
s_mov_b32 s63, 0x20000
s_mov_b32 s66, 0x2000
s_mov_b32 s67, 0x20000
s_mov_b32 s70, 0x100
s_mov_b32 s71, 0x20000
s_mov_b32 s22, 0x400000
s_mov_b32 s23, 0x20000
s_mov_b32 s94, {LREG}
s_mov_b32 s95, 0x20000
s_cmp_eq_u32 {sJ}, 3
s_cselect_b32 s22, 0x1c0000, s22
s_waitcnt lgkmcnt(0)
s_cmp_ge_u32 {sJ}, 2
s_cselect_b64 s[8:9], s[34:35], s[36:37]
s_add_u32 s8, s8, s76
s_addc_u32 s9, s9, 0
s_mov_b64 s[12:13], s[48:49]
s_mov_b64 s[16:17], s[58:59]
s_mov_b64 s[24:25], s[52:53]
s_mov_b64 s[28:29], s[50:51]
s_mov_b64 s[60:61], s[32:33]
s_mov_b64 s[64:65], s[54:55]
s_mov_b64 s[68:69], s[56:57]
s_mov_b64 s[20:21], s[38:39]
s_cmp_eq_u32 {sJ}, 2
s_cselect_b64 s[20:21], s[40:41], s[20:21]
s_cmp_lt_u32 {sB}, 4
s_cselect_b64 s[76:77], s[44:45], s[46:47]
s_cmp_eq_u32 {sJ}, 3
s_cselect_b64 s[20:21], s[76:77], s[20:21]
s_mov_b64 s[92:93], s[58:59]
s_add_u32 s100, s58, {GOFF}
s_addc_u32 s101, s59, 0""")
    RKV=RK; RWD=RV
    A(f's_cmp_lg_u32 s2, 0\ns_cbranch_scc1 L_NOE\ns_cmp_lg_u32 {sWAVE}, 0\ns_cbranch_scc1 L_NOE')
    A(f's_memrealtime s[96:97]\ns_waitcnt lgkmcnt(0)\ns_or_b32 s76, s96, 1\nv_mov_b32 v5, s76\nv_lshlrev_b32 v6, 7, v1\ns_mov_b64 exec, 3\nbuffer_store_dword v5, v6, {RDBG}, 0 offen sc1\ns_mov_b64 exec, -1')
    A('L_NOE:')
    A(f's_cmp_ge_u32 {sJ}, 2\ns_cbranch_scc1 L_PREK')
    A(f's_cmp_eq_u32 {sWAVE}, 13\ns_cbranch_scc1 L_PRE13\ns_cmp_eq_u32 {sWAVE}, 15\ns_cbranch_scc1 L_PREV15')
    A(f's_cmp_lg_u32 {sJ}, 0\ns_cbranch_scc1 L_B0\ns_cmp_ge_u32 {sWAVE}, 12\ns_cbranch_scc1 L_B0\ns_cmp_ge_u32 {sWAVE}, 8\ns_cbranch_scc1 L_PREC')
    A(f's_and_b32 s80, s2, 15\ns_lshr_b32 s81, s2, 4')
    g.dma_voff('v12','v13',6144,'v14')
    A(f's_lshl_b32 s84, s81, 7\ns_lshl_b32 s85, {sWAVE}, 4\ns_add_u32 s84, s84, s85\ns_mul_i32 s84, s84, 6144\ns_lshl_b32 s85, s80, 7\ns_add_u32 s84, s84, s85')
    A(f's_lshl_b32 s85, {sWAVE}, 11\ns_add_u32 s85, s85, {L_WM}')
    blk_dma(RWM, 2, 's84', 6144, 's85', 'v12', 'v13')
    A(f's_cmp_lt_u32 {sWAVE}, 4\ns_cbranch_scc1 L_B0')
    A(f'v_lshlrev_b32 v4, 4, v1\ns_and_b32 s87, {sWAVE}, 3\ns_lshl_b32 s87, s87, 11')
    A(f'buffer_load_dwordx4 v[88:91], v4, {RX}, s87 offen\nbuffer_load_dwordx4 v[92:95], v4, {RX}, s87 offen offset:1024\ns_branch L_B0')
    A('L_PREC:')
    A(f'v_lshlrev_b32 v4, 4, v1\ns_lshl_b32 s83, {sW8}, 11')
    A(f'buffer_load_dwordx4 v[104:107], v4, {RC}, s83 offen\nbuffer_load_dwordx4 v[100:103], v4, {RC}, s83 offen offset:1024\ns_branch L_B0')
    A('L_PREV15:')
    A(SENT)
    A(f's_lshl_b32 s80, {sPAIR}, 10\ns_lshl_b32 s81, {sJ}, 9\ns_add_u32 s81, s81, s80\ns_add_u32 s81, s81, {OO}\ns_mov_b32 exec_hi, 0')
    A(f'buffer_store_dwordx4 v[8:11], v5, {RWL}, s81 offen\ns_mov_b64 exec, -1')
    A(f's_cmp_lg_u32 {sJ}, 0\ns_cbranch_scc1 L_B0\ns_add_u32 s80, s80, {X1}')
    A(f'buffer_store_dwordx4 v[8:11], v5, {RWL}, s80 offen\ns_branch L_B0')
    A('L_PREK:')
    A(f's_cmp_lt_u32 {sWAVE}, 8\ns_cbranch_scc1 L_B0\ns_cmp_eq_u32 {sWAVE}, 14\ns_cbranch_scc1 L_B0\ns_cmp_eq_u32 {sWAVE}, 13\ns_cbranch_scc1 L_PRE13')
    A(SENT)
    A(f's_and_b32 s81, {sJ}, 1\ns_and_b32 s83, s2, 63\ns_lshl_b32 s83, s83, 11')
    A(f's_cmp_ge_u32 {sWAVE}, 12\ns_cbranch_scc1 L_PREK2')
    A(f's_lshl_b32 s80, {sPAIR}, 14\ns_lshl_b32 s82, s81, 13\ns_add_u32 s80, s80, s82\ns_lshl_b32 s82, {sW8}, 11\ns_add_u32 s80, s80, s82')
    A(f'buffer_store_dwordx4 v[8:11], v5, {RWL}, s80 offen\nbuffer_store_dwordx4 v[8:11], v5, {RWL}, s80 offen offset:1024\ns_branch L_B0')
    A('L_PREK2:')
    A(f's_cmp_eq_u32 {sWAVE}, 15\ns_cbranch_scc1 L_PREK3')
    A(f's_lshl_b32 s80, {sPAIR}, 10\ns_lshl_b32 s82, s81, 9\ns_add_u32 s82, s82, s80\ns_add_u32 s82, s82, {ST}\ns_mov_b32 exec_hi, 0')
    A(f'buffer_store_dwordx4 v[8:11], v5, {RWL}, s82 offen\ns_mov_b64 exec, -1')
    A(f's_cmp_eq_u32 {sJ}, 2\ns_cbranch_scc1 L_PREK4\ns_add_u32 s80, s80, {GU}')
    A(f'buffer_store_dwordx4 v[8:11], v5, {RWL}, s80 offen\ns_branch L_B0')
    A(f'L_PREK4:\ns_add_u32 s80, s83, {WP}\ns_branch L_PREK5')
    A(f'L_PREK3:\ns_cmp_lg_u32 {sJ}, 2\ns_cbranch_scc1 L_B0\ns_add_u32 s80, s83, {DP}')
    A(f'L_PREK5:\nbuffer_store_dwordx4 v[8:11], v5, {RWS}, s80 offen sc1\nbuffer_store_dwordx4 v[8:11], v5, {RWS}, s80 offen offset:1024 sc1\ns_branch L_B0')
    A('L_PRE13:')
    if o.codepf:
        A(f's_getpc_b64 s[80:81]\nL_PC:\ns_sub_u32 s80, s80, L_PC-{NAME}_kernel\ns_subb_u32 s81, s81, 0')
        A(f's_lshr_b32 s82, s2, 3\ns_lshl_b32 s82, s82, 10\nv_lshlrev_b32 v4, 4, v1\nv_add_u32 v4, s82, v4\nv_min_u32 v4, L_CODE_END-{NAME}_kernel-16, v4')
        A('global_load_dwordx4 v[100:103], v4, s[80:81]')
    A('L_B0:\ns_barrier')
    g.stampw(0,0)
    A(f's_cmp_eq_u32 {sWAVE}, 14\ns_cbranch_scc1 L_EP')
    A(f's_cmp_eq_u32 {sWAVE}, 15\ns_cbranch_scc1 L_SYNC')
    A(f's_cmp_eq_u32 {sJ}, 0\ns_cbranch_scc1 L_TC\ns_cmp_eq_u32 {sJ}, 1\ns_cbranch_scc1 L_TD')
    A(f's_cmp_lt_u32 {sWAVE}, 8\ns_cbranch_scc1 L_KPATH\ns_cmp_eq_u32 {sWAVE}, 13\ns_cbranch_scc1 L_KPATH')
    A('s_waitcnt vmcnt(0)')
    lds_inc(F_CLR, 'v5')
    A('s_branch L_KPATH')
    A('L_SYNC:\ns_setprio 3\ns_waitcnt vmcnt(0)')
    get_E('v12')
    A(f's_cmp_lt_u32 {sJ}, 2\ns_cbranch_scc1 L_SY1')
    g.lds_spin('v3', F_CLR, 5, 'v7', sleep=1)
    A('L_SY1:')
    A(f's_getreg_b32 s83, hwreg(HW_REG_XCC_ID)\nv_mov_b32 v13, s83\ns_lshl_b32 s84, s2, 7\ns_add_u32 s84, s84, {FL}\nv_mov_b32 v14, s84')
    A(f's_mov_b64 exec, 1\nbuffer_store_dwordx2 v[12:13], v14, {RWS}, 0 offen sc1\ns_mov_b64 exec, -1')
    g.stamp(4)
    A(f's_setprio 0\ns_cmp_ge_u32 {sJ}, 2\ns_cbranch_scc1 L_KPATH\ns_branch L_VWAIT')
    A('L_EP:\ns_setprio 3')
    A(f's_and_b32 s80, s2, 1\ns_lshl_b32 s80, s80, 7\nv_mov_b32 v9, s80\nL_EPL:\nbuffer_load_dword v12, v9, {RDBG}, 0 offen sc1\ns_waitcnt vmcnt(0)\nv_cmp_eq_u32 vcc, 0, v12\ns_cbranch_vccz L_EPD')
    g.timeout('L_EPD')
    A(f's_branch L_EPL\nL_EPD:\nds_write_b32 v3, v12 offset:{F_E}')
    g.stamp(24)
    A(f's_setprio 0\ns_cmp_ge_u32 {sJ}, 2\ns_cbranch_scc1 L_KPATH')
    A(f's_sleep {o.fldelay}\ns_mov_b32 s79, 0')
    A('L_FLAGS:')
    A(f'v_and_b32 v7, 31, v1\nv_lshlrev_b32 v14, 3, v7\nv_add_u32 v14, {sG}, v14\nv_lshrrev_b32 v15, 3, v7\nv_lshlrev_b32 v15, 6, v15\nv_and_b32 v7, 7, v1\nv_add_u32 v15, v15, v7\ns_lshl_b32 s84, {sB}, 3\nv_add_u32 v15, s84, v15')
    A(f's_mov_b32 vcc_lo, 0\ns_mov_b32 vcc_hi, -1\nv_cndmask_b32 v15, v14, v15, vcc\nv_lshlrev_b32 v15, 7, v15\nv_add_u32 v15, {FL}, v15')
    A(f'L_FLP:\nbuffer_load_dwordx2 v[96:97], v15, {RWS}, 0 offen sc1\ns_waitcnt vmcnt(0)\nv_cmp_ne_u32 vcc, v96, v12\ns_cbranch_vccz L_FLD')
    g.timeout('L_FLD')
    A('s_sleep 8\ns_branch L_FLP\nL_FLD:')
    A('s_getreg_b32 s83, hwreg(HW_REG_XCC_ID)')
    A(f'v_cmp_ne_u32 vcc, s83, v97\ns_cmp_eq_u32 vcc_lo, 0\ns_cselect_b32 s84, {1 if o.local else 0}, 0\nv_mov_b32 v14, s84\ns_cmp_eq_u32 s84, 1\ns_cbranch_scc1 L_FLOK')
    A('s_mov_b64 s[92:93], s[100:101]')
    clear_all_local(' sc1')
    A(f's_lshl_b32 s80, s2, 7\ns_add_u32 s80, s80, {FLB}\nv_mov_b32 v5, s80\ns_mov_b32 s80, {FLB-FL}\ns_waitcnt vmcnt(0)')
    A(f's_mov_b64 exec, 1\nbuffer_store_dword v12, v5, {RWS}, 0 offen sc1\ns_mov_b64 exec, -1')
    A(f'L_FBP:\nbuffer_load_dword v8, v15, {RWS}, s80 offen sc1\ns_waitcnt vmcnt(0)\nv_cmp_ne_u32 vcc, v8, v12\ns_cmp_eq_u32 vcc_lo, 0\ns_cbranch_scc1 L_FLOK')
    g.timeout('L_FLOK')
    A('s_sleep 4\ns_branch L_FBP')
    A(f'L_FLOK:\nds_write_b32 v3, v14 offset:{F_MODE}\ns_waitcnt lgkmcnt(0)')
    g.lds_set('v3', F_MOK, 1, 'v7')
    g.stamp(5)
    A('s_cmp_eq_u32 s79, 1\ns_cbranch_scc1 L_KFLB\ns_branch L_VWAIT')

    A('L_TC:')
    A(f's_cmp_ge_u32 {sWAVE}, 12\ns_cbranch_scc1 L_C_MT\ns_cmp_ge_u32 {sWAVE}, 8\ns_cbranch_scc1 L_C_S\ns_cmp_ge_u32 {sWAVE}, 4\ns_cbranch_scc1 L_C_LN')
    g.tr_addr('v5', sWAVE, L_WM, 'v6', 'v7')
    A(f's_lshl_b32 s84, s81, 8\ns_add_u32 s84, s84, {L_ACT}')
    g.act_addr('v6', 's84', 1056, 'v7')
    A(f's_lshl_b32 s86, s2, 11\ns_lshl_b32 s84, {sWAVE}, 9\ns_add_u32 s86, s86, s84\ns_add_u32 s86, s86, {MP}')
    A('v_and_b32 v7, 7, v1\nv_lshlrev_b32 v4, 6, v7\nv_lshrrev_b32 v7, 4, v1\nv_lshl_add_u32 v4, v7, 4, v4')
    A('s_waitcnt vmcnt(0)')
    lds_inc(F_C1, 'v7')
    get_E('v12')
    pair_prep('v4', MP2-MP, 'v12', 'v12', 'v7')
    g.lds_spin('v3', F_C1, 12, 'v7', sleep=0)
    g.tr_frags('v5', 48, range(4))
    g.gemv_tile(48, 4, 'v6', 64, 80)
    for r in range(4): A(f'v_xor_b32 v{80+r}, v{80+r}, v12')
    A(f'buffer_store_dwordx4 v[80:83], v4, {RWS}, s86 offen sc1')
    lds_inc(F_C1, 'v7')
    g.stampw(0,1)
    A('s_branch L_VWAIT')
    A('L_C_LN:')
    A('s_waitcnt vmcnt(2)')
    lds_inc(F_C1, 'v5')
    A('s_waitcnt vmcnt(0)')
    A(f's_add_u32 s87, s87, {L_Y}\nv_add_u32 v4, s87, v4')
    for k,src in enumerate((88,92)):
        g.ln8(src, 48, 56)
        for i in range(4): A(f'v_cvt_pk_bf16_f32 v{src+i}, v{48+2*i}, v{49+2*i}')
        A(f'ds_write_b128 v4, v[{src}:{src+3}] offset:{k*1024}')
    A('s_waitcnt lgkmcnt(0)')
    lds_inc(F_Y, 'v5')
    A('s_branch L_VWAIT')
    A('L_C_S:')
    A(f's_mul_i32 s85, {sW8}, 2112\ns_add_u32 s85, s85, {L_ACT}\nv_add_u32 v5, s85, v4')
    A('s_waitcnt vmcnt(1)')
    g.silu8(104, 16, 24)
    A('ds_write_b128 v5, v[104:107]\ns_waitcnt vmcnt(0)')
    g.silu8(100, 16, 24)
    A('ds_write_b128 v5, v[100:103] offset:1056\ns_waitcnt lgkmcnt(0)')
    lds_inc(F_C1, 'v5')
    A(f's_cmp_lg_u32 {sWAVE}, 8\ns_cbranch_scc1 L_VWAIT')
    A('s_setprio 3')
    get_E('v15')
    A('v_lshrrev_b32 v7, 4, v1\nv_lshlrev_b32 v5, 14, v7\nv_bfe_u32 v6, v1, 1, 3\nv_lshl_add_u32 v5, v6, 6, v5\nv_and_b32 v7, 1, v1\nv_lshl_add_u32 v5, v7, 4, v5')
    A(f's_lshr_b32 s80, s2, 1\ns_lshl_b32 s80, s80, 9\ns_and_b32 s81, s2, 1\ns_lshl_b32 s81, s81, 5\ns_add_u32 s80, s80, s81\ns_add_u32 s80, s80, {MP}\ns_add_u32 s81, s80, 0x10000\ns_add_u32 s82, s80, {MP2-MP}\ns_add_u32 s83, s81, {MP2-MP}')
    A(f'v_lshlrev_b32 v6, 10, v6\nv_lshl_add_u32 v6, v7, 3, v6\ns_lshl_b32 s84, s2, 4\ns_add_u32 s84, s84, {L_Y}\nv_add_u32 v6, s84, v6')
    A(f'v_and_b32 v7, 15, v1\nv_lshlrev_b32 v8, 3, v7\nv_bfe_u32 v7, v1, 4, 1\nv_mul_u32_u24 v9, {HH2-HH}, v7\nv_add_u32 v8, v8, v9\nv_mul_lo_u32 v9, v7, v15\ns_lshl_b32 s84, s2, 7\ns_add_u32 s84, s84, {HH}')
    g.lds_spin('v3', F_Y, 4, 'v7', sleep=1)
    A('ds_read_b64 v[10:11], v6')
    g.lds_spin('v3', F_C1, 16, 'v7', sleep=1)
    if o.mpdelay: A(f's_sleep {o.mpdelay}')
    xpoll([f'buffer_load_dwordx4 v[{16+4*k}:{19+4*k}], v5, {RWS}, s{80+k} offen sc1' for k in range(4)], 16, 24, 8, 'v15', 'v7', sleep=o.mpsleep)
    for r in range(4): A(f'v_add_f32 v{16+r}, v{16+r}, v{20+r}')
    for r in range(4): A(f'v_mov_b32 v{20+r}, v{16+r}')
    for r in range(4): A(f'v_permlane32_swap_b32 v{16+r}, v{20+r}')
    for r in range(4): A(f'v_add_f32 v{16+r}, v{16+r}, v{20+r}')
    g.rnd2(16,17,12); g.rnd2(18,19,13)
    for r in range(4): A(f'v_mov_b32 v{20+r}, v{16+r}')
    for r in range(4): A(f'v_permlane16_swap_b32 v{16+r}, v{20+r}')
    for r in range(4): A(f'v_add_f32 v{20+r}, 1.0, v{20+r}')
    g.rnd2(20,21,12); g.rnd2(22,23,13)
    g.unpack(10,24,25); g.unpack(11,26,27)
    for r in range(4): A(f'v_mul_f32 v{24+r}, v{24+r}, v{20+r}')
    g.rnd2(24,25,12); g.rnd2(26,27,13)
    for r in range(4): A(f'v_add_f32 v{24+r}, v{24+r}, v{16+r}')
    A('v_cvt_pk_bf16_f32 v10, v24, v25\nv_cvt_pk_bf16_f32 v11, v26, v27\nv_xor_b32 v10, v10, v9\nv_xor_b32 v11, v11, v9\ns_mov_b32 exec_hi, 0')
    A(f'buffer_store_dwordx2 v[10:11], v8, {RWS}, s84 offen sc1\ns_mov_b64 exec, -1')
    g.lds_set('v3', F_R, 1, 'v7')
    A('s_setprio 0')
    g.stamp(25)
    A('s_branch L_VWAIT')
    A('L_C_MT:')
    A(f'v_lshrrev_b32 v7, 2, v1\nv_mul_u32_u24 v12, 6144, v7\nv_and_b32 v7, 3, v1\nv_lshl_add_u32 v12, v7, 4, v12')
    A(f's_and_b32 s85, {sWAVE}, 1\ns_mul_i32 s88, s85, {256*6144}\ns_lshl_b32 s89, s2, 6\ns_add_u32 s88, s88, s89\ns_add_u32 s88, s88, 2048\ns_lshl_b32 s89, s85, 14')
    A(f'v_lshrrev_b32 v7, 4, v1\nv_lshlrev_b32 v6, 9, v7\nv_bfe_u32 v7, v1, 2, 2\nv_lshl_add_u32 v6, v7, 6, v6\nv_and_b32 v7, 3, v1\nv_lshl_add_u32 v6, v7, 3, v6\ns_lshl_b32 s84, s85, 5\nv_add_u32 v6, s84, v6')
    g.act_addr('v8', L_ACT, 1056, 'v7')
    A(f'v_and_b32 v7, 7, v1\nv_lshlrev_b32 v9, 12, v7\nv_lshrrev_b32 v7, 4, v1\nv_lshl_add_u32 v9, v7, 3, v9\ns_lshl_b32 s86, s2, 6\ns_add_u32 s86, s86, s84\ns_add_u32 s86, s86, {MT}')
    if o.mtearly==0: g.lds_spin('v3', F_R, 1, 'v7', sleep=2)
    A('s_setprio 1')
    for i in range(16): g.dma(RWM, 'v12', 's88', i*16*6144, 's89', L_W+i*1024)
    lds_inc(F_GO, 'v7')
    get_E('v10')
    pair_prep('v9', MT2-MT, 'v10', 'v10', 'v7')
    A('s_waitcnt vmcnt(0)')
    lds_inc(F_SUB, 'v7')
    g.lds_spin('v3', F_SUB, 2, 'v7', sleep=1)
    g.lds_spin('v3', F_C1, 12, 'v7', sleep=1)
    def rdm(gq):
        for m in range(4):
            mm=4*gq+m; o_=16*(gq&1)+4*m
            A(f'ds_read_b64_tr_b16 v[{32+o_}:{33+o_}], v6 offset:{mm*2048}\nds_read_b64_tr_b16 v[{34+o_}:{35+o_}], v6 offset:{mm*2048+256}')
            A(f'ds_read_b128 v[{64+o_}:{67+o_}], v8 offset:{mm*64}')
    rdm(0)
    for gq in range(4):
        if gq<3: rdm(gq+1); A('s_waitcnt lgkmcnt(12)')
        else: A('s_waitcnt lgkmcnt(0)')
        for m in range(4):
            o_=16*(gq&1)+4*m
            c='0' if (gq==0 and m==0) else 'v[12:15]'
            A(f'v_mfma_f32_16x16x32_bf16 v[12:15], v[{32+o_}:{35+o_}], v[{64+o_}:{67+o_}], {c}')
    A('v_cvt_pk_bf16_f32 v100, v12, v13\nv_cvt_pk_bf16_f32 v101, v14, v15\nv_xor_b32 v100, v100, v10\nv_xor_b32 v101, v101, v10')
    A(f'buffer_store_dwordx2 v[100:101], v9, {RWS}, s86 offen sc1\ns_setprio 0')
    A('s_branch L_VW_C')

    A('L_TD:')
    A(f's_cmp_ge_u32 {sWAVE}, 12\ns_cbranch_scc1 L_VWAIT\ns_cmp_ge_u32 {sWAVE}, 8\ns_cbranch_scc1 L_D_H')
    g.dma_voff('v12','v13',8192,'v14')
    A(f's_lshl_b32 s85, {sWAVE}, 13\ns_lshl_b32 s84, {sWAVE}, 19\ns_lshl_b32 s86, {sPAIR}, 7\ns_add_u32 s84, s84, s86')
    blk_dma(RW1, 8, 's84', 8192, 's85', 'v12', 'v13')
    lds_inc(F_GO, 'v7')
    A('s_waitcnt vmcnt(0)')
    lds_inc(F_SUB, 'v7')
    A(f's_cmp_ge_u32 {sWAVE}, 4\ns_cbranch_scc1 L_VWAIT')
    g.tr_addr('v5', sWAVE, L_W, 'v6', 'v7')
    g.act_addr('v6', L_H, 1056, 'v7')
    A(f's_lshl_b32 s86, {sPAIR}, 10\ns_lshl_b32 s84, {sWAVE}, 5\ns_add_u32 s86, s86, s84\ns_add_u32 s86, s86, {QF}')
    A(f'v_and_b32 v7, 7, v1\nv_lshlrev_b32 v4, 7, v7\nv_lshrrev_b32 v7, 4, v1\nv_lshl_add_u32 v4, v7, 3, v4')
    get_E('v12')
    pair_prep('v4', QF2-QF, 'v12', 'v12', 'v7')
    g.lds_spin('v3', F_SUB, 8, 'v7', sleep=1)
    g.tr_frags('v5', 16, range(16))
    g.stampw(0,16)
    get_mode('v7')
    A('s_setprio 3')
    g.lds_spin('v3', F_C3, 4, 'v7', sleep=0)
    gemv16(16, 'v6', 8, [80,96])
    A('v_cvt_pk_bf16_f32 v14, v8, v9\nv_cvt_pk_bf16_f32 v15, v10, v11\nv_xor_b32 v14, v14, v12\nv_xor_b32 v15, v15, v12')
    g.pub(f'buffer_store_dwordx2 v[14:15], v4, {RWS}, s86 offen', True)
    lds_inc(F_VGO, 'v7')
    A('s_setprio 0')
    g.stampw(0,3)
    A('s_branch L_VWAIT')
    A('L_D_H:\ns_setprio 3')
    A(f'v_lshlrev_b32 v4, 4, v1\ns_lshl_b32 s80, {sW8}, 11\ns_add_u32 s81, s80, {HH2}\ns_add_u32 s80, s80, {HH}')
    A(f'v_and_b32 v7, 7, v1\nv_mul_u32_u24 v6, 1056, v7\nv_lshrrev_b32 v7, 3, v1\nv_lshl_add_u32 v6, v7, 4, v6\ns_lshl_b32 s84, {sW8}, 8\ns_add_u32 s84, s84, {L_H}\nv_add_u32 v6, s84, v6')
    get_E('v15')
    g.lds_spin('v3', F_SUB, o.hdelay, 'v7', sleep=1)
    xpoll([f'buffer_load_dwordx4 v[16:19], v4, {RWS}, s80 offen sc1', f'buffer_load_dwordx4 v[20:23], v4, {RWS}, s80 offen offset:1024 sc1',
           f'buffer_load_dwordx4 v[24:27], v4, {RWS}, s81 offen sc1', f'buffer_load_dwordx4 v[28:31], v4, {RWS}, s81 offen offset:1024 sc1'], 16, 24, 8, 'v15', 'v7', sleep=o.mpsleep)
    A('ds_write_b128 v6, v[16:19]\nds_write_b128 v6, v[20:23] offset:128\ns_waitcnt lgkmcnt(0)')
    lds_inc(F_C3, 'v5')
    A('s_setprio 0')
    g.stampw(8,2)
    A('L_VWAIT:')
    A(f's_cmp_eq_u32 {sJ}, 1\ns_cbranch_scc1 L_VW_D')
    pm=0
    for w in o.cpre: pm|=1<<w
    if pm: A(f's_mov_b32 s80, {pm}\ns_lshr_b32 s80, s80, {sWAVE}\ns_bitcmp1_b32 s80, 0\ns_cbranch_scc1 L_VPATH')
    g.lds_spin('v3', F_R, 1, 'v7', sleep=2)
    g.lds_spin('v3', F_GO, 2, 'v7', sleep=1)
    A('L_VW_C:')
    cm=0
    for w in o.cearly: cm|=1<<w
    A(f's_mov_b32 s80, {cm}\ns_lshr_b32 s80, s80, {sWAVE}\ns_bitcmp1_b32 s80, 0\ns_cbranch_scc1 L_VPATH')
    A(f's_cmp_lg_u32 {sWAVE}, 9\ns_cbranch_scc1 L_VW_D2')
    get_E('v12')
    A(f's_lshl_b32 s80, {sPAIR}, 10\ns_add_u32 s80, s80, {QF}\ns_add_u32 s81, s80, {QF2-QF}\nv_mov_b32 v5, 0')
    xpoll([f'buffer_load_dword v16, v5, {RWS}, s80 offen sc1', f'buffer_load_dword v17, v5, {RWS}, s81 offen sc1'], 16, 17, 1, 'v12', 'v7', sleep=4)
    g.lds_set('v3', F_VGO, 4, 'v7')
    A('s_branch L_VPATH\nL_VW_D:')
    em=0
    for w in o.dearly: em|=1<<w
    A(f's_mov_b32 s80, {em}\ns_lshr_b32 s80, s80, {sWAVE}\ns_bitcmp1_b32 s80, 0\ns_cbranch_scc0 L_VW_D2')
    g.lds_spin('v3', F_GO, 8, 'v7', sleep=1)
    A('s_branch L_VPATH\nL_VW_D2:')
    g.lds_spin('v3', F_VGO, 4, 'v7', sleep=2)
    A('L_VPATH:')
    A(f'v_lshrrev_b32 v5, 3, v1\nv_lshlrev_b32 v2, 11, v5\nv_and_b32 v5, 7, v1\nv_lshl_add_u32 v2, v5, 4, v2')
    A(f's_lshl_b32 s80, {sWAVE}, 15\ns_lshl_b32 s81, {sJ}, 7\ns_add_u32 s80, s80, s81\ns_add_u32 s81, s80, 16384')
    for blk in range(2):
        for u in range(8):
            r=8+32*blk+4*u
            A(f'buffer_load_dwordx4 v[{r}:{r+3}], v2, {RKV}, s{80+blk} offen offset:{u*256} nt')
    lds_inc(F_KL, 'v7')
    g.stampw(0,22); g.stampw(11,23)
    if o.stamps:
        A(f's_cmp_lg_u32 {sWAVE}, 15\ns_cbranch_scc1 L_NS26\ns_waitcnt vmcnt(0)')
        g.stamp(26)
        A('L_NS26:')
    A('s_mov_b32 s88, 0x05040100\ns_mov_b32 s89, 0x07060302')
    A(f'v_bfe_u32 v7, v1, 3, 1\nv_lshlrev_b32 v6, 10, v7\nv_and_b32 v7, 7, v1\nv_lshl_add_u32 v6, v7, 5, v6\nv_lshrrev_b32 v7, 5, v1\nv_lshl_add_u32 v6, v7, 2, v6')
    A(f's_lshl_b32 s84, {sWAVE}, 11\ns_add_u32 s84, s84, {L_OP}\nv_add_u32 v6, s84, v6')
    A(f'v_lshrrev_b32 v7, 4, v1\nv_lshlrev_b32 v4, 7, v7\nv_and_b32 v7, 7, v1\nv_lshl_add_u32 v4, v7, 4, v4\ns_lshl_b32 s84, {sPAIR}, 14\ns_lshl_b32 s85, {sWAVE}, 10\ns_add_u32 s84, s84, s85')
    get_mode('v7')
    PL=[f'buffer_load_dwordx4 v[72:75], v4, {RWL}, s84 offen sc1', f'buffer_load_dwordx4 v[80:83], v4, {RWL}, s84 offen offset:512 sc1']
    PR=[72,73,74,75,80,81,82,83]
    TB=[88,8]
    def perms(blk):
        B=8+32*blk
        for w in range(4):
            t=TB[blk]+8*w
            for a in range(4): A(f'v_perm_b32 v{t+a}, v{B+4*(2*a+1)+w}, v{B+4*(2*a)+w}, s88')
            for a in range(4): A(f'v_perm_b32 v{t+4+a}, v{B+4*(2*a+1)+w}, v{B+4*(2*a)+w}, s89')
    A(f'ds_read_b32 v7, v3 offset:{F_KL}\ns_waitcnt lgkmcnt(0)\nv_readfirstlane_b32 s85, v7\ns_cmp_lt_u32 s85, {o.pgate}\ns_cbranch_scc1 L_PE')
    for l in PL: A(l)
    A('s_waitcnt vmcnt(10)')
    perms(0)
    A('s_waitcnt vmcnt(2)')
    perms(1)
    A('s_waitcnt vmcnt(0)')
    g.chk(PR, 'v7')
    A('s_cbranch_vccz L_PD\ns_branch L_PP')
    A('L_PE:\ns_waitcnt vmcnt(8)')
    perms(0)
    A('s_waitcnt vmcnt(0)')
    perms(1)
    g.lds_spin('v3', F_KL, o.pgate, 'v7', sleep=2)
    A('L_PP:')
    g.poll(PL, PR, 'v7', sleep=o.psleep)
    A('L_PD:')
    g.stampw(0,8); g.stampw(11,9)
    A(HI8)
    for blk in range(2):
        for r in range(4): A(f'v_cndmask_b32 v{76+8*blk+r}, 0, v{72+8*blk+r}, vcc')
    A('s_not_b64 vcc, vcc')
    for blk in range(2):
        for r in range(4): A(f'v_cndmask_b32 v{72+8*blk+r}, 0, v{72+8*blk+r}, vcc')
    Dd=40
    for blk in range(2):
        for q in range(2):
            for w in range(4):
                t=TB[blk]+8*w+4*q; d=Dd+4*w
                c0='0' if (blk==0 and q==0) else f'v[{d}:{d+3}]'
                A(f'v_mfma_f32_16x16x32_bf16 v[{d}:{d+3}], v[{72+8*blk+4*q}:{75+8*blk+4*q}], v[{t}:{t+3}], {c0}')
    A('s_mov_b32 exec_lo, 0xff0000ff\ns_mov_b32 exec_hi, 0xff0000ff')
    for wp in range(2):
        for h in range(4): A(f'ds_write2_b32 v6, v{Dd+8*wp+h}, v{Dd+8*wp+4+h} offset0:{64*h+4*wp} offset1:{64*h+4*wp+2}')
    A('s_mov_b64 exec, -1')
    A(f'v_lshrrev_b32 v5, 3, v1\nv_lshlrev_b32 v4, 12, v5\nv_and_b32 v5, 7, v1\nv_lshl_add_u32 v4, v5, 4, v4\ns_lshl_b32 s85, {sW8}, 7\ns_add_u32 s84, s85, {L_OP}\nv_add_u32 v4, s84, v4')
    A(f'v_lshlrev_b32 v5, 3, v1\ns_lshl_b32 s84, {sPAIR}, 10\ns_lshr_b32 s85, s85, 1\ns_add_u32 s84, s84, s85\ns_lshl_b32 s85, {sJ}, 9\ns_add_u32 s84, s84, s85\ns_add_u32 s84, s84, {OO}')
    A('s_waitcnt lgkmcnt(0)\ns_barrier')
    A(f's_cmp_lt_u32 {sWAVE}, 8\ns_cbranch_scc1 L_VT')
    for k in range(4): A(f'ds_read_b128 v[{8+4*k}:{11+4*k}], v4 offset:{k*1024}')
    A('s_waitcnt lgkmcnt(0)')
    for r in range(4): A(f'v_add_f32 v{8+r}, v{8+r}, v{12+r}\nv_add_f32 v{16+r}, v{16+r}, v{20+r}')
    for r in range(4): A(f'v_add_f32 v{8+r}, v{8+r}, v{16+r}')
    for r in range(4): A(f'v_add_f32_dpp v{8+r}, v{8+r}, v{8+r} row_ror:8 row_mask:0xf bank_mask:0xf')
    g.red_rows('v_add_f32', [8,9,10,11], [12,13,14,15])
    A('v_cvt_pk_bf16_f32 v12, v8, v9\nv_cvt_pk_bf16_f32 v13, v10, v11')
    g.nosent([12,13])
    A('s_mov_b64 exec, 0xff')
    g.pub(f'buffer_store_dwordx2 v[12:13], v5, {RWL}, s84 offen', True)
    A('s_mov_b64 exec, -1')
    g.stampw(8,10)
    if o.stamps:
        A(f's_cmp_lg_u32 {sJ}, 1\ns_cbranch_scc1 L_END\ns_cmp_eq_u32 {sWAVE}, 8\ns_cbranch_scc1 L_DUMP')
    A('s_branch L_END')
    A('L_VT:')
    A(f's_cmp_lg_u32 {sJ}, 0\ns_cbranch_scc1 L_END\ns_cmp_ge_u32 {sWAVE}, 3\ns_cbranch_scc1 L_END')
    A(f'ds_read_b32 v13, v3 offset:{F_E}')
    A(f's_cmp_eq_u32 {sWAVE}, 2\ns_cbranch_scc1 L_FIN')
    A(f'v_lshlrev_b32 v4, 4, v1\ns_lshl_b32 s80, {sWAVE}, 10\nv_add_u32 v4, s80, v4')
    A(f'v_bfe_u32 v6, v1, 2, 3\nv_lshrrev_b32 v7, 5, v1\nv_lshlrev_b32 v7, 5, v7\nv_and_b32 v8, 3, v1\nv_lshl_add_u32 v7, v8, 3, v7\ns_lshl_b32 s81, {sWAVE}, 6\nv_add_u32 v7, s81, v7')
    A(f'v_lshl_add_u32 v5, v6, 10, v7\ns_lshl_b32 s81, {sB}, 7\nv_lshl_add_u32 v9, v6, 12, v7\ns_add_u32 s80, s81, {MT}')
    A(f'buffer_load_dwordx2 v[56:57], v5, {RX}, s81 offen')
    A(f's_add_u32 s81, s80, {MT2-MT}\ns_waitcnt lgkmcnt(0)')
    xpoll([f'buffer_load_dwordx2 v[60:61], v9, {RWS}, s80 offen sc1', f'buffer_load_dwordx2 v[62:63], v9, {RWS}, s81 offen sc1'], 60, 62, 2, 'v13', 'v12')
    g.unpack(60,48,49); g.unpack(61,50,51)
    g.unpack(56,52,53); g.unpack(57,54,55)
    A(f'v_lshl_add_u32 v5, v6, 7, v7\ns_lshl_b32 s82, {sPAIR}, 10\ns_add_u32 s82, s82, {X1}')
    A(f'v_lshlrev_b32 v8, 1, v5\nv_add_u32 v8, {L_X1S}, v8')
    A(f's_lshl_b32 s80, {sB}, 14\ns_add_u32 s80, s80, {WP}')
    for k in range(4): A(f's_add_u32 s{88+k}, s80, {k*4096}')
    g.poll([f'buffer_load_dwordx4 v[{16+4*k}:{19+4*k}], v4, {RWS}, s{88+(k>>1)} offen offset:{(k&1)*2048} sc1' for k in range(8)], range(16,48), 'v12')
    for r in range(4):
        A(f'v_add_f32 v{16+r}, v{16+r}, v{20+r}\nv_add_f32 v{24+r}, v{24+r}, v{28+r}\nv_add_f32 v{32+r}, v{32+r}, v{36+r}\nv_add_f32 v{40+r}, v{40+r}, v{44+r}')
        A(f'v_add_f32 v{16+r}, v{16+r}, v{24+r}\nv_add_f32 v{32+r}, v{32+r}, v{40+r}\nv_add_f32 v{16+r}, v{16+r}, v{32+r}')
    g.rnd2(16,17,12); g.rnd2(18,19,13)
    for r in range(4): A(f'v_mul_f32 v{16+r}, v{16+r}, v{48+r}')
    g.rnd2(16,17,12); g.rnd2(18,19,13)
    for r in range(4): A(f'v_add_f32 v{16+r}, v{16+r}, v{52+r}')
    g.rnd2(16,17,12); g.rnd2(18,19,13)
    g.nosent([12,13])
    g.pub(f'buffer_store_dwordx2 v[12:13], v5, {RWL}, s82 offen', True)
    A('ds_write_b128 v8, v[16:19]')
    g.stampw(0,12)
    A('s_waitcnt lgkmcnt(0)\ns_barrier')
    A('s_branch L_END')
    A('L_FIN:')
    A(f'v_lshrrev_b32 v5, 4, v1\nv_lshlrev_b32 v4, 9, v5\nv_and_b32 v5, 15, v1\nv_lshl_add_u32 v4, v5, 2, v4\ns_lshl_b32 s80, {sG}, 6\nv_add_u32 v4, s80, v4')
    A(f's_lshl_b32 s80, {sG}, 12\ns_lshl_b32 s81, {sB}, 7\ns_add_u32 s80, s80, s81\ns_add_u32 s80, s80, {MT+3072}\nv_lshrrev_b32 v5, 1, v1\nv_lshlrev_b32 v5, 2, v5')
    A(f's_add_u32 s81, s80, {MT2-MT}\ns_waitcnt lgkmcnt(0)')
    xpoll([f'buffer_load_dword v50, v5, {RWS}, s80 offen sc1', f'buffer_load_dword v51, v5, {RWS}, s81 offen sc1'], 50, 51, 1, 'v13', 'v12', sleep=4)
    g.unpack(50,48,49)
    A('s_mov_b32 vcc_lo, 0xaaaaaaaa\ns_mov_b32 vcc_hi, 0xaaaaaaaa\nv_cndmask_b32 v48, v48, v49, vcc')
    A(f's_lshl_b32 s80, {sB}, 14\ns_add_u32 s80, s80, {DP}')
    for k in range(4): A(f's_add_u32 s{88+k}, s80, {k*4096}')
    A(f's_lshl_b32 s81, {sG}, 8\ns_add_u32 s81, s81, {L_X1S}\nv_lshlrev_b32 v6, 2, v1\nv_add_u32 v6, s81, v6')
    A(f'v_lshlrev_b32 v7, 1, v1\ns_lshl_b32 s82, {sG}, 10\ns_lshl_b32 s83, {sB}, 7\ns_add_u32 s82, s82, s83')
    A('s_barrier')
    A('ds_read_b32 v50, v6')
    g.poll([f'buffer_load_dword v{16+k}, v4, {RWS}, s{88+(k>>1)} offen offset:{(k&1)*2048} sc1' for k in range(7)], range(16,23), 'v12')
    A('v_add_f32 v16, v16, v17\nv_add_f32 v18, v18, v19\nv_add_f32 v20, v20, v21\nv_add_f32 v16, v16, v18\nv_add_f32 v20, v20, v22\nv_add_f32 v16, v16, v20')
    g.rnd2(16,17,12)
    A('v_mul_f32 v16, v16, v48')
    g.rnd2(16,17,12)
    A('s_waitcnt lgkmcnt(0)\nv_add_f32 v16, v16, v50\nv_cvt_pk_bf16_f32 v12, v16, v16')
    A(f'buffer_store_short v12, v7, {ROUT}, s82 offen')
    g.stamp(15)
    A('s_branch L_DUMP')

    A('L_KPATH:')
    A(f'v_lshlrev_b32 v4, 4, v1\ns_and_b32 s86, {sJ}, 1\ns_lshl_b32 s80, s86, 18\ns_lshl_b32 s81, {sWAVE}, 14\ns_add_u32 s80, s80, s81')
    if o.thr:
        A(f's_cmp_lt_u32 {sWAVE}, {o.thrw}\ns_cbranch_scc1 L_KGO')
        g.lds_spin('v3', F_GO, o.thrw, 'v5', sleep=1)
        A('L_KGO:')
    for T in range(4):
        if T: A('s_add_u32 s80, s80, 4096')
        if o.thr and 1<=T<=o.thr:
            l=g.lab('KT')
            A(f's_cmp_ge_u32 {sWAVE}, {o.thrw}\ns_cbranch_scc1 {l}\ns_waitcnt vmcnt(0)')
            if T==o.thr: lds_inc(F_GO, 'v5')
            A(f'{l}:')
        for m in range(4):
            r=16+16*T+4*m
            A(f'buffer_load_dwordx4 v[{r}:{r+3}], v4, {RKV}, s80 offen offset:{m*1024} nt')
    g.stampw(11,20)
    A(f's_mul_i32 s81, {sWAVE}, {KS_SZ}\ns_add_u32 s81, s81, {L_KS}')
    A('v_lshrrev_b32 v6, 4, v1\nv_and_b32 v7, 15, v1\nv_mul_u32_u24 v4, 272, v6\nv_lshl_add_u32 v4, v7, 4, v4\nv_add_u32 v4, s81, v4')
    A('v_mul_u32_u24 v5, 272, v7\nv_lshl_add_u32 v5, v6, 4, v5\nv_add_u32 v5, s81, v5')
    for T in range(4):
        A(f's_waitcnt vmcnt({12-4*T})')
        for m in range(4): A(f'ds_write_b128 v4, v[{16+16*T+4*m}:{19+16*T+4*m}] offset:{m*1088}')
        A('s_waitcnt lgkmcnt(0)')
        for m in range(4): A(f'ds_read_b128 v[{16+16*T+4*m}:{19+16*T+4*m}], v5 offset:{m*64}')
        A('s_waitcnt lgkmcnt(0)')
    lds_inc(F_KL, 'v7')
    g.stampw(15,18); g.stampw(3,21)
    A('s_setprio 2')
    A(f's_cmp_ge_u32 {sWAVE}, 2\ns_cbranch_scc1 L_QPX')
    get_E('v12')
    A(f's_cmp_eq_u32 {sWAVE}, 0\ns_cbranch_scc1 L_QP0\ns_mov_b32 s79, 1\ns_branch L_FLAGS\nL_KFLB:\ns_branch L_QPX\nL_QP0:')
    A(f's_lshl_b32 s80, {sG}, 13\ns_lshl_b32 s81, {sB}, 7\ns_add_u32 s80, s80, s81\ns_add_u32 s80, s80, {QF}\ns_add_u32 s81, s80, {QF2-QF}')
    A(f'v_lshrrev_b32 v6, 3, v1\nv_lshlrev_b32 v5, 10, v6\nv_and_b32 v7, 7, v1\nv_lshl_add_u32 v5, v7, 4, v5')
    A(f'v_lshrrev_b32 v6, 4, v1\nv_mul_u32_u24 v13, 272, v6\nv_and_b32 v7, 15, v1\nv_lshl_add_u32 v13, v7, 4, v13\nv_add_u32 v13, {L_Q}, v13')
    if o.qdelay: g.lds_spin('v3', F_KL, o.qdelay, 'v7', sleep=2)
    xpoll([f'buffer_load_dwordx4 v[96:99], v5, {RWS}, s80 offen sc1', f'buffer_load_dwordx4 v[100:103], v5, {RWS}, s81 offen sc1'], 96, 100, 4, 'v12', 'v7', sleep=o.qsleep)
    A('ds_write_b128 v13, v[96:99]\ns_waitcnt lgkmcnt(0)')
    g.lds_set('v3', F_QREADY, 1, 'v7')
    g.stamp(6)
    A('L_QPX:')
    A(f'v_and_b32 v6, 3, v1\nv_mul_u32_u24 v6, 272, v6\nv_lshrrev_b32 v7, 4, v1\nv_lshl_add_u32 v6, v7, 4, v6\nv_add_u32 v6, {L_Q}, v6')
    A('v_bfe_u32 v5, v1, 2, 2\nv_lshlrev_b32 v4, 7, v5\nv_lshrrev_b32 v5, 5, v1\nv_lshl_add_u32 v4, v5, 6, v4\nv_and_b32 v5, 3, v1\nv_lshl_add_u32 v4, v5, 4, v4\nv_bfe_u32 v5, v1, 4, 1\nv_lshl_add_u32 v4, v5, 3, v4')
    A(f's_and_b32 s86, {sJ}, 1\ns_lshl_b32 s81, {sPAIR}, 14\ns_lshl_b32 s82, s86, 13\ns_add_u32 s81, s81, s82\ns_lshl_b32 s82, {sWAVE}, 9\ns_add_u32 s81, s81, s82')
    A(f'v_and_b32 v5, 3, v1\nv_lshlrev_b32 v5, 3, v5\ns_lshl_b32 s82, {sPAIR}, 10\ns_add_u32 s82, s82, {ST}\ns_lshl_b32 s84, s86, 9\ns_add_u32 s83, s82, s84\ns_xor_b32 s84, s84, 512\ns_add_u32 s82, s82, s84')
    A(f'v_lshlrev_b32 v14, 3, v1\nv_add_u32 v14, {L_X1S}, v14\ns_lshl_b32 s84, {sWAVE}, 5\nv_add_u32 v13, s84, v14\nv_add_u32 v15, {L_X1S+512}, v5')
    get_mode('v7')
    g.lds_spin('v3', F_QREADY, 1, 'v7', sleep=0)
    for m in range(4): A(f'ds_read_b128 v[{96+4*m}:{99+4*m}], v6 offset:{m*64}')
    for m in range(4):
        A(f's_waitcnt lgkmcnt({3-m})')
        for T in range(4):
            r=16+16*T+4*m; d=80+4*T
            c='0' if m==0 else f'v[{d}:{d+3}]'
            A(f'v_mfma_f32_16x16x32_bf16 v[{d}:{d+3}], v[{r}:{r+3}], v[{96+4*m}:{99+4*m}], {c}')
    for T in range(1,4):
        mk = 0x000f000f << (4*T)
        A(f's_mov_b32 vcc_lo, 0x{mk:x}\ns_mov_b32 vcc_hi, 0x{mk:x}')
        for r in range(4): A(f'v_cndmask_b32 v{80+r}, v{80+r}, v{80+4*T+r}, vcc')
    g.rnd2(80,81,8); g.rnd2(82,83,9)
    for r in range(4): A(f'v_mul_f32 v{80+r}, 0x{SCALE:x}, v{80+r}')
    g.rnd2(80,81,8); g.rnd2(82,83,9)
    A('v_max3_f32 v10, v80, v81, v82\nv_max_f32 v10, v10, v83')
    A('v_max_f32_dpp v10, v10, v10 row_ror:4 row_mask:0xf bank_mask:0xf\nv_max_f32_dpp v10, v10, v10 row_ror:8 row_mask:0xf bank_mask:0xf')
    g.red_rows('v_max_f32', [10], [12])
    for r in range(4): A(f'v_sub_f32 v{84+r}, v{80+r}, v10')
    for r in range(4): A(f'v_mul_f32 v{84+r}, 0x{LOG2E:x}, v{84+r}')
    for r in range(4): A(f'v_exp_f32 v{84+r}, v{84+r}')
    A('v_add_f32 v11, v84, v85\nv_add_f32 v12, v86, v87\nv_add_f32 v11, v11, v12')
    A('v_add_f32_dpp v11, v11, v11 row_ror:4 row_mask:0xf bank_mask:0xf\nv_add_f32_dpp v11, v11, v11 row_ror:8 row_mask:0xf bank_mask:0xf')
    g.red_rows('v_add_f32', [11], [12])
    A('s_mov_b64 exec, 15\nds_write_b64 v13, v[10:11]\ns_mov_b64 exec, -1\ns_waitcnt lgkmcnt(0)\ns_barrier')
    A('ds_read_b64 v[24:25], v14\ns_waitcnt lgkmcnt(0)')
    A('v_max_f32_dpp v10, v24, v24 row_ror:4 row_mask:0xf bank_mask:0xf\nv_max_f32_dpp v10, v10, v10 row_ror:8 row_mask:0xf bank_mask:0xf')
    g.red_rows('v_max_f32', [10], [12])
    A(f'v_sub_f32 v24, v24, v10\nv_mul_f32 v24, 0x{LOG2E:x}, v24\nv_exp_f32 v24, v24\nv_mul_f32 v11, v24, v25')
    A('v_add_f32_dpp v11, v11, v11 row_ror:4 row_mask:0xf bank_mask:0xf\nv_add_f32_dpp v11, v11, v11 row_ror:8 row_mask:0xf bank_mask:0xf')
    g.red_rows('v_add_f32', [11], [12])
    g.nosent([10,11])
    g.stampw(15,19)
    A(f's_cmp_lg_u32 {sWAVE}, 0\ns_cbranch_scc1 L_STW')
    A('s_mov_b64 exec, 15')
    g.pub(f'buffer_store_dwordx2 v[10:11], v5, {RWL}, s83 offen', True)
    A('s_mov_b64 exec, -1')
    g.poll([f'buffer_load_dwordx2 v[26:27], v5, {RWL}, s82 offen sc1'], [26,27], 'v12', sleep=o.stsleep)
    A(f'ds_write_b64 v15, v[26:27]\ns_waitcnt lgkmcnt(0)')
    A('L_STW:\ns_barrier')
    A('ds_read_b64 v[26:27], v15\ns_waitcnt lgkmcnt(0)')
    A('v_max_f32 v28, v10, v26')
    A(f'v_sub_f32 v24, v10, v28\nv_sub_f32 v26, v26, v28\nv_mul_f32 v24, 0x{LOG2E:x}, v24\nv_mul_f32 v26, 0x{LOG2E:x}, v26\nv_exp_f32 v24, v24\nv_exp_f32 v26, v26')
    for r in range(4): A(f'v_sub_f32 v{80+r}, v{80+r}, v28')
    A('v_mul_f32 v11, v24, v11\nv_mul_f32 v27, v26, v27\nv_add_f32 v11, v11, v27')
    for r in range(4): A(f'v_mul_f32 v{80+r}, 0x{LOG2E:x}, v{80+r}')
    for r in range(4): A(f'v_exp_f32 v{80+r}, v{80+r}')
    A('v_rcp_f32 v12, v11\nv_fma_f32 v13, -v11, v12, 1.0\nv_fmac_f32 v12, v13, v12')
    for r in range(4): A(f'v_mul_f32 v{80+r}, v{80+r}, v12')
    A('v_cvt_pk_bf16_f32 v8, v80, v81\nv_cvt_pk_bf16_f32 v9, v82, v83')
    g.nosent([8,9])
    g.pub(f'buffer_store_dwordx2 v[8:9], v4, {RWL}, s81 offen', True)
    g.stampw(15,7)
    A(f's_cmp_eq_u32 {sJ}, 3\ns_cbranch_scc1 L_KW3')
    g.dma_voff('v12','v13',1024,'v14')
    A(f's_lshl_b32 s82, {sG}, 19\ns_lshl_b32 s83, {sWAVE}, 15\ns_add_u32 s82, s82, s83\ns_lshl_b32 s84, {sB}, 7\ns_add_u32 s82, s82, s84\ns_lshl_b32 s83, {sWAVE}, 12')
    blk_dma(RW1, 4, 's82', 1024, 's83', 'v12', 'v13')
    if not o.dnlate:
        A(f's_cmp_eq_u32 {sG}, 7\ns_cbranch_scc1 L_KWD0')
        A(f's_lshl_b32 s82, {sG}, 18\ns_lshl_b32 s83, {sWAVE}, 14\ns_add_u32 s82, s82, s83\ns_add_u32 s82, s82, s84\ns_lshl_b32 s83, {sWAVE}, 11\ns_add_u32 s83, s83, {L_W2}')
        blk_dma(RWD, 2, 's82', 1024, 's83', 'v12', 'v13')
        A('s_waitcnt vmcnt(2)\ns_branch L_KWD1\nL_KWD0:\ns_waitcnt vmcnt(0)\nL_KWD1:\ns_barrier')
    else:
        A('s_waitcnt vmcnt(0)\ns_barrier')
    A(f's_and_b32 s82, s2, 63\ns_and_b32 s84, {sWAVE}, 3')
    A(f's_cmp_ge_u32 {sWAVE}, 12\ns_cbranch_scc1 L_WO\ns_cmp_ge_u32 {sWAVE}, 8\ns_cbranch_scc1 L_DN')
    A(f'v_lshlrev_b32 v4, 4, v1\ns_lshl_b32 s80, {sG}, 13\ns_lshl_b32 s81, {sWAVE}, 10\ns_add_u32 s80, s80, s81\ns_add_u32 s85, s80, {GU}\ns_add_u32 s80, s80, {OO}')
    A(f's_mul_i32 s81, {sWAVE}, 1056\ns_add_u32 s81, s81, {L_ACT}\nv_add_u32 v5, s81, v4')
    A(f'v_bfe_u32 v7, v1, 1, 3\nv_mul_u32_u24 v6, 544, v7\nv_lshrrev_b32 v7, 4, v1\nv_lshl_add_u32 v6, v7, 5, v6\nv_and_b32 v7, 1, v1\nv_lshl_add_u32 v6, v7, 4, v6\ns_lshl_b32 s82, {sWAVE}, 7\ns_add_u32 s82, s82, {L_ACT2}\nv_add_u32 v6, s82, v6\ns_add_u32 s86, s85, 4096')
    g.poll([f'buffer_load_dwordx4 v[16:19], v4, {RWL}, s80 offen sc1'], range(16,20), 'v12', sleep=o.osleep)
    A('ds_write_b128 v5, v[16:19]\ns_waitcnt lgkmcnt(0)\ns_barrier')
    A(f's_cmp_ge_u32 {sWAVE}, 4\ns_cbranch_scc1 L_END\ns_cmp_eq_u32 {sG}, 7\ns_cbranch_scc1 L_END')
    g.poll([f'buffer_load_dwordx4 v[16:19], v4, {RWL}, s85 offen sc1', f'buffer_load_dwordx4 v[20:23], v4, {RWL}, s86 offen sc1'], range(16,24), 'v12')
    for i in range(8): g.unpack(16+i, 32+2*i, 33+2*i)
    for i in range(8): A(f'v_mul_f32 v{32+i}, v{32+i}, v{40+i}')
    for i in range(4): A(f'v_cvt_pk_bf16_f32 v{16+i}, v{32+2*i}, v{33+2*i}')
    A('ds_write_b128 v6, v[16:19]\ns_waitcnt lgkmcnt(0)\ns_barrier')
    A('s_branch L_END')
    A('L_WO:')
    g.tr_addr('v5', 's84', L_W, 'v6', 'v7')
    g.tr_frags('v5', 16, [4*((mp>>1)&3)+2*(mp>>3)+(mp&1) for mp in range(16)])
    g.act_addr('v6', L_ACT, 1056, 'v7')
    A(f's_lshl_b32 s83, s82, 11\ns_lshl_b32 s85, s84, 9\ns_add_u32 s83, s83, s85\ns_add_u32 s83, s83, {WP}')
    g.part_store_addr('v4', 's83', 'v7')
    A('s_waitcnt vmcnt(0) lgkmcnt(0)\ns_barrier')
    gemv16(16, 'v6', 8, [80,96])
    g.nosent(range(8,12))
    A(HALF)
    A(f'buffer_store_dwordx4 v[8:11], v4, {RWS}, 0 offen sc1')
    A('s_mov_b64 exec, -1')
    g.stampw(12,11)
    if o.stamps:
        A(f's_cmp_lg_u32 {sG}, 7\ns_cbranch_scc1 L_END\ns_cmp_eq_u32 {sWAVE}, 12\ns_cbranch_scc1 L_DUMP')
    A('s_branch L_END')
    A('L_DN:')
    g.tr_addr('v5', 's84', L_W2, 'v6', 'v7')
    g.act_addr('v6', L_ACT2, 544, 'v7')
    A(f's_lshl_b32 s83, s82, 11\ns_lshl_b32 s85, s84, 9\ns_add_u32 s83, s83, s85\ns_add_u32 s83, s83, {DP}')
    g.part_store_addr('v4', 's83', 'v7')
    A('s_waitcnt vmcnt(0)\ns_barrier')
    A(f's_cmp_eq_u32 {sG}, 7\ns_cbranch_scc1 L_END')
    if o.dnlate:
        A(f's_lshl_b32 s82, {sG}, 18\ns_lshl_b32 s83, s84, 16\ns_add_u32 s82, s82, s83\ns_lshl_b32 s83, {sB}, 7\ns_add_u32 s82, s82, s83\ns_lshl_b32 s83, s84, 13\ns_add_u32 s83, s83, {L_W2}')
        blk_dma(RWD, 8, 's82', 1024, 's83', 'v12', 'v13')
        A('s_waitcnt vmcnt(0)')
        lds_inc(F_SUB, 'v7')
        g.lds_spin('v3', F_SUB, 4, 'v7', sleep=0)
    g.tr_frags('v5', 16, range(8))
    A('s_waitcnt lgkmcnt(0)\ns_barrier')
    g.gemv_tile(16, 8, 'v6', 48, 8)
    g.nosent(range(8,12))
    A(HALF)
    A(f'buffer_store_dwordx4 v[8:11], v4, {RWS}, 0 offen sc1')
    A('s_mov_b64 exec, -1')
    g.stampw(8,14)
    if o.stamps:
        A(f's_cmp_eq_u32 {sWAVE}, 8\ns_cbranch_scc1 L_DUMP')
    A('s_branch L_END')
    A('L_KW3:')
    if o.stamps:
        A(f's_cmp_lg_u32 {sG}, 7\ns_cbranch_scc1 L_KW3a\ns_cmp_eq_u32 {sWAVE}, 15\ns_cbranch_scc1 L_DUMP\ns_branch L_END\nL_KW3a:')
    else:
        A(f's_cmp_eq_u32 {sG}, 7\ns_cbranch_scc1 L_END')
    g.dma_voff('v12','v13',3584,'v14')
    A(f's_mul_i32 s82, {sWAVE}, {32*3584}\ns_lshl_b32 s83, {sG}, 2\ns_and_b32 s84, {sB}, 3\ns_add_u32 s83, s83, s84\ns_lshl_b32 s83, s83, 7\ns_add_u32 s82, s82, s83\ns_lshl_b32 s83, {sWAVE}, 12')
    if o.gulate:
        A(f's_cmp_lg_u32 {sWAVE}, 0\ns_cbranch_scc1 L_GUW\ns_lshl_b32 s80, {sPAIR}, 10\ns_add_u32 s80, s80, {OO}\nv_mov_b32 v5, 0')
        g.poll([f'buffer_load_dword v16, v5, {RWL}, s80 offen sc1'], [16], 'v7', sleep=4)
        A('L_GUW:\ns_barrier')
    blk_dma(RW1, 4, 's82', 3584, 's83', 'v12', 'v13')
    A('s_waitcnt vmcnt(0)\ns_barrier')
    A(f's_cmp_ge_u32 {sWAVE}, 12\ns_cbranch_scc1 L_GU\ns_cmp_ge_u32 {sWAVE}, 8\ns_cbranch_scc1 L_END')
    A(f'v_lshlrev_b32 v4, 4, v1\ns_lshl_b32 s80, {sWAVE}, 12\ns_add_u32 s80, s80, {MT}\ns_add_u32 s81, s80, {MT2-MT}')
    A(f'ds_read_b32 v13, v3 offset:{F_E}\ns_waitcnt lgkmcnt(0)')
    xpoll([f'buffer_load_dwordx4 v[48:51], v4, {RWS}, s80 offen offset:1024 sc1', f'buffer_load_dwordx4 v[52:55], v4, {RWS}, s80 offen offset:2048 sc1',
           f'buffer_load_dwordx4 v[56:59], v4, {RWS}, s81 offen offset:1024 sc1', f'buffer_load_dwordx4 v[60:63], v4, {RWS}, s81 offen offset:2048 sc1'], 48, 56, 8, 'v13', 'v12', sleep=8)
    for i in range(8): g.unpack(48+i, 32+2*i, 33+2*i)
    for i in range(8): A(f'v_add_f32 v{40+i}, 1.0, v{40+i}')
    for i in range(4): g.rnd2(40+2*i,41+2*i,13)
    A(f's_mul_i32 s81, {sWAVE}, 1056\ns_add_u32 s81, s81, {L_ACT}\nv_add_u32 v5, s81, v4')
    A(f'v_lshrrev_b32 v7, 3, v1\nv_lshlrev_b32 v4, 10, v7\nv_and_b32 v7, 7, v1\nv_lshl_add_u32 v4, v7, 4, v4')
    A(f's_lshl_b32 s80, {sG}, 13\ns_lshl_b32 s81, {sWAVE}, 7\ns_add_u32 s80, s80, s81\ns_add_u32 s80, s80, {X1}')
    g.poll([f'buffer_load_dwordx4 v[8:11], v4, {RWL}, s80 offen sc1'], range(8,12), 'v12', sleep=o.osleep)
    g.ln8(8, 16, 48)
    for i in range(8): A(f'v_mul_f32 v{16+i}, v{16+i}, v{40+i}')
    for i in range(4): g.rnd2(16+2*i,17+2*i,48+i)
    for i in range(8): A(f'v_add_f32 v{16+i}, v{16+i}, v{32+i}')
    for i in range(4): A(f'v_cvt_pk_bf16_f32 v{8+i}, v{16+2*i}, v{17+2*i}')
    A('ds_write_b128 v5, v[8:11]\ns_waitcnt lgkmcnt(0)\ns_barrier')
    A('s_branch L_END')
    A('L_GU:')
    A(f's_and_b32 s84, {sWAVE}, 3')
    g.tr_addr('v5', 's84', L_W, 'v6', 'v7')
    g.tr_frags('v5', 16, range(16))
    g.act_addr('v6', L_ACT, 1056, 'v7')
    A(f's_lshl_b32 s83, {sPAIR}, 10\ns_lshl_b32 s85, s84, 8\ns_add_u32 s83, s83, s85\ns_add_u32 s83, s83, {GU}')
    A('v_and_b32 v7, 15, v1\nv_lshlrev_b32 v4, 5, v7\nv_lshrrev_b32 v7, 4, v1\nv_lshl_add_u32 v4, v7, 3, v4')
    A('s_waitcnt lgkmcnt(0)\ns_barrier')
    gemv16(16, 'v6', 8, [80,96])
    g.rnd2(8,9,12); g.rnd2(10,11,13)
    A(f's_cmp_ge_u32 {sB}, 4\ns_cbranch_scc1 L_T2U')
    g.silu_inplace([8,9,10,11],[16,17,18,19])
    A('v_cvt_pk_bf16_f32 v12, v8, v9\nv_cvt_pk_bf16_f32 v13, v10, v11')
    A('L_T2U:')
    g.nosent([12,13])
    A(HALF)
    g.pub(f'buffer_store_dwordx2 v[12:13], v4, {RWL}, s83 offen', True)
    A('s_mov_b64 exec, -1')
    g.stampw(12,13)
    if o.stamps:
        A(f's_cmp_lg_u32 {sWAVE}, 12\ns_cbranch_scc1 L_END')
    A('L_DUMP:')
    if o.stamps:
        A(f'v_lshlrev_b32 v4, 2, v1\nv_add_u32 v5, {L_STAMP}, v4\nds_read_b32 v6, v5\nv_mov_b32 v7, 0\nv_lshlrev_b32 v4, 3, v1')
        A(f's_add_u32 s80, s58, 0x{STAMP:x}\ns_addc_u32 s81, s59, 0\ns_lshl_b32 s82, s2, 8\ns_add_u32 s80, s80, s82\ns_addc_u32 s81, s81, 0')
        A('s_waitcnt lgkmcnt(0)\ns_mov_b32 exec_hi, 0\nglobal_store_dwordx2 v4, v[6:7], s[80:81]')
        if o.dbgst:
            A('s_mov_b64 exec, -1\nv_mov_b32 v8, 0')
            for i,sl in enumerate(o.dbgst): A(f'v_writelane_b32 v8, {sl}, {i+1}')
            A(f'v_lshlrev_b32 v8, 2, v8\nv_add_u32 v8, {L_STAMP}, v8\nds_read_b32 v9, v8\nds_read_b32 v10, v3 offset:{F_E}\nv_lshlrev_b32 v11, 2, v1\ns_waitcnt lgkmcnt(0)')
            A(f'v_cmp_ne_u32 vcc, 0, v9\nv_sub_u32 v9, v9, v10\nv_add_u32 v9, 1000, v9\ns_and_b32 exec_lo, vcc_lo, 0xfffe\ns_mov_b32 exec_hi, 0\ns_cbranch_execz L_END')
            A(f'buffer_atomic_umax v9, v11, {RDBG}, 0 offen sc1')
            if o.probe>=0:
                A(f's_mov_b64 exec, -1\ns_cmp_lg_u32 {sJ}, 0\ns_cbranch_scc1 L_END\ns_memrealtime s[96:97]\ns_waitcnt lgkmcnt(0)\ns_add_u32 s80, s96, 300')
                A('L_PW1:\ns_memrealtime s[98:99]\ns_waitcnt lgkmcnt(0)\ns_sub_u32 s81, s98, s80\ns_cmp_lt_i32 s81, 0\ns_cbranch_scc1 L_PW1')
                if o.probe>0:
                    A(f'v_mov_b32 v11, {4*o.probe}\nbuffer_load_dword v9, v11, {RDBG}, 0 offen sc1\ns_waitcnt vmcnt(0)\nv_readfirstlane_b32 s82, v9\ns_sub_u32 s82, s82, 1000\ns_and_b32 s82, s82, 0x1fff')
                else:
                    A('s_mov_b32 s82, 0')
                A('s_add_u32 s80, s80, 100\ns_add_u32 s80, s80, s82')
                A('L_PW2:\ns_memrealtime s[98:99]\ns_waitcnt lgkmcnt(0)\ns_sub_u32 s81, s98, s80\ns_cmp_lt_i32 s81, 0\ns_cbranch_scc1 L_PW2')
    A('L_END:\ns_endpgm\nL_CODE_END:')
    return g.L

def emit(o, fname):
    body = build(o)
    body, n = fix_hazards(body)
    hdr = open('cdna_kernels/'+NAME+'.s.ref').read().split('; Override launch')[0]
    out = hdr + f'; @launch grid=(256,1,1) block=(1024,1,1) lds={LDS_SIZE}\n'
    out += f'.amdgcn_target "amdgcn-amd-amdhsa--gfx950"\n.text\n.globl {NAME}_kernel\n.p2align 8\n.type {NAME}_kernel,@function\n{NAME}_kernel:\n'
    out += '\n'.join(('' if l.endswith(':') else '    ')+l for l in body) + '\n'
    out += f'''.section .rodata,"a"
.p2align 6
.amdhsa_kernel {NAME}_kernel
  .amdhsa_next_free_vgpr 128
  .amdhsa_next_free_sgpr 102
  .amdhsa_accum_offset 128
  .amdhsa_group_segment_fixed_size 0
  .amdhsa_kernarg_size 112
  .amdhsa_user_sgpr_count 2
  .amdhsa_user_sgpr_kernarg_segment_ptr 1
  .amdhsa_system_sgpr_workgroup_id_x 1
  .amdhsa_float_denorm_mode_32 3
  .amdhsa_float_denorm_mode_16_64 3
.end_amdhsa_kernel
'''
    open(fname,'w').write(out)
    print(fname, len(body), 'lines', n, 'nops inserted')

if __name__=='__main__':
    ap=argparse.ArgumentParser()
    ap.add_argument('-o', default='k.s')
    ap.add_argument('--stamps', action='store_true')
    ap.add_argument('--local', action='store_true')
    for k,d in dict(codepf=1,mpdelay=0,mpsleep=2,fldelay=40,hdelay=8,mtearly=0,pgate=12,psleep=4,thr=0,thrw=4,qdelay=8,qsleep=2,stsleep=0,osleep=0,gulate=1,dnlate=1).items():
        ap.add_argument('--'+k, type=int, default=d)
    ap.add_argument('--dearly', type=lambda x:[int(t) for t in x.split(',') if t], default=[4,5,6,7])
    ap.add_argument('--cearly', type=lambda x:[int(t) for t in x.split(',') if t], default=[])
    ap.add_argument('--cpre', type=lambda x:[int(t) for t in x.split(',') if t], default=[])
    ap.add_argument('--dbgst', type=lambda x:[int(t) for t in x.split(',') if t], default=[])
    ap.add_argument('--probe', type=int, default=-1)
    o=ap.parse_args()
    emit(o, o.o)
```

```python
import sys, argparse
from asmlib import fix_hazards
NAME='adaLN_cond__sliding_block_cached__swiglu_ffn__decode'

PP=0x000000; OO=0x100000; ST=0x110000; X1=0x120000; GU=0x130000; LREG=0x140000; GOFF=0x180000
QF=0x300000; QF2=0x310000; HH=0x320000; HH2=0x322000; MT=0x400000; MT2=0x420000; WP=0x440000; DP=0x460000
MP=0x480000; MP2=0x4A0000; FL=0x4C0000; FLB=0x4C8000; WS_USED=0x4D0000
STAMP=0x10000000
L_W=0x0; L_W2=0x10000; L_WM=0x10000; L_KS=0x0; KS_SZ=4352
L_OP=0x18000
L_Y=0x14000; L_H=0x18000
L_ACT=0x20000; L_ACT2=0x18000; L_Q=0x22200; L_FLAGS=0x22800; L_X1S=0x22900; L_STAMP=0x23100; LDS_SIZE=0x23400
F_QREADY=4; F_MODE=8; F_E=12; F_SUB=16; F_Y=20; F_C1=24; F_C3=28; F_CLR=32; F_MOK=36; F_R=40; F_GO=44; F_VGO=48; F_KL=52
sWAVE,sG,sB,sJ,sMODE = 's3','s4','s5','s6','s7'
RK,RV,RWS,RW1,RWM,RC,RX,ROUT,RDBG = 's[8:11]','s[12:15]','s[16:19]','s[20:23]','s[24:27]','s[28:31]','s[60:63]','s[64:67]','s[68:71]'
RWL='s[92:95]'
sTO='s72'
sPAIR='s73'
sW8='s74'
LOG2E=0x3fb8aa3b
SCALE=0x3db504f3

class G:
    def __init__(self, opt):
        self.L=[]; self.o=opt; self.nl=0; self.nstamp=0
    def __call__(self, s):
        for l in s.split('\n'):
            l=l.strip()
            if l: self.L.append(l)
    def lab(self, p='L'):
        self.nl+=1; return f'{p}_{self.nl}'
    def stamp(self, slot, va='v126', vb='v127'):
        if not self.o.stamps: return
        self(f's_memrealtime s[98:99]\ns_waitcnt lgkmcnt(0)\nv_mov_b32 {va}, {L_STAMP+4*slot}\nv_mov_b32 {vb}, s98\nds_write_b32 {va}, {vb}\ns_waitcnt lgkmcnt(0)')
    def stampw(self, wave, slot):
        if not self.o.stamps: return
        l=self.lab('NSW')
        self(f's_cmp_lg_u32 {sWAVE}, {wave}\ns_cbranch_scc1 {l}')
        self.stamp(slot)
        self(f'{l}:')
    def timeout(self, done):
        self(f's_cmp_eq_u32 {sTO}, 0\ns_cbranch_scc1 {done}\ns_sub_u32 {sTO}, {sTO}, 1')
    def lds_spin(self, vflag, off, target, vt, st='s76', sleep=1):
        a=self.lab('SPIN'); d=self.lab('SPD')
        self(f'{a}:\nds_read_b32 {vt}, {vflag} offset:{off}\ns_waitcnt lgkmcnt(0)\nv_readfirstlane_b32 {st}, {vt}\ns_cmp_ge_u32 {st}, {target}\ns_cbranch_scc1 {d}')
        self.timeout(d)
        if sleep: self(f's_sleep {sleep}')
        self(f's_branch {a}\n{d}:')
    def lds_set(self, vflag, off, val, vt):
        self(f'v_mov_b32 {vt}, {val}\nds_write_b32 {vflag}, {vt} offset:{off}')
    def poll(self, loads, regs, vt, sleep=0):
        a=self.lab('POLL'); d=self.lab('PLD')
        self(f'{a}:')
        for l in loads: self(l)
        self('s_waitcnt vmcnt(0)')
        self.chk(regs, vt)
        self(f's_cbranch_vccz {d}')
        self.timeout(d)
        if sleep: self(f's_sleep {sleep}')
        self(f's_branch {a}\n{d}:')
    def chk(self, regs, vt):
        r=list(regs)
        if len(r)==1:
            self(f'v_cmp_eq_u32 vcc, -1, v{r[0]}'); return
        if len(r)==2:
            self(f'v_max_u32 {vt}, v{r[0]}, v{r[1]}')
        else:
            self(f'v_max3_u32 {vt}, v{r[0]}, v{r[1]}, v{r[2]}')
            r=r[3:]
            while len(r)>=2:
                self(f'v_max3_u32 {vt}, {vt}, v{r[0]}, v{r[1]}'); r=r[2:]
            if r: self(f'v_max_u32 {vt}, {vt}, v{r[0]}')
        self(f'v_cmp_eq_u32 vcc, -1, {vt}')
    def nosent(self, regs):
        for r in regs: self(f'v_min_u32 v{r}, -2, v{r}')
    def pub(self, instr, local_ok=False):
        if local_ok:
            a=self.lab('PUBL'); d=self.lab('PUBD')
            self(f's_cmp_eq_u32 {sMODE}, 1\ns_cbranch_scc1 {a}\n{instr} sc1\ns_branch {d}\n{a}:\n{instr}\n{d}:')
        else:
            self(instr+' sc1')
    def unpack(self, src, dlo, dhi):
        self(f'v_lshlrev_b32 v{dlo}, 16, v{src}\nv_and_b32 v{dhi}, 0xffff0000, v{src}')
    def rnd2(self, a, b, t):
        self(f'v_cvt_pk_bf16_f32 v{t}, v{a}, v{b}')
        self.unpack(t, a, b)
    def wave_red(self, op, regs, tmps):
        for mod in ('quad_perm:[1,0,3,2]','quad_perm:[2,3,0,1]','row_half_mirror','row_mirror'):
            for r in regs: self(f'{op}_dpp v{r}, v{r}, v{r} {mod} row_mask:0xf bank_mask:0xf')
        self.red_rows(op, regs, tmps)
    def red_rows(self, op, regs, tmps):
        for sw in ('v_permlane16_swap_b32','v_permlane32_swap_b32'):
            for r,t in zip(regs,tmps): self(f'v_mov_b32 v{t}, v{r}')
            for r,t in zip(regs,tmps): self(f'{sw} v{r}, v{t}')
            for r,t in zip(regs,tmps): self(f'{op} v{r}, v{r}, v{t}')
    def silu_inplace(self, xs, ts):
        self(f's_mov_b32 s77, 0x{(LOG2E|0x80000000):x}')
        for x,t in zip(xs,ts): self(f'v_mul_f32 v{t}, s77, v{x}')
        for x,t in zip(xs,ts): self(f'v_exp_f32 v{t}, v{t}')
        for x,t in zip(xs,ts): self(f'v_add_f32 v{t}, 1.0, v{t}')
        for x,t in zip(xs,ts): self(f'v_rcp_f32 v{t}, v{t}')
        for x,t in zip(xs,ts): self(f'v_mul_f32 v{x}, v{x}, v{t}')
    def silu8(self, src, x0, t0):
        for i in range(4): self.unpack(src+i, x0+2*i, x0+2*i+1)
        self.silu_inplace(list(range(x0,x0+8)), list(range(t0,t0+8)))
        for i in range(4): self(f'v_cvt_pk_bf16_f32 v{src+i}, v{x0+2*i}, v{x0+2*i+1}')
    def ln8(self, src, x0, t0):
        X=list(range(x0,x0+8)); T=list(range(t0,t0+8)); s1,s2,u1,u2=t0+8,t0+9,t0+10,t0+11
        for i in range(4): self.unpack(src+i, x0+2*i, x0+2*i+1)
        self(f'v_readfirstlane_b32 s77, v{x0}')
        for x,t in zip(X,T): self(f'v_subrev_f32 v{t}, s77, v{x}')
        self(f'v_add_f32 v{s1}, v{T[0]}, v{T[1]}\nv_mul_f32 v{s2}, v{T[0]}, v{T[0]}')
        self(f'v_fmac_f32 v{s2}, v{T[1]}, v{T[1]}')
        for t in T[2:]:
            self(f'v_add_f32 v{s1}, v{s1}, v{t}\nv_fmac_f32 v{s2}, v{t}, v{t}')
        self.wave_red('v_add_f32', [s1,s2], [u1,u2])
        self(f'v_mul_f32 v{s1}, 0x3b000000, v{s1}\nv_mul_f32 v{s2}, 0x3b000000, v{s2}')
        self(f'v_fma_f32 v{s2}, -v{s1}, v{s1}, v{s2}\nv_max_f32 v{s2}, 0, v{s2}\nv_add_f32 v{s1}, s77, v{s1}')
        self.rnd2(s1, s2, u1)
        self(f'v_add_f32 v{s2}, 0x3727c5ac, v{s2}')
        self(f'v_cvt_pk_bf16_f32 v{u1}, v{s2}, v{s2}\nv_lshlrev_b32 v{s2}, 16, v{u1}\nv_sqrt_f32 v{s2}, v{s2}')
        self(f'v_cvt_pk_bf16_f32 v{u1}, v{s2}, v{s2}\nv_lshlrev_b32 v{s2}, 16, v{u1}\nv_rcp_f32 v{s2}, v{s2}')
        for x in X: self(f'v_sub_f32 v{x}, v{x}, v{s1}')
        for i in range(4): self.rnd2(X[2*i], X[2*i+1], T[i])
        for x in X: self(f'v_mul_f32 v{x}, v{x}, v{s2}')
        for i in range(4): self.rnd2(X[2*i], X[2*i+1], T[i])
    def dma_voff(self, ve, vo, pitch, vt):
        self(f'v_lshrrev_b32 {vt}, 3, v1\ns_mov_b32 s77, {pitch}\nv_mul_lo_u32 {ve}, {vt}, s77')
        self(f'v_bfe_u32 {vt}, v1, 4, 1\nv_lshlrev_b32 {vt}, 1, {vt}\nv_and_b32 {vo}, 7, v1\nv_xor_b32 {vt}, {vt}, {vo}\nv_lshlrev_b32 {vt}, 4, {vt}\nv_add_u32 {ve}, {ve}, {vt}\nv_xor_b32 {vo}, 64, {ve}')
    def dma(self, srd, voff, s_src, src_imm, s_lds, lds_imm, nt=True):
        self(f's_add_u32 s78, {s_src}, {src_imm}\ns_add_u32 m0, {s_lds}, {lds_imm}')
        self(f'buffer_load_dwordx4 {voff}, {srd}, s78 offen{" nt" if nt else ""} lds')
    def tr_addr(self, vd, s_ct, base, vt, vt2):
        self(f'v_lshrrev_b32 {vt}, 4, v1\nv_lshlrev_b32 {vd}, 10, {vt}\nv_and_b32 {vt}, 1, {vt}\nv_lshlrev_b32 {vt}, 1, {vt}')
        self(f'v_bfe_u32 {vt2}, v1, 3, 1\nv_or_b32 {vt}, {vt}, {vt2}\nv_xor_b32 {vt}, {s_ct}, {vt}\nv_lshl_add_u32 {vd}, {vt}, 5, {vd}')
        self(f'v_bfe_u32 {vt}, v1, 2, 2\nv_lshl_add_u32 {vd}, {vt}, 7, {vd}\nv_and_b32 {vt}, 3, v1\nv_lshl_add_u32 {vd}, {vt}, 3, {vd}\nv_add_u32 {vd}, {base}, {vd}')
    def tr_frags(self, vaddr, r0, msteps):
        for i,m in enumerate(msteps):
            self(f'ds_read_b64_tr_b16 v[{r0+4*i}:{r0+4*i+1}], {vaddr} offset:{m*4096}\nds_read_b64_tr_b16 v[{r0+4*i+2}:{r0+4*i+3}], {vaddr} offset:{m*4096+512}')
    def act_addr(self, vd, base, pitch, vt):
        self(f'v_and_b32 {vt}, 7, v1\nv_mul_u32_u24 {vd}, {pitch}, {vt}\nv_lshrrev_b32 {vt}, 4, v1\nv_lshl_add_u32 {vd}, {vt}, 4, {vd}\nv_add_u32 {vd}, {base}, {vd}')
    def gemv_tile(self, wf0, nk, vact, a0, d0):
        for m in range(nk): self(f'ds_read_b128 v[{a0+4*m}:{a0+4*m+3}], {vact} offset:{m*64}')
        for m in range(nk):
            self(f's_waitcnt lgkmcnt({min(15,nk-1-m)})')
            c = '0' if m==0 else f'v[{d0}:{d0+3}]'
            self(f'v_mfma_f32_16x16x32_bf16 v[{d0}:{d0+3}], v[{wf0+4*m}:{wf0+4*m+3}], v[{a0+4*m}:{a0+4*m+3}], {c}')
    def part_store_addr(self, vd, s_base, vt):
        self(f'v_and_b32 {vt}, 15, v1\nv_lshlrev_b32 {vd}, 6, {vt}\nv_lshrrev_b32 {vt}, 4, v1\nv_lshl_add_u32 {vd}, {vt}, 4, {vd}\nv_add_u32 {vd}, {s_base}, {vd}')

def build(o):
    g=G(o); A=g
    HALF='s_mov_b32 exec_lo, 0x00ff00ff\ns_mov_b32 exec_hi, 0x00ff00ff'
    HI8='s_mov_b32 vcc_lo, 0xff00ff00\ns_mov_b32 vcc_hi, 0xff00ff00'
    SENT='v_mov_b32 v8, -1\nv_mov_b32 v9, -1\nv_mov_b32 v10, -1\nv_mov_b32 v11, -1\nv_lshlrev_b32 v5, 4, v1'
    def lds_inc(off, vt):
        A(f'v_mov_b32 {vt}, 1\ns_mov_b64 exec, 1\nds_add_u32 v3, {vt} offset:{off}\ns_mov_b64 exec, -1')
    def xor_chk(a0, b0, n, vE, vt):
        for i in range(n): A(f'v_xor_b32 v{b0+i}, v{b0+i}, v{a0+i}')
        A(f'v_xor_b32 {vt}, v{b0}, {vE}')
        for i in range(1,n): A(f'v_bitop3_b32 {vt}, {vt}, v{b0+i}, {vE} bitop3:0xf6')
        A(f'v_cmp_ne_u32 vcc, 0, {vt}')
    def xpoll(loads, a0, b0, n, vE, vt, sleep=0):
        a=g.lab('XP'); d=g.lab('XPD')
        A(f'{a}:')
        for l in loads: A(l)
        A('s_waitcnt vmcnt(0)')
        xor_chk(a0,b0,n,vE,vt)
        A(f's_cbranch_vccz {d}')
        g.timeout(d)
        if sleep: A(f's_sleep {sleep}')
        A(f's_branch {a}\n{d}:')
    def get_E(vd): g.lds_spin('v3', F_E, 1, vd, sleep=1)
    def pair_prep(vaddr, delta, vE, vEm, vt):
        A(HI8)
        A(f'v_mov_b32 {vt}, {delta}\nv_cndmask_b32 {vt}, 0, {vt}, vcc\nv_add_u32 {vaddr}, {vaddr}, {vt}\nv_cndmask_b32 {vEm}, 0, {vE}, vcc')
    def get_mode(vt):
        g.lds_spin('v3', F_MOK, 1, vt, sleep=1)
        A(f'ds_read_b32 {vt}, v3 offset:{F_MODE}\ns_waitcnt lgkmcnt(0)')
        A(f'v_readfirstlane_b32 {sMODE}, {vt}\ns_cmp_eq_u32 {sMODE}, 1\ns_cselect_b64 s[92:93], s[58:59], s[100:101]')
    def blk_dma(srd, n, s_src, pitch, s_lds, ve, vo):
        for i in range(n): g.dma(srd, vo if i&1 else ve, s_src, i*8*pitch, s_lds, i*1024)
    def gemv16(wf, vact, d, ab, order=None):
        def rd(gq):
            for m in range(4): A(f'ds_read_b128 v[{ab[gq&1]+4*m}:{ab[gq&1]+4*m+3}], {vact} offset:{(4*gq+m)*64}')
        rd(0); rd(1)
        for gq in range(4):
            for m in range(4):
                A(f's_waitcnt lgkmcnt({(4 if gq<3 else 0)+3-m})')
                c='0' if (gq==0 and m==0) else f'v[{d}:{d+3}]'
                A(f'v_mfma_f32_16x16x32_bf16 v[{d}:{d+3}], v[{wf+16*gq+4*m}:{wf+16*gq+4*m+3}], v[{ab[gq&1]+4*m}:{ab[gq&1]+4*m+3}], {c}')
            if gq<2: rd(gq+2)
    def clear_all_local(fl):
        A(SENT)
        A(f's_cmp_ge_u32 {sJ}, 2\ns_cbranch_scc1 L_CAK')
        A(f's_lshl_b32 s80, {sPAIR}, 10\ns_lshl_b32 s81, {sJ}, 9\ns_add_u32 s81, s81, s80\ns_add_u32 s81, s81, {OO}\ns_mov_b32 exec_hi, 0')
        A(f'buffer_store_dwordx4 v[8:11], v5, {RWL}, s81 offen{fl}\ns_mov_b64 exec, -1')
        A(f's_cmp_lg_u32 {sJ}, 0\ns_cbranch_scc1 L_CAD\ns_add_u32 s80, s80, {X1}')
        A(f'buffer_store_dwordx4 v[8:11], v5, {RWL}, s80 offen{fl}\ns_branch L_CAD')
        A('L_CAK:')
        A(f's_lshl_b32 s80, {sPAIR}, 14\ns_and_b32 s81, {sJ}, 1\ns_lshl_b32 s82, s81, 13\ns_add_u32 s80, s80, s82')
        for i in range(8):
            if i==4: A('s_add_u32 s80, s80, 4096')
            A(f'buffer_store_dwordx4 v[8:11], v5, {RWL}, s80 offen offset:{(i%4)*1024}{fl}')
        A(f's_lshl_b32 s80, {sPAIR}, 10\ns_lshl_b32 s82, s81, 9\ns_add_u32 s82, s82, s80\ns_add_u32 s82, s82, {ST}\ns_mov_b32 exec_hi, 0')
        A(f'buffer_store_dwordx4 v[8:11], v5, {RWL}, s82 offen{fl}\ns_mov_b64 exec, -1')
        A(f's_cmp_lg_u32 {sJ}, 3\ns_cbranch_scc1 L_CAD\ns_add_u32 s80, s80, {GU}')
        A(f'buffer_store_dwordx4 v[8:11], v5, {RWL}, s80 offen{fl}')
        A('L_CAD:')

    A(f"""s_cmp_ge_u32 s2, 256
s_cbranch_scc1 L_END
s_load_dwordx16 s[32:47], s[0:1], 0
s_load_dwordx8 s[48:55], s[0:1], 64
s_load_dwordx4 s[56:59], s[0:1], 96
v_and_b32 v1, 63, v0
v_lshrrev_b32 v2, 6, v0
v_readfirstlane_b32 {sWAVE}, v2
s_and_b32 {sG}, s2, 7
s_bfe_u32 {sB}, s2, 0x30003
s_lshr_b32 {sJ}, s2, 6
s_mov_b32 {sMODE}, 0
s_mov_b32 {sTO}, 0x200000
s_lshl_b32 {sPAIR}, {sG}, 3
s_add_u32 {sPAIR}, {sPAIR}, {sB}
s_and_b32 {sW8}, {sWAVE}, 7
v_mov_b32 v3, {L_FLAGS}
v_lshl_add_u32 v4, v1, 2, v3
v_mov_b32 v5, 0
s_cmp_lg_u32 {sWAVE}, 0
s_cbranch_scc1 L_NOINIT
ds_write_b32 v4, v5""")
    if o.stamps: A(f'ds_write_b32 v4, v5 offset:{L_STAMP-L_FLAGS}')
    A(f"""L_NOINIT:
s_lshl_b32 s76, {sB}, 24
s_lshl_b32 s77, {sG}, 21
s_add_u32 s76, s76, s77
s_add_u32 s76, s76, 0x180000
s_mov_b32 s10, 0x80000
s_mov_b32 s11, 0x20000
s_mov_b32 s14, 0x1c0000
s_mov_b32 s15, 0x20000
s_mov_b32 s18, {WS_USED}
s_mov_b32 s19, 0x20000
s_mov_b32 s26, 0x300000
s_mov_b32 s27, 0x20000
s_mov_b32 s30, 0x2000
s_mov_b32 s31, 0x20000
s_mov_b32 s62, 0x2000
s_mov_b32 s63, 0x20000
s_mov_b32 s66, 0x2000
s_mov_b32 s67, 0x20000
s_mov_b32 s70, 0x100
s_mov_b32 s71, 0x20000
s_mov_b32 s22, 0x400000
s_mov_b32 s23, 0x20000
s_mov_b32 s94, {LREG}
s_mov_b32 s95, 0x20000
s_cmp_eq_u32 {sJ}, 3
s_cselect_b32 s22, 0x1c0000, s22
s_waitcnt lgkmcnt(0)
s_cmp_ge_u32 {sJ}, 2
s_cselect_b64 s[8:9], s[34:35], s[36:37]
s_add_u32 s8, s8, s76
s_addc_u32 s9, s9, 0
s_mov_b64 s[12:13], s[48:49]
s_mov_b64 s[16:17], s[58:59]
s_mov_b64 s[24:25], s[52:53]
s_mov_b64 s[28:29], s[50:51]
s_mov_b64 s[60:61], s[32:33]
s_mov_b64 s[64:65], s[54:55]
s_mov_b64 s[68:69], s[56:57]
s_mov_b64 s[20:21], s[38:39]
s_cmp_eq_u32 {sJ}, 2
s_cselect_b64 s[20:21], s[40:41], s[20:21]
s_cmp_lt_u32 {sB}, 4
s_cselect_b64 s[76:77], s[44:45], s[46:47]
s_cmp_eq_u32 {sJ}, 3
s_cselect_b64 s[20:21], s[76:77], s[20:21]
s_mov_b64 s[92:93], s[58:59]
s_add_u32 s100, s58, {GOFF}
s_addc_u32 s101, s59, 0""")
    RKV=RK; RWD=RV
    A(f's_cmp_lg_u32 s2, 0\ns_cbranch_scc1 L_NOE\ns_cmp_lg_u32 {sWAVE}, 0\ns_cbranch_scc1 L_NOE')
    A(f's_memrealtime s[96:97]\ns_waitcnt lgkmcnt(0)\ns_or_b32 s76, s96, 1\nv_mov_b32 v5, s76\nv_lshlrev_b32 v6, 7, v1\ns_mov_b64 exec, 3\nbuffer_store_dword v5, v6, {RDBG}, 0 offen sc1\ns_mov_b64 exec, -1')
    A('L_NOE:')
    A(f's_cmp_ge_u32 {sJ}, 2\ns_cbranch_scc1 L_PREK')
    A(f's_cmp_eq_u32 {sWAVE}, 13\ns_cbranch_scc1 L_PRE13\ns_cmp_eq_u32 {sWAVE}, 15\ns_cbranch_scc1 L_PREV15')
    A(f's_cmp_lg_u32 {sJ}, 0\ns_cbranch_scc1 L_B0\ns_cmp_ge_u32 {sWAVE}, 12\ns_cbranch_scc1 L_B0\ns_cmp_ge_u32 {sWAVE}, 8\ns_cbranch_scc1 L_PREC')
    A(f's_and_b32 s80, s2, 15\ns_lshr_b32 s81, s2, 4')
    g.dma_voff('v12','v13',6144,'v14')
    A(f's_lshl_b32 s84, s81, 7\ns_lshl_b32 s85, {sWAVE}, 4\ns_add_u32 s84, s84, s85\ns_mul_i32 s84, s84, 6144\ns_lshl_b32 s85, s80, 7\ns_add_u32 s84, s84, s85')
    A(f's_lshl_b32 s85, {sWAVE}, 11\ns_add_u32 s85, s85, {L_WM}')
    blk_dma(RWM, 2, 's84', 6144, 's85', 'v12', 'v13')
    A(f's_cmp_lt_u32 {sWAVE}, 4\ns_cbranch_scc1 L_B0')
    A(f'v_lshlrev_b32 v4, 4, v1\ns_and_b32 s87, {sWAVE}, 3\ns_lshl_b32 s87, s87, 11')
    A(f'buffer_load_dwordx4 v[88:91], v4, {RX}, s87 offen\nbuffer_load_dwordx4 v[92:95], v4, {RX}, s87 offen offset:1024\ns_branch L_B0')
    A('L_PREC:')
    A(f'v_lshlrev_b32 v4, 4, v1\ns_lshl_b32 s83, {sW8}, 11')
    A(f'buffer_load_dwordx4 v[104:107], v4, {RC}, s83 offen\nbuffer_load_dwordx4 v[100:103], v4, {RC}, s83 offen offset:1024\ns_branch L_B0')
    A('L_PREV15:')
    A(SENT)
    A(f's_lshl_b32 s80, {sPAIR}, 10\ns_lshl_b32 s81, {sJ}, 9\ns_add_u32 s81, s81, s80\ns_add_u32 s81, s81, {OO}\ns_mov_b32 exec_hi, 0')
    A(f'buffer_store_dwordx4 v[8:11], v5, {RWL}, s81 offen\ns_mov_b64 exec, -1')
    A(f's_cmp_lg_u32 {sJ}, 0\ns_cbranch_scc1 L_B0\ns_add_u32 s80, s80, {X1}')
    A(f'buffer_store_dwordx4 v[8:11], v5, {RWL}, s80 offen\ns_branch L_B0')
    A('L_PREK:')
    A(f's_cmp_lt_u32 {sWAVE}, 8\ns_cbranch_scc1 L_B0\ns_cmp_eq_u32 {sWAVE}, 14\ns_cbranch_scc1 L_B0\ns_cmp_eq_u32 {sWAVE}, 13\ns_cbranch_scc1 L_PRE13')
    A(SENT)
    A(f's_and_b32 s81, {sJ}, 1\ns_and_b32 s83, s2, 63\ns_lshl_b32 s83, s83, 11')
    A(f's_cmp_ge_u32 {sWAVE}, 12\ns_cbranch_scc1 L_PREK2')
    A(f's_lshl_b32 s80, {sPAIR}, 14\ns_lshl_b32 s82, s81, 13\ns_add_u32 s80, s80, s82\ns_lshl_b32 s82, {sW8}, 11\ns_add_u32 s80, s80, s82')
    A(f'buffer_store_dwordx4 v[8:11], v5, {RWL}, s80 offen\nbuffer_store_dwordx4 v[8:11], v5, {RWL}, s80 offen offset:1024\ns_branch L_B0')
    A('L_PREK2:')
    A(f's_cmp_eq_u32 {sWAVE}, 15\ns_cbranch_scc1 L_PREK3')
    A(f's_lshl_b32 s80, {sPAIR}, 10\ns_lshl_b32 s82, s81, 9\ns_add_u32 s82, s82, s80\ns_add_u32 s82, s82, {ST}\ns_mov_b32 exec_hi, 0')
    A(f'buffer_store_dwordx4 v[8:11], v5, {RWL}, s82 offen\ns_mov_b64 exec, -1')
    A(f's_cmp_eq_u32 {sJ}, 2\ns_cbranch_scc1 L_PREK4\ns_add_u32 s80, s80, {GU}')
    A(f'buffer_store_dwordx4 v[8:11], v5, {RWL}, s80 offen\ns_branch L_B0')
    A(f'L_PREK4:\ns_add_u32 s80, s83, {WP}\ns_branch L_PREK5')
    A(f'L_PREK3:\ns_cmp_lg_u32 {sJ}, 2\ns_cbranch_scc1 L_B0\ns_add_u32 s80, s83, {DP}')
    A(f'L_PREK5:\nbuffer_store_dwordx4 v[8:11], v5, {RWS}, s80 offen sc1\nbuffer_store_dwordx4 v[8:11], v5, {RWS}, s80 offen offset:1024 sc1\ns_branch L_B0')
    A('L_PRE13:')
    if o.codepf:
        A(f's_getpc_b64 s[80:81]\nL_PC:\ns_sub_u32 s80, s80, L_PC-{NAME}_kernel\ns_subb_u32 s81, s81, 0')
        A(f's_lshr_b32 s82, s2, 3\ns_lshl_b32 s82, s82, 10\nv_lshlrev_b32 v4, 4, v1\nv_add_u32 v4, s82, v4\nv_min_u32 v4, L_CODE_END-{NAME}_kernel-16, v4')
        A('global_load_dwordx4 v[100:103], v4, s[80:81]')
    A('L_B0:\ns_barrier')
    g.stampw(0,0)
    A(f's_cmp_eq_u32 {sWAVE}, 14\ns_cbranch_scc1 L_EP')
    A(f's_cmp_eq_u32 {sWAVE}, 15\ns_cbranch_scc1 L_SYNC')
    A(f's_cmp_eq_u32 {sJ}, 0\ns_cbranch_scc1 L_TC\ns_cmp_eq_u32 {sJ}, 1\ns_cbranch_scc1 L_TD')
    A(f's_cmp_lt_u32 {sWAVE}, 8\ns_cbranch_scc1 L_KPATH\ns_cmp_eq_u32 {sWAVE}, 13\ns_cbranch_scc1 L_KPATH')
    A('s_waitcnt vmcnt(0)')
    lds_inc(F_CLR, 'v5')
    A('s_branch L_KPATH')
    A('L_SYNC:\ns_setprio 3\ns_waitcnt vmcnt(0)')
    get_E('v12')
    A(f's_cmp_lt_u32 {sJ}, 2\ns_cbranch_scc1 L_SY1')
    g.lds_spin('v3', F_CLR, 5, 'v7', sleep=1)
    A('L_SY1:')
    A(f's_getreg_b32 s83, hwreg(HW_REG_XCC_ID)\nv_mov_b32 v13, s83\ns_lshl_b32 s84, s2, 7\ns_add_u32 s84, s84, {FL}\nv_mov_b32 v14, s84')
    A(f's_mov_b64 exec, 1\nbuffer_store_dwordx2 v[12:13], v14, {RWS}, 0 offen sc1\ns_mov_b64 exec, -1')
    g.stamp(4)
    A(f's_setprio 0\ns_cmp_ge_u32 {sJ}, 2\ns_cbranch_scc1 L_KPATH\ns_branch L_VWAIT')
    A('L_EP:\ns_setprio 3')
    A(f's_and_b32 s80, s2, 1\ns_lshl_b32 s80, s80, 7\nv_mov_b32 v9, s80\nL_EPL:\nbuffer_load_dword v12, v9, {RDBG}, 0 offen sc1\ns_waitcnt vmcnt(0)\nv_cmp_eq_u32 vcc, 0, v12\ns_cbranch_vccz L_EPD')
    g.timeout('L_EPD')
    A(f's_branch L_EPL\nL_EPD:\nds_write_b32 v3, v12 offset:{F_E}')
    g.stamp(24)
    A(f's_setprio 0\ns_cmp_ge_u32 {sJ}, 2\ns_cbranch_scc1 L_KPATH')
    A(f's_sleep {o.fldelay}\ns_mov_b32 s79, 0')
    A('L_FLAGS:')
    A(f'v_and_b32 v7, 31, v1\nv_lshlrev_b32 v14, 3, v7\nv_add_u32 v14, {sG}, v14\nv_lshrrev_b32 v15, 3, v7\nv_lshlrev_b32 v15, 6, v15\nv_and_b32 v7, 7, v1\nv_add_u32 v15, v15, v7\ns_lshl_b32 s84, {sB}, 3\nv_add_u32 v15, s84, v15')
    A(f's_mov_b32 vcc_lo, 0\ns_mov_b32 vcc_hi, -1\nv_cndmask_b32 v15, v14, v15, vcc\nv_lshlrev_b32 v15, 7, v15\nv_add_u32 v15, {FL}, v15')
    A(f'L_FLP:\nbuffer_load_dwordx2 v[96:97], v15, {RWS}, 0 offen sc1\ns_waitcnt vmcnt(0)\nv_cmp_ne_u32 vcc, v96, v12\ns_cbranch_vccz L_FLD')
    g.timeout('L_FLD')
    A('s_sleep 8\ns_branch L_FLP\nL_FLD:')
    A('s_getreg_b32 s83, hwreg(HW_REG_XCC_ID)')
    A(f'v_cmp_ne_u32 vcc, s83, v97\ns_cmp_eq_u32 vcc_lo, 0\ns_cselect_b32 s84, {1 if o.local else 0}, 0\nv_mov_b32 v14, s84\ns_cmp_eq_u32 s84, 1\ns_cbranch_scc1 L_FLOK')
    A('s_mov_b64 s[92:93], s[100:101]')
    clear_all_local(' sc1')
    A(f's_lshl_b32 s80, s2, 7\ns_add_u32 s80, s80, {FLB}\nv_mov_b32 v5, s80\ns_mov_b32 s80, {FLB-FL}\ns_waitcnt vmcnt(0)')
    A(f's_mov_b64 exec, 1\nbuffer_store_dword v12, v5, {RWS}, 0 offen sc1\ns_mov_b64 exec, -1')
    A(f'L_FBP:\nbuffer_load_dword v8, v15, {RWS}, s80 offen sc1\ns_waitcnt vmcnt(0)\nv_cmp_ne_u32 vcc, v8, v12\ns_cmp_eq_u32 vcc_lo, 0\ns_cbranch_scc1 L_FLOK')
    g.timeout('L_FLOK')
    A('s_sleep 4\ns_branch L_FBP')
    A(f'L_FLOK:\nds_write_b32 v3, v14 offset:{F_MODE}\ns_waitcnt lgkmcnt(0)')
    g.lds_set('v3', F_MOK, 1, 'v7')
    g.stamp(5)
    A('s_cmp_eq_u32 s79, 1\ns_cbranch_scc1 L_KFLB\ns_branch L_VWAIT')

    A('L_TC:')
    A(f's_cmp_ge_u32 {sWAVE}, 12\ns_cbranch_scc1 L_C_MT\ns_cmp_ge_u32 {sWAVE}, 8\ns_cbranch_scc1 L_C_S\ns_cmp_ge_u32 {sWAVE}, 4\ns_cbranch_scc1 L_C_LN')
    g.tr_addr('v5', sWAVE, L_WM, 'v6', 'v7')
    A(f's_lshl_b32 s84, s81, 8\ns_add_u32 s84, s84, {L_ACT}')
    g.act_addr('v6', 's84', 1056, 'v7')
    A(f's_lshl_b32 s86, s2, 11\ns_lshl_b32 s84, {sWAVE}, 9\ns_add_u32 s86, s86, s84\ns_add_u32 s86, s86, {MP}')
    A('v_and_b32 v7, 7, v1\nv_lshlrev_b32 v4, 6, v7\nv_lshrrev_b32 v7, 4, v1\nv_lshl_add_u32 v4, v7, 4, v4')
    A('s_waitcnt vmcnt(0)')
    lds_inc(F_C1, 'v7')
    get_E('v12')
    pair_prep('v4', MP2-MP, 'v12', 'v12', 'v7')
    g.lds_spin('v3', F_C1, 12, 'v7', sleep=0)
    g.tr_frags('v5', 48, range(4))
    g.gemv_tile(48, 4, 'v6', 64, 80)
    for r in range(4): A(f'v_xor_b32 v{80+r}, v{80+r}, v12')
    A(f'buffer_store_dwordx4 v[80:83], v4, {RWS}, s86 offen sc1')
    lds_inc(F_C1, 'v7')
    g.stampw(0,1)
    A('s_branch L_VWAIT')
    A('L_C_LN:')
    A('s_waitcnt vmcnt(2)')
    lds_inc(F_C1, 'v5')
    A('s_waitcnt vmcnt(0)')
    A(f's_add_u32 s87, s87, {L_Y}\nv_add_u32 v4, s87, v4')
    for k,src in enumerate((88,92)):
        g.ln8(src, 48, 56)
        for i in range(4): A(f'v_cvt_pk_bf16_f32 v{src+i}, v{48+2*i}, v{49+2*i}')
        A(f'ds_write_b128 v4, v[{src}:{src+3}] offset:{k*1024}')
    A('s_waitcnt lgkmcnt(0)')
    lds_inc(F_Y, 'v5')
    A('s_branch L_VWAIT')
    A('L_C_S:')
    A(f's_mul_i32 s85, {sW8}, 2112\ns_add_u32 s85, s85, {L_ACT}\nv_add_u32 v5, s85, v4')
    A('s_waitcnt vmcnt(1)')
    g.silu8(104, 16, 24)
    A('ds_write_b128 v5, v[104:107]\ns_waitcnt vmcnt(0)')
    g.silu8(100, 16, 24)
    A('ds_write_b128 v5, v[100:103] offset:1056\ns_waitcnt lgkmcnt(0)')
    lds_inc(F_C1, 'v5')
    A(f's_cmp_lg_u32 {sWAVE}, 8\ns_cbranch_scc1 L_VWAIT')
    A('s_setprio 3')
    get_E('v15')
    A('v_lshrrev_b32 v7, 4, v1\nv_lshlrev_b32 v5, 14, v7\nv_bfe_u32 v6, v1, 1, 3\nv_lshl_add_u32 v5, v6, 6, v5\nv_and_b32 v7, 1, v1\nv_lshl_add_u32 v5, v7, 4, v5')
    A(f's_lshr_b32 s80, s2, 1\ns_lshl_b32 s80, s80, 9\ns_and_b32 s81, s2, 1\ns_lshl_b32 s81, s81, 5\ns_add_u32 s80, s80, s81\ns_add_u32 s80, s80, {MP}\ns_add_u32 s81, s80, 0x10000\ns_add_u32 s82, s80, {MP2-MP}\ns_add_u32 s83, s81, {MP2-MP}')
    A(f'v_lshlrev_b32 v6, 10, v6\nv_lshl_add_u32 v6, v7, 3, v6\ns_lshl_b32 s84, s2, 4\ns_add_u32 s84, s84, {L_Y}\nv_add_u32 v6, s84, v6')
    A(f'v_and_b32 v7, 15, v1\nv_lshlrev_b32 v8, 3, v7\nv_bfe_u32 v7, v1, 4, 1\nv_mul_u32_u24 v9, {HH2-HH}, v7\nv_add_u32 v8, v8, v9\nv_mul_lo_u32 v9, v7, v15\ns_lshl_b32 s84, s2, 7\ns_add_u32 s84, s84, {HH}')
    g.lds_spin('v3', F_Y, 4, 'v7', sleep=1)
    A('ds_read_b64 v[10:11], v6')
    g.lds_spin('v3', F_C1, 16, 'v7', sleep=1)
    if o.mpdelay: A(f's_sleep {o.mpdelay}')
    xpoll([f'buffer_load_dwordx4 v[{16+4*k}:{19+4*k}], v5, {RWS}, s{80+k} offen sc1' for k in range(4)], 16, 24, 8, 'v15', 'v7', sleep=o.mpsleep)
    for r in range(4): A(f'v_add_f32 v{16+r}, v{16+r}, v{20+r}')
    for r in range(4): A(f'v_mov_b32 v{20+r}, v{16+r}')
    for r in range(4): A(f'v_permlane32_swap_b32 v{16+r}, v{20+r}')
    for r in range(4): A(f'v_add_f32 v{16+r}, v{16+r}, v{20+r}')
    g.rnd2(16,17,12); g.rnd2(18,19,13)
    for r in range(4): A(f'v_mov_b32 v{20+r}, v{16+r}')
    for r in range(4): A(f'v_permlane16_swap_b32 v{16+r}, v{20+r}')
    for r in range(4): A(f'v_add_f32 v{20+r}, 1.0, v{20+r}')
    g.rnd2(20,21,12); g.rnd2(22,23,13)
    g.unpack(10,24,25); g.unpack(11,26,27)
    for r in range(4): A(f'v_mul_f32 v{24+r}, v{24+r}, v{20+r}')
    g.rnd2(24,25,12); g.rnd2(26,27,13)
    for r in range(4): A(f'v_add_f32 v{24+r}, v{24+r}, v{16+r}')
    A('v_cvt_pk_bf16_f32 v10, v24, v25\nv_cvt_pk_bf16_f32 v11, v26, v27\nv_xor_b32 v10, v10, v9\nv_xor_b32 v11, v11, v9\ns_mov_b32 exec_hi, 0')
    A(f'buffer_store_dwordx2 v[10:11], v8, {RWS}, s84 offen sc1\ns_mov_b64 exec, -1')
    g.lds_set('v3', F_R, 1, 'v7')
    A('s_setprio 0')
    g.stamp(25)
    A('s_branch L_VWAIT')
    A('L_C_MT:')
    A(f'v_lshrrev_b32 v7, 2, v1\nv_mul_u32_u24 v12, 6144, v7\nv_and_b32 v7, 3, v1\nv_lshl_add_u32 v12, v7, 4, v12')
    A(f's_and_b32 s85, {sWAVE}, 1\ns_mul_i32 s88, s85, {256*6144}\ns_lshl_b32 s89, s2, 6\ns_add_u32 s88, s88, s89\ns_add_u32 s88, s88, 2048\ns_lshl_b32 s89, s85, 14')
    A(f'v_lshrrev_b32 v7, 4, v1\nv_lshlrev_b32 v6, 9, v7\nv_bfe_u32 v7, v1, 2, 2\nv_lshl_add_u32 v6, v7, 6, v6\nv_and_b32 v7, 3, v1\nv_lshl_add_u32 v6, v7, 3, v6\ns_lshl_b32 s84, s85, 5\nv_add_u32 v6, s84, v6')
    g.act_addr('v8', L_ACT, 1056, 'v7')
    A(f'v_and_b32 v7, 7, v1\nv_lshlrev_b32 v9, 12, v7\nv_lshrrev_b32 v7, 4, v1\nv_lshl_add_u32 v9, v7, 3, v9\ns_lshl_b32 s86, s2, 6\ns_add_u32 s86, s86, s84\ns_add_u32 s86, s86, {MT}')
    if o.mtearly==0: g.lds_spin('v3', F_R, 1, 'v7', sleep=2)
    A('s_setprio 1')
    for i in range(16): g.dma(RWM, 'v12', 's88', i*16*6144, 's89', L_W+i*1024)
    lds_inc(F_GO, 'v7')
    get_E('v10')
    pair_prep('v9', MT2-MT, 'v10', 'v10', 'v7')
    A('s_waitcnt vmcnt(0)')
    lds_inc(F_SUB, 'v7')
    g.lds_spin('v3', F_SUB, 2, 'v7', sleep=1)
    g.lds_spin('v3', F_C1, 12, 'v7', sleep=1)
    def rdm(gq):
        for m in range(4):
            mm=4*gq+m; o_=16*(gq&1)+4*m
            A(f'ds_read_b64_tr_b16 v[{32+o_}:{33+o_}], v6 offset:{mm*2048}\nds_read_b64_tr_b16 v[{34+o_}:{35+o_}], v6 offset:{mm*2048+256}')
            A(f'ds_read_b128 v[{64+o_}:{67+o_}], v8 offset:{mm*64}')
    rdm(0)
    for gq in range(4):
        if gq<3: rdm(gq+1); A('s_waitcnt lgkmcnt(12)')
        else: A('s_waitcnt lgkmcnt(0)')
        for m in range(4):
            o_=16*(gq&1)+4*m
            c='0' if (gq==0 and m==0) else 'v[12:15]'
            A(f'v_mfma_f32_16x16x32_bf16 v[12:15], v[{32+o_}:{35+o_}], v[{64+o_}:{67+o_}], {c}')
    A('v_cvt_pk_bf16_f32 v100, v12, v13\nv_cvt_pk_bf16_f32 v101, v14, v15\nv_xor_b32 v100, v100, v10\nv_xor_b32 v101, v101, v10')
    A(f'buffer_store_dwordx2 v[100:101], v9, {RWS}, s86 offen sc1\ns_setprio 0')
    A('s_branch L_VW_C')

    A('L_TD:')
    A(f's_cmp_ge_u32 {sWAVE}, 12\ns_cbranch_scc1 L_VWAIT\ns_cmp_ge_u32 {sWAVE}, 8\ns_cbranch_scc1 L_D_H')
    g.dma_voff('v12','v13',8192,'v14')
    A(f's_lshl_b32 s85, {sWAVE}, 13\ns_lshl_b32 s84, {sWAVE}, 19\ns_lshl_b32 s86, {sPAIR}, 7\ns_add_u32 s84, s84, s86')
    blk_dma(RW1, 8, 's84', 8192, 's85', 'v12', 'v13')
    lds_inc(F_GO, 'v7')
    A('s_waitcnt vmcnt(0)')
    lds_inc(F_SUB, 'v7')
    A(f's_cmp_ge_u32 {sWAVE}, 4\ns_cbranch_scc1 L_VWAIT')
    g.tr_addr('v5', sWAVE, L_W, 'v6', 'v7')
    g.act_addr('v6', L_H, 1056, 'v7')
    A(f's_lshl_b32 s86, {sPAIR}, 10\ns_lshl_b32 s84, {sWAVE}, 5\ns_add_u32 s86, s86, s84\ns_add_u32 s86, s86, {QF}')
    A(f'v_and_b32 v7, 7, v1\nv_lshlrev_b32 v4, 7, v7\nv_lshrrev_b32 v7, 4, v1\nv_lshl_add_u32 v4, v7, 3, v4')
    get_E('v12')
    pair_prep('v4', QF2-QF, 'v12', 'v12', 'v7')
    g.lds_spin('v3', F_SUB, 8, 'v7', sleep=1)
    g.tr_frags('v5', 16, range(16))
    g.stampw(0,16)
    get_mode('v7')
    A('s_setprio 3')
    g.lds_spin('v3', F_C3, 4, 'v7', sleep=0)
    gemv16(16, 'v6', 8, [80,96])
    A('v_cvt_pk_bf16_f32 v14, v8, v9\nv_cvt_pk_bf16_f32 v15, v10, v11\nv_xor_b32 v14, v14, v12\nv_xor_b32 v15, v15, v12')
    g.pub(f'buffer_store_dwordx2 v[14:15], v4, {RWS}, s86 offen', True)
    lds_inc(F_VGO, 'v7')
    A('s_setprio 0')
    g.stampw(0,3)
    A('s_branch L_VWAIT')
    A('L_D_H:\ns_setprio 3')
    A(f'v_lshlrev_b32 v4, 4, v1\ns_lshl_b32 s80, {sW8}, 11\ns_add_u32 s81, s80, {HH2}\ns_add_u32 s80, s80, {HH}')
    A(f'v_and_b32 v7, 7, v1\nv_mul_u32_u24 v6, 1056, v7\nv_lshrrev_b32 v7, 3, v1\nv_lshl_add_u32 v6, v7, 4, v6\ns_lshl_b32 s84, {sW8}, 8\ns_add_u32 s84, s84, {L_H}\nv_add_u32 v6, s84, v6')
    get_E('v15')
    g.lds_spin('v3', F_SUB, o.hdelay, 'v7', sleep=1)
    xpoll([f'buffer_load_dwordx4 v[16:19], v4, {RWS}, s80 offen sc1', f'buffer_load_dwordx4 v[20:23], v4, {RWS}, s80 offen offset:1024 sc1',
           f'buffer_load_dwordx4 v[24:27], v4, {RWS}, s81 offen sc1', f'buffer_load_dwordx4 v[28:31], v4, {RWS}, s81 offen offset:1024 sc1'], 16, 24, 8, 'v15', 'v7', sleep=o.mpsleep)
    A('ds_write_b128 v6, v[16:19]\nds_write_b128 v6, v[20:23] offset:128\ns_waitcnt lgkmcnt(0)')
    lds_inc(F_C3, 'v5')
    A('s_setprio 0')
    g.stampw(8,2)
    A('L_VWAIT:')
    A(f's_cmp_eq_u32 {sJ}, 1\ns_cbranch_scc1 L_VW_D')
    pm=0
    for w in o.cpre: pm|=1<<w
    if pm: A(f's_mov_b32 s80, {pm}\ns_lshr_b32 s80, s80, {sWAVE}\ns_bitcmp1_b32 s80, 0\ns_cbranch_scc1 L_VPATH')
    g.lds_spin('v3', F_R, 1, 'v7', sleep=2)
    g.lds_spin('v3', F_GO, 2, 'v7', sleep=1)
    A('L_VW_C:')
    cm=0
    for w in o.cearly: cm|=1<<w
    A(f's_mov_b32 s80, {cm}\ns_lshr_b32 s80, s80, {sWAVE}\ns_bitcmp1_b32 s80, 0\ns_cbranch_scc1 L_VPATH')
    A(f's_cmp_lg_u32 {sWAVE}, 9\ns_cbranch_scc1 L_VW_D2')
    get_E('v12')
    A(f's_lshl_b32 s80, {sPAIR}, 10\ns_add_u32 s80, s80, {QF}\ns_add_u32 s81, s80, {QF2-QF}\nv_mov_b32 v5, 0')
    xpoll([f'buffer_load_dword v16, v5, {RWS}, s80 offen sc1', f'buffer_load_dword v17, v5, {RWS}, s81 offen sc1'], 16, 17, 1, 'v12', 'v7', sleep=4)
    g.lds_set('v3', F_VGO, 4, 'v7')
    A('s_branch L_VPATH\nL_VW_D:')
    em=0
    for w in o.dearly: em|=1<<w
    A(f's_mov_b32 s80, {em}\ns_lshr_b32 s80, s80, {sWAVE}\ns_bitcmp1_b32 s80, 0\ns_cbranch_scc0 L_VW_D2')
    g.lds_spin('v3', F_GO, 8, 'v7', sleep=1)
    A('s_branch L_VPATH\nL_VW_D2:')
    g.lds_spin('v3', F_VGO, 4, 'v7', sleep=2)
    A('L_VPATH:')
    A(f'v_lshrrev_b32 v5, 3, v1\nv_lshlrev_b32 v2, 11, v5\nv_and_b32 v5, 7, v1\nv_lshl_add_u32 v2, v5, 4, v2')
    A(f's_lshl_b32 s80, {sWAVE}, 15\ns_lshl_b32 s81, {sJ}, 7\ns_add_u32 s80, s80, s81\ns_add_u32 s81, s80, 16384')
    for blk in range(2):
        for u in range(8):
            r=8+32*blk+4*u
            A(f'buffer_load_dwordx4 v[{r}:{r+3}], v2, {RKV}, s{80+blk} offen offset:{u*256} nt')
    lds_inc(F_KL, 'v7')
    g.stampw(0,22); g.stampw(11,23)
    if o.stamps:
        A(f's_cmp_lg_u32 {sWAVE}, 15\ns_cbranch_scc1 L_NS26\ns_waitcnt vmcnt(0)')
        g.stamp(26)
        A('L_NS26:')
    A('s_mov_b32 s88, 0x05040100\ns_mov_b32 s89, 0x07060302')
    A(f'v_bfe_u32 v7, v1, 3, 1\nv_lshlrev_b32 v6, 10, v7\nv_and_b32 v7, 7, v1\nv_lshl_add_u32 v6, v7, 5, v6\nv_lshrrev_b32 v7, 5, v1\nv_lshl_add_u32 v6, v7, 2, v6')
    A(f's_lshl_b32 s84, {sWAVE}, 11\ns_add_u32 s84, s84, {L_OP}\nv_add_u32 v6, s84, v6')
    A(f'v_lshrrev_b32 v7, 4, v1\nv_lshlrev_b32 v4, 7, v7\nv_and_b32 v7, 7, v1\nv_lshl_add_u32 v4, v7, 4, v4\ns_lshl_b32 s84, {sPAIR}, 14\ns_lshl_b32 s85, {sWAVE}, 10\ns_add_u32 s84, s84, s85')
    get_mode('v7')
    PL=[f'buffer_load_dwordx4 v[72:75], v4, {RWL}, s84 offen sc1', f'buffer_load_dwordx4 v[80:83], v4, {RWL}, s84 offen offset:512 sc1']
    PR=[72,73,74,75,80,81,82,83]
    TB=[88,8]
    def perms(blk):
        B=8+32*blk
        for w in range(4):
            t=TB[blk]+8*w
            for a in range(4): A(f'v_perm_b32 v{t+a}, v{B+4*(2*a+1)+w}, v{B+4*(2*a)+w}, s88')
            for a in range(4): A(f'v_perm_b32 v{t+4+a}, v{B+4*(2*a+1)+w}, v{B+4*(2*a)+w}, s89')
    A(f'ds_read_b32 v7, v3 offset:{F_KL}\ns_waitcnt lgkmcnt(0)\nv_readfirstlane_b32 s85, v7\ns_cmp_lt_u32 s85, {o.pgate}\ns_cbranch_scc1 L_PE')
    for l in PL: A(l)
    A('s_waitcnt vmcnt(10)')
    perms(0)
    A('s_waitcnt vmcnt(2)')
    perms(1)
    A('s_waitcnt vmcnt(0)')
    g.chk(PR, 'v7')
    A('s_cbranch_vccz L_PD\ns_branch L_PP')
    A('L_PE:\ns_waitcnt vmcnt(8)')
    perms(0)
    A('s_waitcnt vmcnt(0)')
    perms(1)
    g.lds_spin('v3', F_KL, o.pgate, 'v7', sleep=2)
    A('L_PP:')
    g.poll(PL, PR, 'v7', sleep=o.psleep)
    A('L_PD:')
    g.stampw(0,8); g.stampw(11,9)
    A(HI8)
    for blk in range(2):
        for r in range(4): A(f'v_cndmask_b32 v{76+8*blk+r}, 0, v{72+8*blk+r}, vcc')
    A('s_not_b64 vcc, vcc')
    for blk in range(2):
        for r in range(4): A(f'v_cndmask_b32 v{72+8*blk+r}, 0, v{72+8*blk+r}, vcc')
    Dd=40
    for blk in range(2):
        for q in range(2):
            for w in range(4):
                t=TB[blk]+8*w+4*q; d=Dd+4*w
                c0='0' if (blk==0 and q==0) else f'v[{d}:{d+3}]'
                A(f'v_mfma_f32_16x16x32_bf16 v[{d}:{d+3}], v[{72+8*blk+4*q}:{75+8*blk+4*q}], v[{t}:{t+3}], {c0}')
    A('s_mov_b32 exec_lo, 0xff0000ff\ns_mov_b32 exec_hi, 0xff0000ff')
    for wp in range(2):
        for h in range(4): A(f'ds_write2_b32 v6, v{Dd+8*wp+h}, v{Dd+8*wp+4+h} offset0:{64*h+4*wp} offset1:{64*h+4*wp+2}')
    A('s_mov_b64 exec, -1')
    A(f'v_lshrrev_b32 v5, 3, v1\nv_lshlrev_b32 v4, 12, v5\nv_and_b32 v5, 7, v1\nv_lshl_add_u32 v4, v5, 4, v4\ns_lshl_b32 s85, {sW8}, 7\ns_add_u32 s84, s85, {L_OP}\nv_add_u32 v4, s84, v4')
    A(f'v_lshlrev_b32 v5, 3, v1\ns_lshl_b32 s84, {sPAIR}, 10\ns_lshr_b32 s85, s85, 1\ns_add_u32 s84, s84, s85\ns_lshl_b32 s85, {sJ}, 9\ns_add_u32 s84, s84, s85\ns_add_u32 s84, s84, {OO}')
    A('s_waitcnt lgkmcnt(0)\ns_barrier')
    A(f's_cmp_lt_u32 {sWAVE}, 8\ns_cbranch_scc1 L_VT')
    for k in range(4): A(f'ds_read_b128 v[{8+4*k}:{11+4*k}], v4 offset:{k*1024}')
    A('s_waitcnt lgkmcnt(0)')
    for r in range(4): A(f'v_add_f32 v{8+r}, v{8+r}, v{12+r}\nv_add_f32 v{16+r}, v{16+r}, v{20+r}')
    for r in range(4): A(f'v_add_f32 v{8+r}, v{8+r}, v{16+r}')
    for r in range(4): A(f'v_add_f32_dpp v{8+r}, v{8+r}, v{8+r} row_ror:8 row_mask:0xf bank_mask:0xf')
    g.red_rows('v_add_f32', [8,9,10,11], [12,13,14,15])
    A('v_cvt_pk_bf16_f32 v12, v8, v9\nv_cvt_pk_bf16_f32 v13, v10, v11')
    g.nosent([12,13])
    A('s_mov_b64 exec, 0xff')
    g.pub(f'buffer_store_dwordx2 v[12:13], v5, {RWL}, s84 offen', True)
    A('s_mov_b64 exec, -1')
    g.stampw(8,10)
    if o.stamps:
        A(f's_cmp_lg_u32 {sJ}, 1\ns_cbranch_scc1 L_END\ns_cmp_eq_u32 {sWAVE}, 8\ns_cbranch_scc1 L_DUMP')
    A('s_branch L_END')
    A('L_VT:')
    A(f's_cmp_lg_u32 {sJ}, 0\ns_cbranch_scc1 L_END\ns_cmp_ge_u32 {sWAVE}, 3\ns_cbranch_scc1 L_END')
    A(f'ds_read_b32 v13, v3 offset:{F_E}')
    A(f's_cmp_eq_u32 {sWAVE}, 2\ns_cbranch_scc1 L_FIN')
    A(f'v_lshlrev_b32 v4, 4, v1\ns_lshl_b32 s80, {sWAVE}, 10\nv_add_u32 v4, s80, v4')
    A(f'v_bfe_u32 v6, v1, 2, 3\nv_lshrrev_b32 v7, 5, v1\nv_lshlrev_b32 v7, 5, v7\nv_and_b32 v8, 3, v1\nv_lshl_add_u32 v7, v8, 3, v7\ns_lshl_b32 s81, {sWAVE}, 6\nv_add_u32 v7, s81, v7')
    A(f'v_lshl_add_u32 v5, v6, 10, v7\ns_lshl_b32 s81, {sB}, 7\nv_lshl_add_u32 v9, v6, 12, v7\ns_add_u32 s80, s81, {MT}')
    A(f'buffer_load_dwordx2 v[56:57], v5, {RX}, s81 offen')
    A(f's_add_u32 s81, s80, {MT2-MT}\ns_waitcnt lgkmcnt(0)')
    xpoll([f'buffer_load_dwordx2 v[60:61], v9, {RWS}, s80 offen sc1', f'buffer_load_dwordx2 v[62:63], v9, {RWS}, s81 offen sc1'], 60, 62, 2, 'v13', 'v12')
    g.unpack(60,48,49); g.unpack(61,50,51)
    g.unpack(56,52,53); g.unpack(57,54,55)
    A(f'v_lshl_add_u32 v5, v6, 7, v7\ns_lshl_b32 s82, {sPAIR}, 10\ns_add_u32 s82, s82, {X1}')
    A(f'v_lshlrev_b32 v8, 1, v5\nv_add_u32 v8, {L_X1S}, v8')
    A(f's_lshl_b32 s80, {sB}, 14\ns_add_u32 s80, s80, {WP}')
    for k in range(4): A(f's_add_u32 s{88+k}, s80, {k*4096}')
    g.poll([f'buffer_load_dwordx4 v[{16+4*k}:{19+4*k}], v4, {RWS}, s{88+(k>>1)} offen offset:{(k&1)*2048} sc1' for k in range(8)], range(16,48), 'v12')
    for r in range(4):
        A(f'v_add_f32 v{16+r}, v{16+r}, v{20+r}\nv_add_f32 v{24+r}, v{24+r}, v{28+r}\nv_add_f32 v{32+r}, v{32+r}, v{36+r}\nv_add_f32 v{40+r}, v{40+r}, v{44+r}')
        A(f'v_add_f32 v{16+r}, v{16+r}, v{24+r}\nv_add_f32 v{32+r}, v{32+r}, v{40+r}\nv_add_f32 v{16+r}, v{16+r}, v{32+r}')
    g.rnd2(16,17,12); g.rnd2(18,19,13)
    for r in range(4): A(f'v_mul_f32 v{16+r}, v{16+r}, v{48+r}')
    g.rnd2(16,17,12); g.rnd2(18,19,13)
    for r in range(4): A(f'v_add_f32 v{16+r}, v{16+r}, v{52+r}')
    g.rnd2(16,17,12); g.rnd2(18,19,13)
    g.nosent([12,13])
    g.pub(f'buffer_store_dwordx2 v[12:13], v5, {RWL}, s82 offen', True)
    A('ds_write_b128 v8, v[16:19]')
    g.stampw(0,12)
    A('s_waitcnt lgkmcnt(0)\ns_barrier')
    A('s_branch L_END')
    A('L_FIN:')
    A(f'v_lshrrev_b32 v5, 4, v1\nv_lshlrev_b32 v4, 9, v5\nv_and_b32 v5, 15, v1\nv_lshl_add_u32 v4, v5, 2, v4\ns_lshl_b32 s80, {sG}, 6\nv_add_u32 v4, s80, v4')
    A(f's_lshl_b32 s80, {sG}, 12\ns_lshl_b32 s81, {sB}, 7\ns_add_u32 s80, s80, s81\ns_add_u32 s80, s80, {MT+3072}\nv_lshrrev_b32 v5, 1, v1\nv_lshlrev_b32 v5, 2, v5')
    A(f's_add_u32 s81, s80, {MT2-MT}\ns_waitcnt lgkmcnt(0)')
    xpoll([f'buffer_load_dword v50, v5, {RWS}, s80 offen sc1', f'buffer_load_dword v51, v5, {RWS}, s81 offen sc1'], 50, 51, 1, 'v13', 'v12', sleep=4)
    g.unpack(50,48,49)
    A('s_mov_b32 vcc_lo, 0xaaaaaaaa\ns_mov_b32 vcc_hi, 0xaaaaaaaa\nv_cndmask_b32 v48, v48, v49, vcc')
    A(f's_lshl_b32 s80, {sB}, 14\ns_add_u32 s80, s80, {DP}')
    for k in range(4): A(f's_add_u32 s{88+k}, s80, {k*4096}')
    A(f's_lshl_b32 s81, {sG}, 8\ns_add_u32 s81, s81, {L_X1S}\nv_lshlrev_b32 v6, 2, v1\nv_add_u32 v6, s81, v6')
    A(f'v_lshlrev_b32 v7, 1, v1\ns_lshl_b32 s82, {sG}, 10\ns_lshl_b32 s83, {sB}, 7\ns_add_u32 s82, s82, s83')
    A('s_barrier')
    A('ds_read_b32 v50, v6')
    g.poll([f'buffer_load_dword v{16+k}, v4, {RWS}, s{88+(k>>1)} offen offset:{(k&1)*2048} sc1' for k in range(7)], range(16,23), 'v12')
    A('v_add_f32 v16, v16, v17\nv_add_f32 v18, v18, v19\nv_add_f32 v20, v20, v21\nv_add_f32 v16, v16, v18\nv_add_f32 v20, v20, v22\nv_add_f32 v16, v16, v20')
    g.rnd2(16,17,12)
    A('v_mul_f32 v16, v16, v48')
    g.rnd2(16,17,12)
    A('s_waitcnt lgkmcnt(0)\nv_add_f32 v16, v16, v50\nv_cvt_pk_bf16_f32 v12, v16, v16')
    A(f'buffer_store_short v12, v7, {ROUT}, s82 offen')
    g.stamp(15)
    A('s_branch L_DUMP')

    A('L_KPATH:')
    A(f'v_lshlrev_b32 v4, 4, v1\ns_and_b32 s86, {sJ}, 1\ns_lshl_b32 s80, s86, 18\ns_lshl_b32 s81, {sWAVE}, 14\ns_add_u32 s80, s80, s81')
    if o.thr:
        A(f's_cmp_lt_u32 {sWAVE}, {o.thrw}\ns_cbranch_scc1 L_KGO')
        g.lds_spin('v3', F_GO, o.thrw, 'v5', sleep=1)
        A('L_KGO:')
    for T in range(4):
        if T: A('s_add_u32 s80, s80, 4096')
        if o.thr and 1<=T<=o.thr:
            l=g.lab('KT')
            A(f's_cmp_ge_u32 {sWAVE}, {o.thrw}\ns_cbranch_scc1 {l}\ns_waitcnt vmcnt(0)')
            if T==o.thr: lds_inc(F_GO, 'v5')
            A(f'{l}:')
        for m in range(4):
            r=16+16*T+4*m
            A(f'buffer_load_dwordx4 v[{r}:{r+3}], v4, {RKV}, s80 offen offset:{m*1024} nt')
    g.stampw(11,20)
    A(f's_mul_i32 s81, {sWAVE}, {KS_SZ}\ns_add_u32 s81, s81, {L_KS}')
    A('v_lshrrev_b32 v6, 4, v1\nv_and_b32 v7, 15, v1\nv_mul_u32_u24 v4, 272, v6\nv_lshl_add_u32 v4, v7, 4, v4\nv_add_u32 v4, s81, v4')
    A('v_mul_u32_u24 v5, 272, v7\nv_lshl_add_u32 v5, v6, 4, v5\nv_add_u32 v5, s81, v5')
    for T in range(4):
        A(f's_waitcnt vmcnt({12-4*T})')
        for m in range(4): A(f'ds_write_b128 v4, v[{16+16*T+4*m}:{19+16*T+4*m}] offset:{m*1088}')
        A('s_waitcnt lgkmcnt(0)')
        for m in range(4): A(f'ds_read_b128 v[{16+16*T+4*m}:{19+16*T+4*m}], v5 offset:{m*64}')
        A('s_waitcnt lgkmcnt(0)')
    lds_inc(F_KL, 'v7')
    g.stampw(15,18); g.stampw(3,21)
    A('s_setprio 2')
    A(f's_cmp_ge_u32 {sWAVE}, 2\ns_cbranch_scc1 L_QPX')
    get_E('v12')
    A(f's_cmp_eq_u32 {sWAVE}, 0\ns_cbranch_scc1 L_QP0\ns_mov_b32 s79, 1\ns_branch L_FLAGS\nL_KFLB:\ns_branch L_QPX\nL_QP0:')
    A(f's_lshl_b32 s80, {sG}, 13\ns_lshl_b32 s81, {sB}, 7\ns_add_u32 s80, s80, s81\ns_add_u32 s80, s80, {QF}\ns_add_u32 s81, s80, {QF2-QF}')
    A(f'v_lshrrev_b32 v6, 3, v1\nv_lshlrev_b32 v5, 10, v6\nv_and_b32 v7, 7, v1\nv_lshl_add_u32 v5, v7, 4, v5')
    A(f'v_lshrrev_b32 v6, 4, v1\nv_mul_u32_u24 v13, 272, v6\nv_and_b32 v7, 15, v1\nv_lshl_add_u32 v13, v7, 4, v13\nv_add_u32 v13, {L_Q}, v13')
    if o.qdelay: g.lds_spin('v3', F_KL, o.qdelay, 'v7', sleep=2)
    xpoll([f'buffer_load_dwordx4 v[96:99], v5, {RWS}, s80 offen sc1', f'buffer_load_dwordx4 v[100:103], v5, {RWS}, s81 offen sc1'], 96, 100, 4, 'v12', 'v7', sleep=o.qsleep)
    A('ds_write_b128 v13, v[96:99]\ns_waitcnt lgkmcnt(0)')
    g.lds_set('v3', F_QREADY, 1, 'v7')
    g.stamp(6)
    A('L_QPX:')
    A(f'v_and_b32 v6, 3, v1\nv_mul_u32_u24 v6, 272, v6\nv_lshrrev_b32 v7, 4, v1\nv_lshl_add_u32 v6, v7, 4, v6\nv_add_u32 v6, {L_Q}, v6')
    A('v_bfe_u32 v5, v1, 2, 2\nv_lshlrev_b32 v4, 7, v5\nv_lshrrev_b32 v5, 5, v1\nv_lshl_add_u32 v4, v5, 6, v4\nv_and_b32 v5, 3, v1\nv_lshl_add_u32 v4, v5, 4, v4\nv_bfe_u32 v5, v1, 4, 1\nv_lshl_add_u32 v4, v5, 3, v4')
    A(f's_and_b32 s86, {sJ}, 1\ns_lshl_b32 s81, {sPAIR}, 14\ns_lshl_b32 s82, s86, 13\ns_add_u32 s81, s81, s82\ns_lshl_b32 s82, {sWAVE}, 9\ns_add_u32 s81, s81, s82')
    A(f'v_and_b32 v5, 3, v1\nv_lshlrev_b32 v5, 3, v5\ns_lshl_b32 s82, {sPAIR}, 10\ns_add_u32 s82, s82, {ST}\ns_lshl_b32 s84, s86, 9\ns_add_u32 s83, s82, s84\ns_xor_b32 s84, s84, 512\ns_add_u32 s82, s82, s84')
    A(f'v_lshlrev_b32 v14, 3, v1\nv_add_u32 v14, {L_X1S}, v14\ns_lshl_b32 s84, {sWAVE}, 5\nv_add_u32 v13, s84, v14\nv_add_u32 v15, {L_X1S+512}, v5')
    get_mode('v7')
    g.lds_spin('v3', F_QREADY, 1, 'v7', sleep=1)
    for m in range(4): A(f'ds_read_b128 v[{96+4*m}:{99+4*m}], v6 offset:{m*64}')
    for m in range(4):
        A(f's_waitcnt lgkmcnt({3-m})')
        for T in range(4):
            r=16+16*T+4*m; d=80+4*T
            c='0' if m==0 else f'v[{d}:{d+3}]'
            A(f'v_mfma_f32_16x16x32_bf16 v[{d}:{d+3}], v[{r}:{r+3}], v[{96+4*m}:{99+4*m}], {c}')
    for T in range(1,4):
        mk = 0x000f000f << (4*T)
        A(f's_mov_b32 vcc_lo, 0x{mk:x}\ns_mov_b32 vcc_hi, 0x{mk:x}')
        for r in range(4): A(f'v_cndmask_b32 v{80+r}, v{80+r}, v{80+4*T+r}, vcc')
    g.rnd2(80,81,8); g.rnd2(82,83,9)
    for r in range(4): A(f'v_mul_f32 v{80+r}, 0x{SCALE:x}, v{80+r}')
    g.rnd2(80,81,8); g.rnd2(82,83,9)
    A('v_max3_f32 v10, v80, v81, v82\nv_max_f32 v10, v10, v83')
    A('v_max_f32_dpp v10, v10, v10 row_ror:4 row_mask:0xf bank_mask:0xf\nv_max_f32_dpp v10, v10, v10 row_ror:8 row_mask:0xf bank_mask:0xf')
    g.red_rows('v_max_f32', [10], [12])
    for r in range(4): A(f'v_sub_f32 v{80+r}, v{80+r}, v10')
    for r in range(4): A(f'v_mul_f32 v{80+r}, 0x{LOG2E:x}, v{80+r}')
    for r in range(4): A(f'v_exp_f32 v{80+r}, v{80+r}')
    A('v_add_f32 v11, v80, v81\nv_add_f32 v12, v82, v83\nv_add_f32 v11, v11, v12')
    A('v_add_f32_dpp v11, v11, v11 row_ror:4 row_mask:0xf bank_mask:0xf\nv_add_f32_dpp v11, v11, v11 row_ror:8 row_mask:0xf bank_mask:0xf')
    g.red_rows('v_add_f32', [11], [12])
    A('s_mov_b64 exec, 15\nds_write_b64 v13, v[10:11]\ns_mov_b64 exec, -1\ns_waitcnt lgkmcnt(0)\ns_barrier')
    A(f's_cmp_lg_u32 {sWAVE}, 0\ns_cbranch_scc1 L_STW')
    A('ds_read_b64 v[24:25], v14\ns_waitcnt lgkmcnt(0)')
    A('v_max_f32_dpp v20, v24, v24 row_ror:4 row_mask:0xf bank_mask:0xf\nv_max_f32_dpp v20, v20, v20 row_ror:8 row_mask:0xf bank_mask:0xf')
    g.red_rows('v_max_f32', [20], [12])
    A(f'v_sub_f32 v24, v24, v20\nv_mul_f32 v24, 0x{LOG2E:x}, v24\nv_exp_f32 v24, v24\nv_mul_f32 v21, v24, v25')
    A('v_add_f32_dpp v21, v21, v21 row_ror:4 row_mask:0xf bank_mask:0xf\nv_add_f32_dpp v21, v21, v21 row_ror:8 row_mask:0xf bank_mask:0xf')
    g.red_rows('v_add_f32', [21], [12])
    g.nosent([20,21])
    A('s_mov_b64 exec, 15')
    g.pub(f'buffer_store_dwordx2 v[20:21], v5, {RWL}, s83 offen', True)
    A('s_mov_b64 exec, -1')
    g.stamp(19)
    g.poll([f'buffer_load_dwordx2 v[26:27], v5, {RWL}, s82 offen sc1'], [26,27], 'v12', sleep=o.stsleep)
    A('v_max_f32 v28, v20, v26')
    A(f'v_sub_f32 v24, v20, v28\nv_sub_f32 v26, v26, v28\nv_mul_f32 v24, 0x{LOG2E:x}, v24\nv_mul_f32 v26, 0x{LOG2E:x}, v26\nv_exp_f32 v24, v24\nv_exp_f32 v26, v26')
    A('v_mul_f32 v21, v24, v21\nv_mul_f32 v27, v26, v27\nv_add_f32 v21, v21, v27')
    A('v_rcp_f32 v29, v21\nv_fma_f32 v30, -v21, v29, 1.0\nv_fmac_f32 v29, v30, v29')
    A('ds_write_b64 v15, v[28:29]\ns_waitcnt lgkmcnt(0)')
    A('L_STW:\ns_barrier')
    A('ds_read_b64 v[28:29], v15\ns_waitcnt lgkmcnt(0)')
    A(f'v_sub_f32 v10, v10, v28\nv_mul_f32 v10, 0x{LOG2E:x}, v10\nv_exp_f32 v10, v10\nv_mul_f32 v10, v10, v29')
    for r in range(4): A(f'v_mul_f32 v{80+r}, v{80+r}, v10')
    A('v_cvt_pk_bf16_f32 v8, v80, v81\nv_cvt_pk_bf16_f32 v9, v82, v83')
    g.nosent([8,9])
    g.pub(f'buffer_store_dwordx2 v[8:9], v4, {RWL}, s81 offen', True)
    g.stampw(15,7)
    A('s_barrier')
    A(f's_cmp_eq_u32 {sJ}, 3\ns_cbranch_scc1 L_KW3')
    g.dma_voff('v12','v13',1024,'v14')
    A(f's_lshl_b32 s82, {sG}, 19\ns_lshl_b32 s83, {sWAVE}, 15\ns_add_u32 s82, s82, s83\ns_lshl_b32 s84, {sB}, 7\ns_add_u32 s82, s82, s84\ns_lshl_b32 s83, {sWAVE}, 12')
    blk_dma(RW1, 4, 's82', 1024, 's83', 'v12', 'v13')
    if not o.dnlate:
        A(f's_cmp_eq_u32 {sG}, 7\ns_cbranch_scc1 L_KWD0')
        A(f's_lshl_b32 s82, {sG}, 18\ns_lshl_b32 s83, {sWAVE}, 14\ns_add_u32 s82, s82, s83\ns_add_u32 s82, s82, s84\ns_lshl_b32 s83, {sWAVE}, 11\ns_add_u32 s83, s83, {L_W2}')
        blk_dma(RWD, 2, 's82', 1024, 's83', 'v12', 'v13')
        A('s_waitcnt vmcnt(2)\ns_branch L_KWD1\nL_KWD0:\ns_waitcnt vmcnt(0)\nL_KWD1:\ns_barrier')
    else:
        A('s_waitcnt vmcnt(0)\ns_barrier')
    A(f's_and_b32 s82, s2, 63\ns_and_b32 s84, {sWAVE}, 3')
    A(f's_cmp_ge_u32 {sWAVE}, 12\ns_cbranch_scc1 L_WO\ns_cmp_ge_u32 {sWAVE}, 8\ns_cbranch_scc1 L_DN')
    A(f'v_lshlrev_b32 v4, 4, v1\ns_lshl_b32 s80, {sG}, 13\ns_lshl_b32 s81, {sWAVE}, 10\ns_add_u32 s80, s80, s81\ns_add_u32 s85, s80, {GU}\ns_add_u32 s80, s80, {OO}')
    A(f's_mul_i32 s81, {sWAVE}, 1056\ns_add_u32 s81, s81, {L_ACT}\nv_add_u32 v5, s81, v4')
    A(f'v_bfe_u32 v7, v1, 1, 3\nv_mul_u32_u24 v6, 544, v7\nv_lshrrev_b32 v7, 4, v1\nv_lshl_add_u32 v6, v7, 5, v6\nv_and_b32 v7, 1, v1\nv_lshl_add_u32 v6, v7, 4, v6\ns_lshl_b32 s82, {sWAVE}, 7\ns_add_u32 s82, s82, {L_ACT2}\nv_add_u32 v6, s82, v6\ns_add_u32 s86, s85, 4096')
    g.poll([f'buffer_load_dwordx4 v[16:19], v4, {RWL}, s80 offen sc1'], range(16,20), 'v12', sleep=o.osleep)
    A('ds_write_b128 v5, v[16:19]\ns_waitcnt lgkmcnt(0)\ns_barrier')
    A(f's_cmp_ge_u32 {sWAVE}, 4\ns_cbranch_scc1 L_END\ns_cmp_eq_u32 {sG}, 7\ns_cbranch_scc1 L_END')
    g.poll([f'buffer_load_dwordx4 v[16:19], v4, {RWL}, s85 offen sc1', f'buffer_load_dwordx4 v[20:23], v4, {RWL}, s86 offen sc1'], range(16,24), 'v12')
    for i in range(8): g.unpack(16+i, 32+2*i, 33+2*i)
    for i in range(8): A(f'v_mul_f32 v{32+i}, v{32+i}, v{40+i}')
    for i in range(4): A(f'v_cvt_pk_bf16_f32 v{16+i}, v{32+2*i}, v{33+2*i}')
    A('ds_write_b128 v6, v[16:19]\ns_waitcnt lgkmcnt(0)\ns_barrier')
    A('s_branch L_END')
    A('L_WO:')
    g.tr_addr('v5', 's84', L_W, 'v6', 'v7')
    g.tr_frags('v5', 16, [4*((mp>>1)&3)+2*(mp>>3)+(mp&1) for mp in range(16)])
    g.act_addr('v6', L_ACT, 1056, 'v7')
    A(f's_lshl_b32 s83, s82, 11\ns_lshl_b32 s85, s84, 9\ns_add_u32 s83, s83, s85\ns_add_u32 s83, s83, {WP}')
    g.part_store_addr('v4', 's83', 'v7')
    A('s_waitcnt vmcnt(0) lgkmcnt(0)\ns_barrier')
    gemv16(16, 'v6', 8, [80,96])
    g.nosent(range(8,12))
    A(HALF)
    A(f'buffer_store_dwordx4 v[8:11], v4, {RWS}, 0 offen sc1')
    A('s_mov_b64 exec, -1')
    lds_inc(F_C3, 'v7')
    g.stampw(12,11)
    if o.stamps:
        A(f's_cmp_lg_u32 {sG}, 7\ns_cbranch_scc1 L_END\ns_cmp_eq_u32 {sWAVE}, 12\ns_cbranch_scc1 L_DUMP')
    A('s_branch L_END')
    A('L_DN:')
    g.tr_addr('v5', 's84', L_W2, 'v6', 'v7')
    g.act_addr('v6', L_ACT2, 544, 'v7')
    A(f's_lshl_b32 s83, s82, 11\ns_lshl_b32 s85, s84, 9\ns_add_u32 s83, s83, s85\ns_add_u32 s83, s83, {DP}')
    g.part_store_addr('v4', 's83', 'v7')
    A('s_waitcnt vmcnt(0)\ns_barrier')
    A(f's_cmp_eq_u32 {sG}, 7\ns_cbranch_scc1 L_END')
    if o.dnlate:
        A(f's_lshl_b32 s82, {sG}, 18\ns_lshl_b32 s83, s84, 16\ns_add_u32 s82, s82, s83\ns_lshl_b32 s83, {sB}, 7\ns_add_u32 s82, s82, s83\ns_lshl_b32 s83, s84, 13\ns_add_u32 s83, s83, {L_W2}')
        g.lds_spin('v3', F_C3, 4, 'v7', sleep=1)
        blk_dma(RWD, 8, 's82', 1024, 's83', 'v12', 'v13')
        A('s_waitcnt vmcnt(0)')
        lds_inc(F_SUB, 'v7')
        g.lds_spin('v3', F_SUB, 4, 'v7', sleep=0)
    g.tr_frags('v5', 16, range(8))
    A('s_waitcnt lgkmcnt(0)\ns_barrier')
    g.gemv_tile(16, 8, 'v6', 48, 8)
    g.nosent(range(8,12))
    A(HALF)
    A(f'buffer_store_dwordx4 v[8:11], v4, {RWS}, 0 offen sc1')
    A('s_mov_b64 exec, -1')
    g.stampw(8,14)
    if o.stamps:
        A(f's_cmp_eq_u32 {sWAVE}, 8\ns_cbranch_scc1 L_DUMP')
    A('s_branch L_END')
    A('L_KW3:')
    if o.stamps:
        A(f's_cmp_lg_u32 {sG}, 7\ns_cbranch_scc1 L_KW3a\ns_cmp_eq_u32 {sWAVE}, 15\ns_cbranch_scc1 L_DUMP\ns_branch L_END\nL_KW3a:')
    else:
        A(f's_cmp_eq_u32 {sG}, 7\ns_cbranch_scc1 L_END')
    g.dma_voff('v12','v13',3584,'v14')
    A(f's_mul_i32 s82, {sWAVE}, {32*3584}\ns_lshl_b32 s83, {sG}, 2\ns_and_b32 s84, {sB}, 3\ns_add_u32 s83, s83, s84\ns_lshl_b32 s83, s83, 7\ns_add_u32 s82, s82, s83\ns_lshl_b32 s83, {sWAVE}, 12')
    if o.gulate:
        A(f's_cmp_lg_u32 {sWAVE}, 0\ns_cbranch_scc1 L_GUW\ns_lshl_b32 s80, {sPAIR}, 10\ns_add_u32 s80, s80, {OO}\nv_mov_b32 v5, 0')
        g.poll([f'buffer_load_dword v16, v5, {RWL}, s80 offen sc1'], [16], 'v7', sleep=4)
        A('L_GUW:\ns_barrier')
    if o.gutr:
        for i in range(4):
            g.dma(RW1, 'v13' if i&1 else 'v12', 's82', i*8*3584, 's83', i*1024)
            A('s_waitcnt vmcnt(0)')
    else:
        blk_dma(RW1, 4, 's82', 3584, 's83', 'v12', 'v13')
    A('s_waitcnt vmcnt(0)\ns_barrier')
    A(f's_cmp_ge_u32 {sWAVE}, 12\ns_cbranch_scc1 L_GU\ns_cmp_ge_u32 {sWAVE}, 8\ns_cbranch_scc1 L_END')
    A(f'v_lshlrev_b32 v4, 4, v1\ns_lshl_b32 s80, {sWAVE}, 12\ns_add_u32 s80, s80, {MT}\ns_add_u32 s81, s80, {MT2-MT}')
    A(f'ds_read_b32 v13, v3 offset:{F_E}\ns_waitcnt lgkmcnt(0)')
    xpoll([f'buffer_load_dwordx4 v[48:51], v4, {RWS}, s80 offen offset:1024 sc1', f'buffer_load_dwordx4 v[52:55], v4, {RWS}, s80 offen offset:2048 sc1',
           f'buffer_load_dwordx4 v[56:59], v4, {RWS}, s81 offen offset:1024 sc1', f'buffer_load_dwordx4 v[60:63], v4, {RWS}, s81 offen offset:2048 sc1'], 48, 56, 8, 'v13', 'v12', sleep=8)
    for i in range(8): g.unpack(48+i, 32+2*i, 33+2*i)
    for i in range(8): A(f'v_add_f32 v{40+i}, 1.0, v{40+i}')
    for i in range(4): g.rnd2(40+2*i,41+2*i,13)
    A(f's_mul_i32 s81, {sWAVE}, 1056\ns_add_u32 s81, s81, {L_ACT}\nv_add_u32 v5, s81, v4')
    A(f'v_lshrrev_b32 v7, 3, v1\nv_lshlrev_b32 v4, 10, v7\nv_and_b32 v7, 7, v1\nv_lshl_add_u32 v4, v7, 4, v4')
    A(f's_lshl_b32 s80, {sG}, 13\ns_lshl_b32 s81, {sWAVE}, 7\ns_add_u32 s80, s80, s81\ns_add_u32 s80, s80, {X1}')
    g.poll([f'buffer_load_dwordx4 v[8:11], v4, {RWL}, s80 offen sc1'], range(8,12), 'v12', sleep=o.osleep)
    g.ln8(8, 16, 48)
    for i in range(8): A(f'v_mul_f32 v{16+i}, v{16+i}, v{40+i}')
    for i in range(4): g.rnd2(16+2*i,17+2*i,48+i)
    for i in range(8): A(f'v_add_f32 v{16+i}, v{16+i}, v{32+i}')
    for i in range(4): A(f'v_cvt_pk_bf16_f32 v{8+i}, v{16+2*i}, v{17+2*i}')
    A('ds_write_b128 v5, v[8:11]\ns_waitcnt lgkmcnt(0)\ns_barrier')
    A('s_branch L_END')
    A('L_GU:')
    A(f's_and_b32 s84, {sWAVE}, 3')
    g.tr_addr('v5', 's84', L_W, 'v6', 'v7')
    g.tr_frags('v5', 16, range(16))
    g.act_addr('v6', L_ACT, 1056, 'v7')
    A(f's_lshl_b32 s83, {sPAIR}, 10\ns_lshl_b32 s85, s84, 8\ns_add_u32 s83, s83, s85\ns_add_u32 s83, s83, {GU}')
    A('v_and_b32 v7, 15, v1\nv_lshlrev_b32 v4, 5, v7\nv_lshrrev_b32 v7, 4, v1\nv_lshl_add_u32 v4, v7, 3, v4')
    A('s_waitcnt lgkmcnt(0)\ns_barrier')
    gemv16(16, 'v6', 8, [80,96])
    g.rnd2(8,9,12); g.rnd2(10,11,13)
    A(f's_cmp_ge_u32 {sB}, 4\ns_cbranch_scc1 L_T2U')
    g.silu_inplace([8,9,10,11],[16,17,18,19])
    A('v_cvt_pk_bf16_f32 v12, v8, v9\nv_cvt_pk_bf16_f32 v13, v10, v11')
    A('L_T2U:')
    g.nosent([12,13])
    A(HALF)
    g.pub(f'buffer_store_dwordx2 v[12:13], v4, {RWL}, s83 offen', True)
    A('s_mov_b64 exec, -1')
    g.stampw(12,13)
    if o.stamps:
        A(f's_cmp_lg_u32 {sWAVE}, 12\ns_cbranch_scc1 L_END')
    A('L_DUMP:')
    if o.stamps:
        A(f'v_lshlrev_b32 v4, 2, v1\nv_add_u32 v5, {L_STAMP}, v4\nds_read_b32 v6, v5\nv_mov_b32 v7, 0\nv_lshlrev_b32 v4, 3, v1')
        A(f's_add_u32 s80, s58, 0x{STAMP:x}\ns_addc_u32 s81, s59, 0\ns_lshl_b32 s82, s2, 8\ns_add_u32 s80, s80, s82\ns_addc_u32 s81, s81, 0')
        A('s_waitcnt lgkmcnt(0)\ns_mov_b32 exec_hi, 0\nglobal_store_dwordx2 v4, v[6:7], s[80:81]')
        if o.dbgst:
            A('s_mov_b64 exec, -1\nv_mov_b32 v8, 0')
            for i,sl in enumerate(o.dbgst): A(f'v_writelane_b32 v8, {sl}, {i+1}')
            A(f'v_lshlrev_b32 v8, 2, v8\nv_add_u32 v8, {L_STAMP}, v8\nds_read_b32 v9, v8\nds_read_b32 v10, v3 offset:{F_E}\nv_lshlrev_b32 v11, 2, v1\ns_waitcnt lgkmcnt(0)')
            A(f'v_cmp_ne_u32 vcc, 0, v9\nv_sub_u32 v9, v9, v10\nv_add_u32 v9, 1000, v9\ns_and_b32 exec_lo, vcc_lo, 0xfffe\ns_mov_b32 exec_hi, 0\ns_cbranch_execz L_END')
            A(f'buffer_atomic_umax v9, v11, {RDBG}, 0 offen sc1')
    A('L_END:\ns_endpgm\nL_CODE_END:')
    return g.L

def emit(o, fname):
    body = build(o)
    body, n = fix_hazards(body)
    hdr = open('cdna_kernels/'+NAME+'.s.ref').read().split('; Override launch')[0]
    out = hdr + f'; @launch grid=(256,1,1) block=(1024,1,1) lds={LDS_SIZE}\n'
    out += f'.amdgcn_target "amdgcn-amd-amdhsa--gfx950"\n.text\n.globl {NAME}_kernel\n.p2align 8\n.type {NAME}_kernel,@function\n{NAME}_kernel:\n'
    out += '\n'.join(('' if l.endswith(':') else '    ')+l for l in body) + '\n'
    out += f'''.section .rodata,"a"
.p2align 6
.amdhsa_kernel {NAME}_kernel
  .amdhsa_next_free_vgpr 128
  .amdhsa_next_free_sgpr 102
  .amdhsa_accum_offset 128
  .amdhsa_group_segment_fixed_size 0
  .amdhsa_kernarg_size 112
  .amdhsa_user_sgpr_count 2
  .amdhsa_user_sgpr_kernarg_segment_ptr 1
  .amdhsa_system_sgpr_workgroup_id_x 1
  .amdhsa_float_denorm_mode_32 3
  .amdhsa_float_denorm_mode_16_64 3
.end_amdhsa_kernel
'''
    open(fname,'w').write(out)
    print(fname, len(body), 'lines', n, 'nops inserted')

if __name__=='__main__':
    ap=argparse.ArgumentParser()
    ap.add_argument('-o', default='k.s')
    ap.add_argument('--stamps', action='store_true')
    ap.add_argument('--local', action='store_true')
    for k,d in dict(codepf=1,mpdelay=0,mpsleep=2,fldelay=40,hdelay=8,mtearly=0,pgate=12,psleep=4,thr=0,thrw=4,qdelay=8,qsleep=2,stsleep=0,osleep=0,gulate=1,dnlate=1,gutr=0).items():
        ap.add_argument('--'+k, type=int, default=d)
    ap.add_argument('--dearly', type=lambda x:[int(t) for t in x.split(',') if t], default=[4,5,6,7])
    ap.add_argument('--cearly', type=lambda x:[int(t) for t in x.split(',') if t], default=list(range(16)))
    ap.add_argument('--cpre', type=lambda x:[int(t) for t in x.split(',') if t], default=[])
    ap.add_argument('--dbgst', type=lambda x:[int(t) for t in x.split(',') if t], default=[])
    o=ap.parse_args()
    emit(o, o.o)
```

```python
import sys, argparse
from asmlib import fix_hazards
NAME='adaLN_cond__sliding_block_cached__swiglu_ffn__decode'

PP=0x000000; OO=0x100000; ST=0x110000; X1=0x120000; GU=0x130000; LREG=0x140000; GOFF=0x180000
QF=0x300000; QF2=0x310000; HH=0x320000; HH2=0x322000; MT=0x400000; MT2=0x420000; WP=0x440000; DP=0x460000
MP=0x480000; MP2=0x4A0000; FL=0x4C0000; FLB=0x4C8000; WS_USED=0x4D0000
STAMP=0x10000000
L_W=0x0; L_W2=0x10000; L_WM=0x10000; L_KS=0x0; KS_SZ=4352
L_OP=0x18000
L_Y=0x14000; L_H=0x18000
L_ACT=0x20000; L_ACT2=0x18000; L_Q=0x22200; L_FLAGS=0x22800; L_X1S=0x22900; L_STAMP=0x23100; LDS_SIZE=0x23400
F_QREADY=4; F_MODE=8; F_E=12; F_SUB=16; F_Y=20; F_C1=24; F_C3=28; F_CLR=32; F_MOK=36; F_R=40; F_GO=44; F_VGO=48; F_KL=52
sWAVE,sG,sB,sJ,sMODE = 's3','s4','s5','s6','s7'
RK,RV,RWS,RW1,RWM,RC,RX,ROUT,RDBG = 's[8:11]','s[12:15]','s[16:19]','s[20:23]','s[24:27]','s[28:31]','s[60:63]','s[64:67]','s[68:71]'
RWL='s[92:95]'
sTO='s72'
sPAIR='s73'
sW8='s74'
LOG2E=0x3fb8aa3b
SCALE=0x3db504f3

class G:
    def __init__(self, opt):
        self.L=[]; self.o=opt; self.nl=0; self.nstamp=0
    def __call__(self, s):
        for l in s.split('\n'):
            l=l.strip()
            if l: self.L.append(l)
    def lab(self, p='L'):
        self.nl+=1; return f'{p}_{self.nl}'
    def stamp(self, slot, va='v126', vb='v127'):
        if not self.o.stamps: return
        self(f's_memrealtime s[98:99]\ns_waitcnt lgkmcnt(0)\nv_mov_b32 {va}, {L_STAMP+4*slot}\nv_mov_b32 {vb}, s98\nds_write_b32 {va}, {vb}\ns_waitcnt lgkmcnt(0)')
    def stampw(self, wave, slot):
        if not self.o.stamps: return
        l=self.lab('NSW')
        self(f's_cmp_lg_u32 {sWAVE}, {wave}\ns_cbranch_scc1 {l}')
        self.stamp(slot)
        self(f'{l}:')
    def timeout(self, done):
        self(f's_cmp_eq_u32 {sTO}, 0\ns_cbranch_scc1 {done}\ns_sub_u32 {sTO}, {sTO}, 1')
    def lds_spin(self, vflag, off, target, vt, st='s76', sleep=1):
        a=self.lab('SPIN'); d=self.lab('SPD')
        self(f'{a}:\nds_read_b32 {vt}, {vflag} offset:{off}\ns_waitcnt lgkmcnt(0)\nv_readfirstlane_b32 {st}, {vt}\ns_cmp_ge_u32 {st}, {target}\ns_cbranch_scc1 {d}')
        self.timeout(d)
        if sleep: self(f's_sleep {sleep}')
        self(f's_branch {a}\n{d}:')
    def lds_set(self, vflag, off, val, vt):
        self(f'v_mov_b32 {vt}, {val}\nds_write_b32 {vflag}, {vt} offset:{off}')
    def poll(self, loads, regs, vt, sleep=0):
        a=self.lab('POLL'); d=self.lab('PLD')
        self(f'{a}:')
        for l in loads: self(l)
        self('s_waitcnt vmcnt(0)')
        self.chk(regs, vt)
        self(f's_cbranch_vccz {d}')
        self.timeout(d)
        if sleep: self(f's_sleep {sleep}')
        self(f's_branch {a}\n{d}:')
    def chk(self, regs, vt):
        r=list(regs)
        if len(r)==1:
            self(f'v_cmp_eq_u32 vcc, -1, v{r[0]}'); return
        if len(r)==2:
            self(f'v_max_u32 {vt}, v{r[0]}, v{r[1]}')
        else:
            self(f'v_max3_u32 {vt}, v{r[0]}, v{r[1]}, v{r[2]}')
            r=r[3:]
            while len(r)>=2:
                self(f'v_max3_u32 {vt}, {vt}, v{r[0]}, v{r[1]}'); r=r[2:]
            if r: self(f'v_max_u32 {vt}, {vt}, v{r[0]}')
        self(f'v_cmp_eq_u32 vcc, -1, {vt}')
    def nosent(self, regs):
        for r in regs: self(f'v_min_u32 v{r}, -2, v{r}')
    def pub(self, instr, local_ok=False):
        if local_ok:
            a=self.lab('PUBL'); d=self.lab('PUBD')
            self(f's_cmp_eq_u32 {sMODE}, 1\ns_cbranch_scc1 {a}\n{instr} sc1\ns_branch {d}\n{a}:\n{instr}\n{d}:')
        else:
            self(instr+' sc1')
    def unpack(self, src, dlo, dhi):
        self(f'v_lshlrev_b32 v{dlo}, 16, v{src}\nv_and_b32 v{dhi}, 0xffff0000, v{src}')
    def rnd2(self, a, b, t):
        self(f'v_cvt_pk_bf16_f32 v{t}, v{a}, v{b}')
        self.unpack(t, a, b)
    def wave_red(self, op, regs, tmps):
        for mod in ('quad_perm:[1,0,3,2]','quad_perm:[2,3,0,1]','row_half_mirror','row_mirror'):
            for r in regs: self(f'{op}_dpp v{r}, v{r}, v{r} {mod} row_mask:0xf bank_mask:0xf')
        self.red_rows(op, regs, tmps)
    def red_rows(self, op, regs, tmps):
        for sw in ('v_permlane16_swap_b32','v_permlane32_swap_b32'):
            for r,t in zip(regs,tmps): self(f'v_mov_b32 v{t}, v{r}')
            for r,t in zip(regs,tmps): self(f'{sw} v{r}, v{t}')
            for r,t in zip(regs,tmps): self(f'{op} v{r}, v{r}, v{t}')
    def silu_inplace(self, xs, ts):
        self(f's_mov_b32 s77, 0x{(LOG2E|0x80000000):x}')
        for x,t in zip(xs,ts): self(f'v_mul_f32 v{t}, s77, v{x}')
        for x,t in zip(xs,ts): self(f'v_exp_f32 v{t}, v{t}')
        for x,t in zip(xs,ts): self(f'v_add_f32 v{t}, 1.0, v{t}')
        for x,t in zip(xs,ts): self(f'v_rcp_f32 v{t}, v{t}')
        for x,t in zip(xs,ts): self(f'v_mul_f32 v{x}, v{x}, v{t}')
    def silu8(self, src, x0, t0):
        for i in range(4): self.unpack(src+i, x0+2*i, x0+2*i+1)
        self.silu_inplace(list(range(x0,x0+8)), list(range(t0,t0+8)))
        for i in range(4): self(f'v_cvt_pk_bf16_f32 v{src+i}, v{x0+2*i}, v{x0+2*i+1}')
    def ln8(self, src, x0, t0):
        X=list(range(x0,x0+8)); T=list(range(t0,t0+8)); s1,s2,u1,u2=t0+8,t0+9,t0+10,t0+11
        for i in range(4): self.unpack(src+i, x0+2*i, x0+2*i+1)
        self(f'v_readfirstlane_b32 s77, v{x0}')
        for x,t in zip(X,T): self(f'v_subrev_f32 v{t}, s77, v{x}')
        self(f'v_add_f32 v{s1}, v{T[0]}, v{T[1]}\nv_mul_f32 v{s2}, v{T[0]}, v{T[0]}')
        self(f'v_fmac_f32 v{s2}, v{T[1]}, v{T[1]}')
        for t in T[2:]:
            self(f'v_add_f32 v{s1}, v{s1}, v{t}\nv_fmac_f32 v{s2}, v{t}, v{t}')
        self.wave_red('v_add_f32', [s1,s2], [u1,u2])
        self(f'v_mul_f32 v{s1}, 0x3b000000, v{s1}\nv_mul_f32 v{s2}, 0x3b000000, v{s2}')
        self(f'v_fma_f32 v{s2}, -v{s1}, v{s1}, v{s2}\nv_max_f32 v{s2}, 0, v{s2}\nv_add_f32 v{s1}, s77, v{s1}')
        self.rnd2(s1, s2, u1)
        self(f'v_add_f32 v{s2}, 0x3727c5ac, v{s2}')
        self(f'v_cvt_pk_bf16_f32 v{u1}, v{s2}, v{s2}\nv_lshlrev_b32 v{s2}, 16, v{u1}\nv_sqrt_f32 v{s2}, v{s2}')
        self(f'v_cvt_pk_bf16_f32 v{u1}, v{s2}, v{s2}\nv_lshlrev_b32 v{s2}, 16, v{u1}\nv_rcp_f32 v{s2}, v{s2}')
        for x in X: self(f'v_sub_f32 v{x}, v{x}, v{s1}')
        for i in range(4): self.rnd2(X[2*i], X[2*i+1], T[i])
        for x in X: self(f'v_mul_f32 v{x}, v{x}, v{s2}')
        for i in range(4): self.rnd2(X[2*i], X[2*i+1], T[i])
    def dma_voff(self, ve, vo, pitch, vt):
        self(f'v_lshrrev_b32 {vt}, 3, v1\ns_mov_b32 s77, {pitch}\nv_mul_lo_u32 {ve}, {vt}, s77')
        self(f'v_bfe_u32 {vt}, v1, 4, 1\nv_lshlrev_b32 {vt}, 1, {vt}\nv_and_b32 {vo}, 7, v1\nv_xor_b32 {vt}, {vt}, {vo}\nv_lshlrev_b32 {vt}, 4, {vt}\nv_add_u32 {ve}, {ve}, {vt}\nv_xor_b32 {vo}, 64, {ve}')
    def dma(self, srd, voff, s_src, src_imm, s_lds, lds_imm, nt=True):
        self(f's_add_u32 s78, {s_src}, {src_imm}\ns_add_u32 m0, {s_lds}, {lds_imm}')
        self(f'buffer_load_dwordx4 {voff}, {srd}, s78 offen{" nt" if nt else ""} lds')
    def tr_addr(self, vd, s_ct, base, vt, vt2):
        self(f'v_lshrrev_b32 {vt}, 4, v1\nv_lshlrev_b32 {vd}, 10, {vt}\nv_and_b32 {vt}, 1, {vt}\nv_lshlrev_b32 {vt}, 1, {vt}')
        self(f'v_bfe_u32 {vt2}, v1, 3, 1\nv_or_b32 {vt}, {vt}, {vt2}\nv_xor_b32 {vt}, {s_ct}, {vt}\nv_lshl_add_u32 {vd}, {vt}, 5, {vd}')
        self(f'v_bfe_u32 {vt}, v1, 2, 2\nv_lshl_add_u32 {vd}, {vt}, 7, {vd}\nv_and_b32 {vt}, 3, v1\nv_lshl_add_u32 {vd}, {vt}, 3, {vd}\nv_add_u32 {vd}, {base}, {vd}')
    def tr_frags(self, vaddr, r0, msteps):
        for i,m in enumerate(msteps):
            self(f'ds_read_b64_tr_b16 v[{r0+4*i}:{r0+4*i+1}], {vaddr} offset:{m*4096}\nds_read_b64_tr_b16 v[{r0+4*i+2}:{r0+4*i+3}], {vaddr} offset:{m*4096+512}')
    def act_addr(self, vd, base, pitch, vt):
        self(f'v_and_b32 {vt}, 7, v1\nv_mul_u32_u24 {vd}, {pitch}, {vt}\nv_lshrrev_b32 {vt}, 4, v1\nv_lshl_add_u32 {vd}, {vt}, 4, {vd}\nv_add_u32 {vd}, {base}, {vd}')
    def gemv_tile(self, wf0, nk, vact, a0, d0):
        for m in range(nk): self(f'ds_read_b128 v[{a0+4*m}:{a0+4*m+3}], {vact} offset:{m*64}')
        for m in range(nk):
            self(f's_waitcnt lgkmcnt({min(15,nk-1-m)})')
            c = '0' if m==0 else f'v[{d0}:{d0+3}]'
            self(f'v_mfma_f32_16x16x32_bf16 v[{d0}:{d0+3}], v[{wf0+4*m}:{wf0+4*m+3}], v[{a0+4*m}:{a0+4*m+3}], {c}')
    def part_store_addr(self, vd, s_base, vt):
        self(f'v_and_b32 {vt}, 15, v1\nv_lshlrev_b32 {vd}, 6, {vt}\nv_lshrrev_b32 {vt}, 4, v1\nv_lshl_add_u32 {vd}, {vt}, 4, {vd}\nv_add_u32 {vd}, {s_base}, {vd}')

def build(o):
    g=G(o); A=g
    HALF='s_mov_b32 exec_lo, 0x00ff00ff\ns_mov_b32 exec_hi, 0x00ff00ff'
    HI8='s_mov_b32 vcc_lo, 0xff00ff00\ns_mov_b32 vcc_hi, 0xff00ff00'
    SENT='v_mov_b32 v8, -1\nv_mov_b32 v9, -1\nv_mov_b32 v10, -1\nv_mov_b32 v11, -1\nv_lshlrev_b32 v5, 4, v1'
    def lds_inc(off, vt):
        A(f'v_mov_b32 {vt}, 1\ns_mov_b64 exec, 1\nds_add_u32 v3, {vt} offset:{off}\ns_mov_b64 exec, -1')
    def xor_chk(a0, b0, n, vE, vt):
        for i in range(n): A(f'v_xor_b32 v{b0+i}, v{b0+i}, v{a0+i}')
        A(f'v_xor_b32 {vt}, v{b0}, {vE}')
        for i in range(1,n): A(f'v_bitop3_b32 {vt}, {vt}, v{b0+i}, {vE} bitop3:0xf6')
        A(f'v_cmp_ne_u32 vcc, 0, {vt}')
    def xpoll(loads, a0, b0, n, vE, vt, sleep=0):
        a=g.lab('XP'); d=g.lab('XPD')
        A(f'{a}:')
        for l in loads: A(l)
        A('s_waitcnt vmcnt(0)')
        xor_chk(a0,b0,n,vE,vt)
        A(f's_cbranch_vccz {d}')
        g.timeout(d)
        if sleep: A(f's_sleep {sleep}')
        A(f's_branch {a}\n{d}:')
    def get_E(vd): g.lds_spin('v3', F_E, 1, vd, sleep=1)
    def pair_prep(vaddr, delta, vE, vEm, vt):
        A(HI8)
        A(f'v_mov_b32 {vt}, {delta}\nv_cndmask_b32 {vt}, 0, {vt}, vcc\nv_add_u32 {vaddr}, {vaddr}, {vt}\nv_cndmask_b32 {vEm}, 0, {vE}, vcc')
    def get_mode(vt):
        g.lds_spin('v3', F_MOK, 1, vt, sleep=1)
        A(f'ds_read_b32 {vt}, v3 offset:{F_MODE}\ns_waitcnt lgkmcnt(0)')
        A(f'v_readfirstlane_b32 {sMODE}, {vt}\ns_cmp_eq_u32 {sMODE}, 1\ns_cselect_b64 s[92:93], s[58:59], s[100:101]')
    def blk_dma(srd, n, s_src, pitch, s_lds, ve, vo):
        for i in range(n): g.dma(srd, vo if i&1 else ve, s_src, i*8*pitch, s_lds, i*1024)
    def gemv16(wf, vact, d, ab, order=None):
        def rd(gq):
            for m in range(4): A(f'ds_read_b128 v[{ab[gq&1]+4*m}:{ab[gq&1]+4*m+3}], {vact} offset:{(4*gq+m)*64}')
        rd(0); rd(1)
        for gq in range(4):
            for m in range(4):
                A(f's_waitcnt lgkmcnt({(4 if gq<3 else 0)+3-m})')
                c='0' if (gq==0 and m==0) else f'v[{d}:{d+3}]'
                A(f'v_mfma_f32_16x16x32_bf16 v[{d}:{d+3}], v[{wf+16*gq+4*m}:{wf+16*gq+4*m+3}], v[{ab[gq&1]+4*m}:{ab[gq&1]+4*m+3}], {c}')
            if gq<2: rd(gq+2)
    def clear_all_local(fl):
        A(SENT)
        A(f's_cmp_ge_u32 {sJ}, 2\ns_cbranch_scc1 L_CAK')
        A(f's_lshl_b32 s80, {sPAIR}, 10\ns_lshl_b32 s81, {sJ}, 9\ns_add_u32 s81, s81, s80\ns_add_u32 s81, s81, {OO}\ns_mov_b32 exec_hi, 0')
        A(f'buffer_store_dwordx4 v[8:11], v5, {RWL}, s81 offen{fl}\ns_mov_b64 exec, -1')
        A(f's_cmp_lg_u32 {sJ}, 0\ns_cbranch_scc1 L_CAD\ns_add_u32 s80, s80, {X1}')
        A(f'buffer_store_dwordx4 v[8:11], v5, {RWL}, s80 offen{fl}\ns_branch L_CAD')
        A('L_CAK:')
        A(f's_lshl_b32 s80, {sPAIR}, 14\ns_and_b32 s81, {sJ}, 1\ns_lshl_b32 s82, s81, 13\ns_add_u32 s80, s80, s82')
        for i in range(8):
            if i==4: A('s_add_u32 s80, s80, 4096')
            A(f'buffer_store_dwordx4 v[8:11], v5, {RWL}, s80 offen offset:{(i%4)*1024}{fl}')
        A(f's_lshl_b32 s80, {sPAIR}, 10\ns_lshl_b32 s82, s81, 9\ns_add_u32 s82, s82, s80\ns_add_u32 s82, s82, {ST}\ns_mov_b32 exec_hi, 0')
        A(f'buffer_store_dwordx4 v[8:11], v5, {RWL}, s82 offen{fl}\ns_mov_b64 exec, -1')
        A(f's_cmp_lg_u32 {sJ}, 3\ns_cbranch_scc1 L_CAD\ns_add_u32 s80, s80, {GU}')
        A(f'buffer_store_dwordx4 v[8:11], v5, {RWL}, s80 offen{fl}')
        A('L_CAD:')

    A(f"""s_cmp_ge_u32 s2, 256
s_cbranch_scc1 L_END
s_load_dwordx16 s[32:47], s[0:1], 0
s_load_dwordx8 s[48:55], s[0:1], 64
s_load_dwordx4 s[56:59], s[0:1], 96
v_and_b32 v1, 63, v0
v_lshrrev_b32 v2, 6, v0
v_readfirstlane_b32 {sWAVE}, v2
s_and_b32 {sG}, s2, 7
s_bfe_u32 {sB}, s2, 0x30003
s_lshr_b32 {sJ}, s2, 6
s_mov_b32 {sMODE}, 0
s_mov_b32 {sTO}, 0x200000
s_lshl_b32 {sPAIR}, {sG}, 3
s_add_u32 {sPAIR}, {sPAIR}, {sB}
s_and_b32 {sW8}, {sWAVE}, 7
v_mov_b32 v3, {L_FLAGS}
v_lshl_add_u32 v4, v1, 2, v3
v_mov_b32 v5, 0
s_cmp_lg_u32 {sWAVE}, 0
s_cbranch_scc1 L_NOINIT
ds_write_b32 v4, v5""")
    if o.stamps: A(f'ds_write_b32 v4, v5 offset:{L_STAMP-L_FLAGS}')
    A(f"""L_NOINIT:
s_lshl_b32 s76, {sB}, 24
s_lshl_b32 s77, {sG}, 21
s_add_u32 s76, s76, s77
s_add_u32 s76, s76, 0x180000
s_mov_b32 s10, 0x80000
s_mov_b32 s11, 0x20000
s_mov_b32 s14, 0x1c0000
s_mov_b32 s15, 0x20000
s_mov_b32 s18, {WS_USED}
s_mov_b32 s19, 0x20000
s_mov_b32 s26, 0x300000
s_mov_b32 s27, 0x20000
s_mov_b32 s30, 0x2000
s_mov_b32 s31, 0x20000
s_mov_b32 s62, 0x2000
s_mov_b32 s63, 0x20000
s_mov_b32 s66, 0x2000
s_mov_b32 s67, 0x20000
s_mov_b32 s70, 0x100
s_mov_b32 s71, 0x20000
s_mov_b32 s22, 0x400000
s_mov_b32 s23, 0x20000
s_mov_b32 s94, {LREG}
s_mov_b32 s95, 0x20000
s_cmp_eq_u32 {sJ}, 3
s_cselect_b32 s22, 0x1c0000, s22
s_waitcnt lgkmcnt(0)
s_cmp_ge_u32 {sJ}, 2
s_cselect_b64 s[8:9], s[34:35], s[36:37]
s_add_u32 s8, s8, s76
s_addc_u32 s9, s9, 0
s_mov_b64 s[12:13], s[48:49]
s_mov_b64 s[16:17], s[58:59]
s_mov_b64 s[24:25], s[52:53]
s_mov_b64 s[28:29], s[50:51]
s_mov_b64 s[60:61], s[32:33]
s_mov_b64 s[64:65], s[54:55]
s_mov_b64 s[68:69], s[56:57]
s_mov_b64 s[20:21], s[38:39]
s_cmp_eq_u32 {sJ}, 2
s_cselect_b64 s[20:21], s[40:41], s[20:21]
s_cmp_lt_u32 {sB}, 4
s_cselect_b64 s[76:77], s[44:45], s[46:47]
s_cmp_eq_u32 {sJ}, 3
s_cselect_b64 s[20:21], s[76:77], s[20:21]
s_mov_b64 s[92:93], s[58:59]
s_add_u32 s100, s58, {GOFF}
s_addc_u32 s101, s59, 0""")
    RKV=RK; RWD=RV
    A(f's_cmp_lg_u32 s2, 0\ns_cbranch_scc1 L_NOE\ns_cmp_lg_u32 {sWAVE}, 0\ns_cbranch_scc1 L_NOE')
    A(f's_memrealtime s[96:97]\ns_waitcnt lgkmcnt(0)\ns_or_b32 s76, s96, 1\nv_mov_b32 v5, s76\nv_lshlrev_b32 v6, 7, v1\ns_mov_b64 exec, 3\nbuffer_store_dword v5, v6, {RDBG}, 0 offen sc1\ns_mov_b64 exec, -1')
    A('L_NOE:')
    A(f's_cmp_ge_u32 {sJ}, 2\ns_cbranch_scc1 L_PREK')
    A(f's_cmp_eq_u32 {sWAVE}, 13\ns_cbranch_scc1 L_PRE13\ns_cmp_eq_u32 {sWAVE}, 15\ns_cbranch_scc1 L_PREV15')
    A(f's_cmp_lg_u32 {sJ}, 0\ns_cbranch_scc1 L_B0\ns_cmp_ge_u32 {sWAVE}, 12\ns_cbranch_scc1 L_B0\ns_cmp_ge_u32 {sWAVE}, 8\ns_cbranch_scc1 L_PREC')
    A(f's_and_b32 s80, s2, 15\ns_lshr_b32 s81, s2, 4')
    g.dma_voff('v12','v13',6144,'v14')
    A(f's_lshl_b32 s84, s81, 7\ns_lshl_b32 s85, {sWAVE}, 4\ns_add_u32 s84, s84, s85\ns_mul_i32 s84, s84, 6144\ns_lshl_b32 s85, s80, 7\ns_add_u32 s84, s84, s85')
    A(f's_lshl_b32 s85, {sWAVE}, 11\ns_add_u32 s85, s85, {L_WM}')
    blk_dma(RWM, 2, 's84', 6144, 's85', 'v12', 'v13')
    A(f's_cmp_lt_u32 {sWAVE}, 4\ns_cbranch_scc1 L_B0')
    A(f'v_lshlrev_b32 v4, 4, v1\ns_and_b32 s87, {sWAVE}, 3\ns_lshl_b32 s87, s87, 11')
    A(f'buffer_load_dwordx4 v[88:91], v4, {RX}, s87 offen\nbuffer_load_dwordx4 v[92:95], v4, {RX}, s87 offen offset:1024\ns_branch L_B0')
    A('L_PREC:')
    A(f'v_lshlrev_b32 v4, 4, v1\ns_lshl_b32 s83, {sW8}, 11')
    A(f'buffer_load_dwordx4 v[104:107], v4, {RC}, s83 offen\nbuffer_load_dwordx4 v[100:103], v4, {RC}, s83 offen offset:1024\ns_branch L_B0')
    A('L_PREV15:')
    A(SENT)
    A(f's_lshl_b32 s80, {sPAIR}, 10\ns_lshl_b32 s81, {sJ}, 9\ns_add_u32 s81, s81, s80\ns_add_u32 s81, s81, {OO}\ns_mov_b32 exec_hi, 0')
    A(f'buffer_store_dwordx4 v[8:11], v5, {RWL}, s81 offen\ns_mov_b64 exec, -1')
    A(f's_cmp_lg_u32 {sJ}, 0\ns_cbranch_scc1 L_B0\ns_add_u32 s80, s80, {X1}')
    A(f'buffer_store_dwordx4 v[8:11], v5, {RWL}, s80 offen\ns_branch L_B0')
    A('L_PREK:')
    A(f's_cmp_lt_u32 {sWAVE}, 8\ns_cbranch_scc1 L_B0\ns_cmp_eq_u32 {sWAVE}, 14\ns_cbranch_scc1 L_B0\ns_cmp_eq_u32 {sWAVE}, 13\ns_cbranch_scc1 L_PRE13')
    A(SENT)
    A(f's_and_b32 s81, {sJ}, 1\ns_and_b32 s83, s2, 63\ns_lshl_b32 s83, s83, 11')
    A(f's_cmp_ge_u32 {sWAVE}, 12\ns_cbranch_scc1 L_PREK2')
    A(f's_lshl_b32 s80, {sPAIR}, 14\ns_lshl_b32 s82, s81, 13\ns_add_u32 s80, s80, s82\ns_lshl_b32 s82, {sW8}, 11\ns_add_u32 s80, s80, s82')
    A(f'buffer_store_dwordx4 v[8:11], v5, {RWL}, s80 offen\nbuffer_store_dwordx4 v[8:11], v5, {RWL}, s80 offen offset:1024\ns_branch L_B0')
    A('L_PREK2:')
    A(f's_cmp_eq_u32 {sWAVE}, 15\ns_cbranch_scc1 L_PREK3')
    A(f's_lshl_b32 s80, {sPAIR}, 10\ns_lshl_b32 s82, s81, 9\ns_add_u32 s82, s82, s80\ns_add_u32 s82, s82, {ST}\ns_mov_b32 exec_hi, 0')
    A(f'buffer_store_dwordx4 v[8:11], v5, {RWL}, s82 offen\ns_mov_b64 exec, -1')
    A(f's_cmp_eq_u32 {sJ}, 2\ns_cbranch_scc1 L_PREK4\ns_add_u32 s80, s80, {GU}')
    A(f'buffer_store_dwordx4 v[8:11], v5, {RWL}, s80 offen\ns_branch L_B0')
    A(f'L_PREK4:\ns_add_u32 s80, s83, {WP}\ns_branch L_PREK5')
    A(f'L_PREK3:\ns_cmp_lg_u32 {sJ}, 2\ns_cbranch_scc1 L_B0\ns_add_u32 s80, s83, {DP}')
    A(f'L_PREK5:\nbuffer_store_dwordx4 v[8:11], v5, {RWS}, s80 offen sc1\nbuffer_store_dwordx4 v[8:11], v5, {RWS}, s80 offen offset:1024 sc1\ns_branch L_B0')
    A('L_PRE13:')
    if o.codepf:
        A(f's_getpc_b64 s[80:81]\nL_PC:\ns_sub_u32 s80, s80, L_PC-{NAME}_kernel\ns_subb_u32 s81, s81, 0')
        A(f's_lshr_b32 s82, s2, 3\ns_lshl_b32 s82, s82, 10\nv_lshlrev_b32 v4, 4, v1\nv_add_u32 v4, s82, v4\nv_min_u32 v4, L_CODE_END-{NAME}_kernel-16, v4')
        A('global_load_dwordx4 v[100:103], v4, s[80:81]')
    A('L_B0:\ns_barrier')
    g.stampw(0,0)
    A(f's_cmp_eq_u32 {sWAVE}, 14\ns_cbranch_scc1 L_EP')
    A(f's_cmp_eq_u32 {sWAVE}, 15\ns_cbranch_scc1 L_SYNC')
    A(f's_cmp_eq_u32 {sJ}, 0\ns_cbranch_scc1 L_TC\ns_cmp_eq_u32 {sJ}, 1\ns_cbranch_scc1 L_TD')
    A(f's_cmp_lt_u32 {sWAVE}, 8\ns_cbranch_scc1 L_KPATH\ns_cmp_eq_u32 {sWAVE}, 13\ns_cbranch_scc1 L_KPATH')
    A('s_waitcnt vmcnt(0)')
    lds_inc(F_CLR, 'v5')
    A('s_branch L_KPATH')
    A('L_SYNC:\ns_setprio 3\ns_waitcnt vmcnt(0)')
    get_E('v12')
    A(f's_cmp_lt_u32 {sJ}, 2\ns_cbranch_scc1 L_SY1')
    g.lds_spin('v3', F_CLR, 5, 'v7', sleep=1)
    A('L_SY1:')
    A(f's_getreg_b32 s83, hwreg(HW_REG_XCC_ID)\nv_mov_b32 v13, s83\ns_lshl_b32 s84, s2, 7\ns_add_u32 s84, s84, {FL}\nv_mov_b32 v14, s84')
    A(f's_mov_b64 exec, 1\nbuffer_store_dwordx2 v[12:13], v14, {RWS}, 0 offen sc1\ns_mov_b64 exec, -1')
    g.stamp(4)
    A(f's_setprio 0\ns_cmp_ge_u32 {sJ}, 2\ns_cbranch_scc1 L_KPATH\ns_branch L_VWAIT')
    A('L_EP:\ns_setprio 3')
    A(f's_and_b32 s80, s2, 1\ns_lshl_b32 s80, s80, 7\nv_mov_b32 v9, s80\nL_EPL:\nbuffer_load_dword v12, v9, {RDBG}, 0 offen sc1\ns_waitcnt vmcnt(0)\nv_cmp_eq_u32 vcc, 0, v12\ns_cbranch_vccz L_EPD')
    g.timeout('L_EPD')
    A(f's_branch L_EPL\nL_EPD:\nds_write_b32 v3, v12 offset:{F_E}')
    g.stamp(24)
    A(f's_setprio 0\ns_cmp_ge_u32 {sJ}, 2\ns_cbranch_scc1 L_KPATH')
    A(f's_sleep {o.fldelay}\ns_mov_b32 s79, 0')
    A('L_FLAGS:')
    A(f'v_and_b32 v7, 31, v1\nv_lshlrev_b32 v14, 3, v7\nv_add_u32 v14, {sG}, v14\nv_lshrrev_b32 v15, 3, v7\nv_lshlrev_b32 v15, 6, v15\nv_and_b32 v7, 7, v1\nv_add_u32 v15, v15, v7\ns_lshl_b32 s84, {sB}, 3\nv_add_u32 v15, s84, v15')
    A(f's_mov_b32 vcc_lo, 0\ns_mov_b32 vcc_hi, -1\nv_cndmask_b32 v15, v14, v15, vcc\nv_lshlrev_b32 v15, 7, v15\nv_add_u32 v15, {FL}, v15')
    A(f'L_FLP:\nbuffer_load_dwordx2 v[96:97], v15, {RWS}, 0 offen sc1\ns_waitcnt vmcnt(0)\nv_cmp_ne_u32 vcc, v96, v12\ns_cbranch_vccz L_FLD')
    g.timeout('L_FLD')
    A('s_sleep 8\ns_branch L_FLP\nL_FLD:')
    A('s_getreg_b32 s83, hwreg(HW_REG_XCC_ID)')
    A(f'v_cmp_ne_u32 vcc, s83, v97\ns_cmp_eq_u32 vcc_lo, 0\ns_cselect_b32 s84, {1 if o.local else 0}, 0\nv_mov_b32 v14, s84\ns_cmp_eq_u32 s84, 1\ns_cbranch_scc1 L_FLOK')
    A('s_mov_b64 s[92:93], s[100:101]')
    clear_all_local(' sc1')
    A(f's_lshl_b32 s80, s2, 7\ns_add_u32 s80, s80, {FLB}\nv_mov_b32 v5, s80\ns_mov_b32 s80, {FLB-FL}\ns_waitcnt vmcnt(0)')
    A(f's_mov_b64 exec, 1\nbuffer_store_dword v12, v5, {RWS}, 0 offen sc1\ns_mov_b64 exec, -1')
    A(f'L_FBP:\nbuffer_load_dword v8, v15, {RWS}, s80 offen sc1\ns_waitcnt vmcnt(0)\nv_cmp_ne_u32 vcc, v8, v12\ns_cmp_eq_u32 vcc_lo, 0\ns_cbranch_scc1 L_FLOK')
    g.timeout('L_FLOK')
    A('s_sleep 4\ns_branch L_FBP')
    A(f'L_FLOK:\nds_write_b32 v3, v14 offset:{F_MODE}\ns_waitcnt lgkmcnt(0)')
    g.lds_set('v3', F_MOK, 1, 'v7')
    g.stamp(5)
    A('s_cmp_eq_u32 s79, 1\ns_cbranch_scc1 L_KFLB\ns_branch L_VWAIT')

    A('L_TC:')
    A(f's_cmp_ge_u32 {sWAVE}, 12\ns_cbranch_scc1 L_C_MT\ns_cmp_ge_u32 {sWAVE}, 8\ns_cbranch_scc1 L_C_S\ns_cmp_ge_u32 {sWAVE}, 4\ns_cbranch_scc1 L_C_LN')
    g.tr_addr('v5', sWAVE, L_WM, 'v6', 'v7')
    A(f's_lshl_b32 s84, s81, 8\ns_add_u32 s84, s84, {L_ACT}')
    g.act_addr('v6', 's84', 1056, 'v7')
    A(f's_lshl_b32 s86, s2, 11\ns_lshl_b32 s84, {sWAVE}, 9\ns_add_u32 s86, s86, s84\ns_add_u32 s86, s86, {MP}')
    A('v_and_b32 v7, 7, v1\nv_lshlrev_b32 v4, 6, v7\nv_lshrrev_b32 v7, 4, v1\nv_lshl_add_u32 v4, v7, 4, v4')
    A('s_waitcnt vmcnt(0)')
    lds_inc(F_C1, 'v7')
    get_E('v12')
    pair_prep('v4', MP2-MP, 'v12', 'v12', 'v7')
    g.lds_spin('v3', F_C1, 12, 'v7', sleep=0)
    g.tr_frags('v5', 48, range(4))
    g.gemv_tile(48, 4, 'v6', 64, 80)
    for r in range(4): A(f'v_xor_b32 v{80+r}, v{80+r}, v12')
    A(f'buffer_store_dwordx4 v[80:83], v4, {RWS}, s86 offen sc1')
    lds_inc(F_C1, 'v7')
    g.stampw(0,1)
    A('s_branch L_VWAIT')
    A('L_C_LN:')
    A('s_waitcnt vmcnt(2)')
    lds_inc(F_C1, 'v5')
    A('s_waitcnt vmcnt(0)')
    A(f's_add_u32 s87, s87, {L_Y}\nv_add_u32 v4, s87, v4')
    for k,src in enumerate((88,92)):
        g.ln8(src, 48, 56)
        for i in range(4): A(f'v_cvt_pk_bf16_f32 v{src+i}, v{48+2*i}, v{49+2*i}')
        A(f'ds_write_b128 v4, v[{src}:{src+3}] offset:{k*1024}')
    A('s_waitcnt lgkmcnt(0)')
    lds_inc(F_Y, 'v5')
    A('s_branch L_VWAIT')
    A('L_C_S:')
    A(f's_mul_i32 s85, {sW8}, 2112\ns_add_u32 s85, s85, {L_ACT}\nv_add_u32 v5, s85, v4')
    A('s_waitcnt vmcnt(1)')
    g.silu8(104, 16, 24)
    A('ds_write_b128 v5, v[104:107]\ns_waitcnt vmcnt(0)')
    g.silu8(100, 16, 24)
    A('ds_write_b128 v5, v[100:103] offset:1056\ns_waitcnt lgkmcnt(0)')
    lds_inc(F_C1, 'v5')
    A(f's_cmp_lg_u32 {sWAVE}, 8\ns_cbranch_scc1 L_VWAIT')
    A('s_setprio 3')
    get_E('v15')
    A('v_lshrrev_b32 v7, 4, v1\nv_lshlrev_b32 v5, 14, v7\nv_bfe_u32 v6, v1, 1, 3\nv_lshl_add_u32 v5, v6, 6, v5\nv_and_b32 v7, 1, v1\nv_lshl_add_u32 v5, v7, 4, v5')
    A(f's_lshr_b32 s80, s2, 1\ns_lshl_b32 s80, s80, 9\ns_and_b32 s81, s2, 1\ns_lshl_b32 s81, s81, 5\ns_add_u32 s80, s80, s81\ns_add_u32 s80, s80, {MP}\ns_add_u32 s81, s80, 0x10000\ns_add_u32 s82, s80, {MP2-MP}\ns_add_u32 s83, s81, {MP2-MP}')
    A(f'v_lshlrev_b32 v6, 10, v6\nv_lshl_add_u32 v6, v7, 3, v6\ns_lshl_b32 s84, s2, 4\ns_add_u32 s84, s84, {L_Y}\nv_add_u32 v6, s84, v6')
    A(f'v_and_b32 v7, 15, v1\nv_lshlrev_b32 v8, 3, v7\nv_bfe_u32 v7, v1, 4, 1\nv_mul_u32_u24 v9, {HH2-HH}, v7\nv_add_u32 v8, v8, v9\nv_mul_lo_u32 v9, v7, v15\ns_lshl_b32 s84, s2, 7\ns_add_u32 s84, s84, {HH}')
    g.lds_spin('v3', F_Y, 4, 'v7', sleep=1)
    A('ds_read_b64 v[10:11], v6')
    g.lds_spin('v3', F_C1, 16, 'v7', sleep=1)
    if o.mpdelay: A(f's_sleep {o.mpdelay}')
    xpoll([f'buffer_load_dwordx4 v[{16+4*k}:{19+4*k}], v5, {RWS}, s{80+k} offen sc1' for k in range(4)], 16, 24, 8, 'v15', 'v7', sleep=o.mpsleep)
    for r in range(4): A(f'v_add_f32 v{16+r}, v{16+r}, v{20+r}')
    for r in range(4): A(f'v_mov_b32 v{20+r}, v{16+r}')
    for r in range(4): A(f'v_permlane32_swap_b32 v{16+r}, v{20+r}')
    for r in range(4): A(f'v_add_f32 v{16+r}, v{16+r}, v{20+r}')
    g.rnd2(16,17,12); g.rnd2(18,19,13)
    for r in range(4): A(f'v_mov_b32 v{20+r}, v{16+r}')
    for r in range(4): A(f'v_permlane16_swap_b32 v{16+r}, v{20+r}')
    for r in range(4): A(f'v_add_f32 v{20+r}, 1.0, v{20+r}')
    g.rnd2(20,21,12); g.rnd2(22,23,13)
    g.unpack(10,24,25); g.unpack(11,26,27)
    for r in range(4): A(f'v_mul_f32 v{24+r}, v{24+r}, v{20+r}')
    g.rnd2(24,25,12); g.rnd2(26,27,13)
    for r in range(4): A(f'v_add_f32 v{24+r}, v{24+r}, v{16+r}')
    A('v_cvt_pk_bf16_f32 v10, v24, v25\nv_cvt_pk_bf16_f32 v11, v26, v27\nv_xor_b32 v10, v10, v9\nv_xor_b32 v11, v11, v9\ns_mov_b32 exec_hi, 0')
    A(f'buffer_store_dwordx2 v[10:11], v8, {RWS}, s84 offen sc1\ns_mov_b64 exec, -1')
    g.lds_set('v3', F_R, 1, 'v7')
    A('s_setprio 0')
    g.stamp(25)
    A('s_branch L_VWAIT')
    A('L_C_MT:')
    A(f'v_lshrrev_b32 v7, 2, v1\nv_mul_u32_u24 v12, 6144, v7\nv_and_b32 v7, 3, v1\nv_lshl_add_u32 v12, v7, 4, v12')
    A(f's_and_b32 s85, {sWAVE}, 1\ns_mul_i32 s88, s85, {256*6144}\ns_lshl_b32 s89, {sPAIR}, 6\ns_add_u32 s88, s88, s89\ns_add_u32 s88, s88, 2048\ns_lshl_b32 s89, s85, 14')
    A(f'v_lshrrev_b32 v7, 4, v1\nv_lshlrev_b32 v6, 9, v7\nv_bfe_u32 v7, v1, 2, 2\nv_lshl_add_u32 v6, v7, 6, v6\nv_and_b32 v7, 3, v1\nv_lshl_add_u32 v6, v7, 3, v6\ns_lshl_b32 s84, s85, 5\nv_add_u32 v6, s84, v6')
    g.act_addr('v8', L_ACT, 1056, 'v7')
    A(f'v_and_b32 v7, 7, v1\nv_lshlrev_b32 v9, 12, v7\nv_lshrrev_b32 v7, 4, v1\nv_lshl_add_u32 v9, v7, 3, v9\ns_lshl_b32 s86, {sPAIR}, 6\ns_add_u32 s86, s86, s84\ns_add_u32 s86, s86, {MT}')
    if o.mtearly==0: g.lds_spin('v3', F_R, 1, 'v7', sleep=2)
    A('s_setprio 1')
    for i in range(16): g.dma(RWM, 'v12', 's88', i*16*6144, 's89', L_W+i*1024)
    lds_inc(F_GO, 'v7')
    get_E('v10')
    pair_prep('v9', MT2-MT, 'v10', 'v10', 'v7')
    A('s_waitcnt vmcnt(0)')
    lds_inc(F_SUB, 'v7')
    g.lds_spin('v3', F_SUB, 2, 'v7', sleep=1)
    g.lds_spin('v3', F_C1, 12, 'v7', sleep=1)
    def rdm(gq):
        for m in range(4):
            mm=4*gq+m; o_=16*(gq&1)+4*m
            A(f'ds_read_b64_tr_b16 v[{32+o_}:{33+o_}], v6 offset:{mm*2048}\nds_read_b64_tr_b16 v[{34+o_}:{35+o_}], v6 offset:{mm*2048+256}')
            A(f'ds_read_b128 v[{64+o_}:{67+o_}], v8 offset:{mm*64}')
    rdm(0)
    for gq in range(4):
        if gq<3: rdm(gq+1); A('s_waitcnt lgkmcnt(12)')
        else: A('s_waitcnt lgkmcnt(0)')
        for m in range(4):
            o_=16*(gq&1)+4*m
            c='0' if (gq==0 and m==0) else 'v[12:15]'
            A(f'v_mfma_f32_16x16x32_bf16 v[12:15], v[{32+o_}:{35+o_}], v[{64+o_}:{67+o_}], {c}')
    A('v_cvt_pk_bf16_f32 v100, v12, v13\nv_cvt_pk_bf16_f32 v101, v14, v15\nv_xor_b32 v100, v100, v10\nv_xor_b32 v101, v101, v10')
    A(f'buffer_store_dwordx2 v[100:101], v9, {RWS}, s86 offen sc1\ns_setprio 0')
    A('s_branch L_VW_C')

    A('L_TD:')
    A(f's_cmp_ge_u32 {sWAVE}, 12\ns_cbranch_scc1 L_VWAIT\ns_cmp_ge_u32 {sWAVE}, 8\ns_cbranch_scc1 L_D_H')
    g.dma_voff('v12','v13',8192,'v14')
    A(f's_lshl_b32 s85, {sWAVE}, 13\ns_lshl_b32 s84, {sWAVE}, 19\ns_lshl_b32 s86, {sPAIR}, 7\ns_add_u32 s84, s84, s86')
    blk_dma(RW1, 8, 's84', 8192, 's85', 'v12', 'v13')
    lds_inc(F_GO, 'v7')
    A('s_waitcnt vmcnt(0)')
    lds_inc(F_SUB, 'v7')
    A(f's_cmp_ge_u32 {sWAVE}, 4\ns_cbranch_scc1 L_VWAIT')
    g.tr_addr('v5', sWAVE, L_W, 'v6', 'v7')
    g.act_addr('v6', L_H, 1056, 'v7')
    A(f's_lshl_b32 s86, {sPAIR}, 10\ns_lshl_b32 s84, {sWAVE}, 5\ns_add_u32 s86, s86, s84\ns_add_u32 s86, s86, {QF}')
    A(f'v_and_b32 v7, 7, v1\nv_lshlrev_b32 v4, 7, v7\nv_lshrrev_b32 v7, 4, v1\nv_lshl_add_u32 v4, v7, 3, v4')
    get_E('v12')
    pair_prep('v4', QF2-QF, 'v12', 'v12', 'v7')
    g.lds_spin('v3', F_SUB, 8, 'v7', sleep=1)
    g.tr_frags('v5', 16, range(16))
    g.stampw(0,16)
    get_mode('v7')
    A('s_setprio 3')
    g.lds_spin('v3', F_C3, 4, 'v7', sleep=0)
    gemv16(16, 'v6', 8, [80,96])
    A('v_cvt_pk_bf16_f32 v14, v8, v9\nv_cvt_pk_bf16_f32 v15, v10, v11\nv_xor_b32 v14, v14, v12\nv_xor_b32 v15, v15, v12')
    g.pub(f'buffer_store_dwordx2 v[14:15], v4, {RWS}, s86 offen', True)
    lds_inc(F_VGO, 'v7')
    A('s_setprio 0')
    g.stampw(0,3)
    A('s_branch L_VWAIT')
    A('L_D_H:\ns_setprio 3')
    A(f'v_lshlrev_b32 v4, 4, v1\ns_lshl_b32 s80, {sW8}, 11\ns_add_u32 s81, s80, {HH2}\ns_add_u32 s80, s80, {HH}')
    A(f'v_and_b32 v7, 7, v1\nv_mul_u32_u24 v6, 1056, v7\nv_lshrrev_b32 v7, 3, v1\nv_lshl_add_u32 v6, v7, 4, v6\ns_lshl_b32 s84, {sW8}, 8\ns_add_u32 s84, s84, {L_H}\nv_add_u32 v6, s84, v6')
    get_E('v15')
    g.lds_spin('v3', F_SUB, o.hdelay, 'v7', sleep=1)
    xpoll([f'buffer_load_dwordx4 v[16:19], v4, {RWS}, s80 offen sc1', f'buffer_load_dwordx4 v[20:23], v4, {RWS}, s80 offen offset:1024 sc1',
           f'buffer_load_dwordx4 v[24:27], v4, {RWS}, s81 offen sc1', f'buffer_load_dwordx4 v[28:31], v4, {RWS}, s81 offen offset:1024 sc1'], 16, 24, 8, 'v15', 'v7', sleep=o.mpsleep)
    A('ds_write_b128 v6, v[16:19]\nds_write_b128 v6, v[20:23] offset:128\ns_waitcnt lgkmcnt(0)')
    lds_inc(F_C3, 'v5')
    A('s_setprio 0')
    g.stampw(8,2)
    A('L_VWAIT:')
    A(f's_cmp_eq_u32 {sJ}, 1\ns_cbranch_scc1 L_VW_D')
    pm=0
    for w in o.cpre: pm|=1<<w
    if pm: A(f's_mov_b32 s80, {pm}\ns_lshr_b32 s80, s80, {sWAVE}\ns_bitcmp1_b32 s80, 0\ns_cbranch_scc1 L_VPATH')
    g.lds_spin('v3', F_R, 1, 'v7', sleep=2)
    g.lds_spin('v3', F_GO, 2, 'v7', sleep=1)
    A('L_VW_C:')
    cm=0
    for w in o.cearly: cm|=1<<w
    A(f's_mov_b32 s80, {cm}\ns_lshr_b32 s80, s80, {sWAVE}\ns_bitcmp1_b32 s80, 0\ns_cbranch_scc1 L_VPATH')
    A(f's_cmp_lg_u32 {sWAVE}, 9\ns_cbranch_scc1 L_VW_D2')
    get_E('v12')
    A(f's_lshl_b32 s80, {sPAIR}, 10\ns_add_u32 s80, s80, {QF}\ns_add_u32 s81, s80, {QF2-QF}\nv_mov_b32 v5, 0')
    xpoll([f'buffer_load_dword v16, v5, {RWS}, s80 offen sc1', f'buffer_load_dword v17, v5, {RWS}, s81 offen sc1'], 16, 17, 1, 'v12', 'v7', sleep=4)
    g.lds_set('v3', F_VGO, 4, 'v7')
    A('s_branch L_VPATH\nL_VW_D:')
    em=0
    for w in o.dearly: em|=1<<w
    A(f's_mov_b32 s80, {em}\ns_lshr_b32 s80, s80, {sWAVE}\ns_bitcmp1_b32 s80, 0\ns_cbranch_scc0 L_VW_D2')
    g.lds_spin('v3', F_GO, 8, 'v7', sleep=1)
    A('s_branch L_VPATH\nL_VW_D2:')
    g.lds_spin('v3', F_VGO, 4, 'v7', sleep=2)
    A('L_VPATH:')
    A(f'v_lshrrev_b32 v5, 3, v1\nv_lshlrev_b32 v2, 11, v5\nv_and_b32 v5, 7, v1\nv_lshl_add_u32 v2, v5, 4, v2')
    A(f's_lshl_b32 s80, {sWAVE}, 15\ns_xor_b32 s81, {sJ}, {o.dhswap}\ns_lshl_b32 s81, s81, 7\ns_add_u32 s80, s80, s81\ns_add_u32 s81, s80, 16384')
    for blk in range(2):
        for u in range(8):
            r=8+32*blk+4*u
            A(f'buffer_load_dwordx4 v[{r}:{r+3}], v2, {RKV}, s{80+blk} offen offset:{u*256} nt')
    lds_inc(F_KL, 'v7')
    g.stampw(0,22); g.stampw(11,23)
    if o.stamps:
        A(f's_cmp_lg_u32 {sWAVE}, 15\ns_cbranch_scc1 L_NS26\ns_waitcnt vmcnt(0)')
        g.stamp(26)
        A('L_NS26:')
    A('s_mov_b32 s88, 0x05040100\ns_mov_b32 s89, 0x07060302')
    A(f'v_bfe_u32 v7, v1, 3, 1\nv_lshlrev_b32 v6, 10, v7\nv_and_b32 v7, 7, v1\nv_lshl_add_u32 v6, v7, 5, v6\nv_lshrrev_b32 v7, 5, v1\nv_lshl_add_u32 v6, v7, 2, v6')
    A(f's_lshl_b32 s84, {sWAVE}, 11\ns_add_u32 s84, s84, {L_OP}\nv_add_u32 v6, s84, v6')
    A(f'v_lshrrev_b32 v7, 4, v1\nv_lshlrev_b32 v4, 7, v7\nv_and_b32 v7, 7, v1\nv_lshl_add_u32 v4, v7, 4, v4\ns_lshl_b32 s84, {sPAIR}, 14\ns_lshl_b32 s85, {sWAVE}, 10\ns_add_u32 s84, s84, s85')
    get_mode('v7')
    PL=[f'buffer_load_dwordx4 v[72:75], v4, {RWL}, s84 offen sc1', f'buffer_load_dwordx4 v[80:83], v4, {RWL}, s84 offen offset:512 sc1']
    PR=[72,73,74,75,80,81,82,83]
    TB=[88,8]
    def perms(blk):
        B=8+32*blk
        for w in range(4):
            t=TB[blk]+8*w
            for a in range(4): A(f'v_perm_b32 v{t+a}, v{B+4*(2*a+1)+w}, v{B+4*(2*a)+w}, s88')
            for a in range(4): A(f'v_perm_b32 v{t+4+a}, v{B+4*(2*a+1)+w}, v{B+4*(2*a)+w}, s89')
    A(f'ds_read_b32 v7, v3 offset:{F_KL}\ns_waitcnt lgkmcnt(0)\nv_readfirstlane_b32 s85, v7\ns_cmp_lt_u32 s85, {o.pgate}\ns_cbranch_scc1 L_PE')
    for l in PL: A(l)
    A('s_waitcnt vmcnt(10)')
    perms(0)
    A('s_waitcnt vmcnt(2)')
    perms(1)
    A('s_waitcnt vmcnt(0)')
    g.chk(PR, 'v7')
    A('s_cbranch_vccz L_PD\ns_branch L_PP')
    A('L_PE:\ns_waitcnt vmcnt(8)')
    perms(0)
    A('s_waitcnt vmcnt(0)')
    perms(1)
    g.lds_spin('v3', F_KL, o.pgate, 'v7', sleep=2)
    A('L_PP:')
    g.poll(PL, PR, 'v7', sleep=o.psleep)
    A('L_PD:')
    g.stampw(0,8); g.stampw(11,9)
    A(HI8)
    for blk in range(2):
        for r in range(4): A(f'v_cndmask_b32 v{76+8*blk+r}, 0, v{72+8*blk+r}, vcc')
    A('s_not_b64 vcc, vcc')
    for blk in range(2):
        for r in range(4): A(f'v_cndmask_b32 v{72+8*blk+r}, 0, v{72+8*blk+r}, vcc')
    Dd=40
    for blk in range(2):
        for q in range(2):
            for w in range(4):
                t=TB[blk]+8*w+4*q; d=Dd+4*w
                c0='0' if (blk==0 and q==0) else f'v[{d}:{d+3}]'
                A(f'v_mfma_f32_16x16x32_bf16 v[{d}:{d+3}], v[{72+8*blk+4*q}:{75+8*blk+4*q}], v[{t}:{t+3}], {c0}')
    A('s_mov_b32 exec_lo, 0xff0000ff\ns_mov_b32 exec_hi, 0xff0000ff')
    for wp in range(2):
        for h in range(4): A(f'ds_write2_b32 v6, v{Dd+8*wp+h}, v{Dd+8*wp+4+h} offset0:{64*h+4*wp} offset1:{64*h+4*wp+2}')
    A('s_mov_b64 exec, -1')
    A(f'v_lshrrev_b32 v5, 3, v1\nv_lshlrev_b32 v4, 12, v5\nv_and_b32 v5, 7, v1\nv_lshl_add_u32 v4, v5, 4, v4\ns_lshl_b32 s85, {sW8}, 7\ns_add_u32 s84, s85, {L_OP}\nv_add_u32 v4, s84, v4')
    A(f'v_lshlrev_b32 v5, 3, v1\ns_lshl_b32 s84, {sPAIR}, 10\ns_lshr_b32 s85, s85, 1\ns_add_u32 s84, s84, s85\ns_lshl_b32 s85, {sJ}, 9\ns_add_u32 s84, s84, s85\ns_add_u32 s84, s84, {OO}')
    A('s_waitcnt lgkmcnt(0)\ns_barrier')
    A(f's_cmp_lt_u32 {sWAVE}, 8\ns_cbranch_scc1 L_VT')
    for k in range(4): A(f'ds_read_b128 v[{8+4*k}:{11+4*k}], v4 offset:{k*1024}')
    A('s_waitcnt lgkmcnt(0)')
    for r in range(4): A(f'v_add_f32 v{8+r}, v{8+r}, v{12+r}\nv_add_f32 v{16+r}, v{16+r}, v{20+r}')
    for r in range(4): A(f'v_add_f32 v{8+r}, v{8+r}, v{16+r}')
    for r in range(4): A(f'v_add_f32_dpp v{8+r}, v{8+r}, v{8+r} row_ror:8 row_mask:0xf bank_mask:0xf')
    g.red_rows('v_add_f32', [8,9,10,11], [12,13,14,15])
    A('v_cvt_pk_bf16_f32 v12, v8, v9\nv_cvt_pk_bf16_f32 v13, v10, v11')
    g.nosent([12,13])
    A('s_mov_b64 exec, 0xff')
    g.pub(f'buffer_store_dwordx2 v[12:13], v5, {RWL}, s84 offen', True)
    A('s_mov_b64 exec, -1')
    g.stampw(8,10)
    if o.stamps:
        A(f's_cmp_lg_u32 {sJ}, 1\ns_cbranch_scc1 L_END\ns_cmp_eq_u32 {sWAVE}, 8\ns_cbranch_scc1 L_DUMP')
    A('s_branch L_END')
    A('L_VT:')
    A(f's_cmp_lg_u32 {sJ}, 0\ns_cbranch_scc1 L_END\ns_cmp_ge_u32 {sWAVE}, 3\ns_cbranch_scc1 L_END')
    A(f'ds_read_b32 v13, v3 offset:{F_E}')
    A(f's_cmp_eq_u32 {sWAVE}, 2\ns_cbranch_scc1 L_FIN')
    A(f'v_lshlrev_b32 v4, 4, v1\ns_lshl_b32 s80, {sWAVE}, 10\nv_add_u32 v4, s80, v4')
    A(f'v_bfe_u32 v6, v1, 2, 3\nv_lshrrev_b32 v7, 5, v1\nv_lshlrev_b32 v7, 5, v7\nv_and_b32 v8, 3, v1\nv_lshl_add_u32 v7, v8, 3, v7\ns_lshl_b32 s81, {sWAVE}, 6\nv_add_u32 v7, s81, v7')
    A(f'v_lshl_add_u32 v5, v6, 10, v7\ns_lshl_b32 s81, {sB}, 7\nv_lshl_add_u32 v9, v6, 12, v7\ns_add_u32 s80, s81, {MT}')
    A(f'buffer_load_dwordx2 v[56:57], v5, {RX}, s81 offen')
    A(f's_add_u32 s81, s80, {MT2-MT}\ns_waitcnt lgkmcnt(0)')
    xpoll([f'buffer_load_dwordx2 v[60:61], v9, {RWS}, s80 offen sc1', f'buffer_load_dwordx2 v[62:63], v9, {RWS}, s81 offen sc1'], 60, 62, 2, 'v13', 'v12')
    g.unpack(60,48,49); g.unpack(61,50,51)
    g.unpack(56,52,53); g.unpack(57,54,55)
    A(f'v_lshl_add_u32 v5, v6, 7, v7\ns_lshl_b32 s82, {sPAIR}, 10\ns_add_u32 s82, s82, {X1}')
    A(f'v_lshlrev_b32 v8, 1, v5\nv_add_u32 v8, {L_X1S}, v8')
    A(f's_lshl_b32 s80, {sB}, 14\ns_add_u32 s80, s80, {WP}')
    for k in range(4): A(f's_add_u32 s{88+k}, s80, {k*4096}')
    g.poll([f'buffer_load_dwordx4 v[{16+4*k}:{19+4*k}], v4, {RWS}, s{88+(k>>1)} offen offset:{(k&1)*2048} sc1' for k in range(8)], range(16,48), 'v12')
    for r in range(4):
        A(f'v_add_f32 v{16+r}, v{16+r}, v{20+r}\nv_add_f32 v{24+r}, v{24+r}, v{28+r}\nv_add_f32 v{32+r}, v{32+r}, v{36+r}\nv_add_f32 v{40+r}, v{40+r}, v{44+r}')
        A(f'v_add_f32 v{16+r}, v{16+r}, v{24+r}\nv_add_f32 v{32+r}, v{32+r}, v{40+r}\nv_add_f32 v{16+r}, v{16+r}, v{32+r}')
    g.rnd2(16,17,12); g.rnd2(18,19,13)
    for r in range(4): A(f'v_mul_f32 v{16+r}, v{16+r}, v{48+r}')
    g.rnd2(16,17,12); g.rnd2(18,19,13)
    for r in range(4): A(f'v_add_f32 v{16+r}, v{16+r}, v{52+r}')
    g.rnd2(16,17,12); g.rnd2(18,19,13)
    g.nosent([12,13])
    g.pub(f'buffer_store_dwordx2 v[12:13], v5, {RWL}, s82 offen', True)
    A('ds_write_b128 v8, v[16:19]')
    g.stampw(0,12)
    A('s_waitcnt lgkmcnt(0)\ns_barrier')
    A('s_branch L_END')
    A('L_FIN:')
    A(f'v_lshrrev_b32 v5, 4, v1\nv_lshlrev_b32 v4, 9, v5\nv_and_b32 v5, 15, v1\nv_lshl_add_u32 v4, v5, 2, v4\ns_lshl_b32 s80, {sG}, 6\nv_add_u32 v4, s80, v4')
    A(f's_lshl_b32 s80, {sG}, 12\ns_lshl_b32 s81, {sB}, 7\ns_add_u32 s80, s80, s81\ns_add_u32 s80, s80, {MT+3072}\nv_lshrrev_b32 v5, 1, v1\nv_lshlrev_b32 v5, 2, v5')
    A(f's_add_u32 s81, s80, {MT2-MT}\ns_waitcnt lgkmcnt(0)')
    xpoll([f'buffer_load_dword v50, v5, {RWS}, s80 offen sc1', f'buffer_load_dword v51, v5, {RWS}, s81 offen sc1'], 50, 51, 1, 'v13', 'v12', sleep=4)
    g.unpack(50,48,49)
    A('s_mov_b32 vcc_lo, 0xaaaaaaaa\ns_mov_b32 vcc_hi, 0xaaaaaaaa\nv_cndmask_b32 v48, v48, v49, vcc')
    A(f's_lshl_b32 s80, {sB}, 14\ns_add_u32 s80, s80, {DP}')
    for k in range(4): A(f's_add_u32 s{88+k}, s80, {k*4096}')
    A(f's_lshl_b32 s81, {sG}, 8\ns_add_u32 s81, s81, {L_X1S}\nv_lshlrev_b32 v6, 2, v1\nv_add_u32 v6, s81, v6')
    A(f'v_lshlrev_b32 v7, 1, v1\ns_lshl_b32 s82, {sG}, 10\ns_lshl_b32 s83, {sB}, 7\ns_add_u32 s82, s82, s83')
    A('s_barrier')
    A('ds_read_b32 v50, v6')
    g.poll([f'buffer_load_dword v{16+k}, v4, {RWS}, s{88+(k>>1)} offen offset:{(k&1)*2048} sc1' for k in range(7)], range(16,23), 'v12')
    A('v_add_f32 v16, v16, v17\nv_add_f32 v18, v18, v19\nv_add_f32 v20, v20, v21\nv_add_f32 v16, v16, v18\nv_add_f32 v20, v20, v22\nv_add_f32 v16, v16, v20')
    g.rnd2(16,17,12)
    A('v_mul_f32 v16, v16, v48')
    g.rnd2(16,17,12)
    A('s_waitcnt lgkmcnt(0)\nv_add_f32 v16, v16, v50\nv_cvt_pk_bf16_f32 v12, v16, v16')
    A(f'buffer_store_short v12, v7, {ROUT}, s82 offen')
    g.stamp(15)
    A('s_branch L_DUMP')

    A('L_KPATH:')
    KST={'lin':4096,'int':65536,'g4':16384}[o.kmap]
    A(f'v_lshlrev_b32 v4, 4, v1\ns_and_b32 s86, {sJ}, 1\ns_lshl_b32 s80, s86, 18')
    def tile0(d, t):
        if o.kmap=='lin': A(f's_lshl_b32 {d}, {sWAVE}, 2')
        elif o.kmap=='int': A(f's_mov_b32 {d}, {sWAVE}')
        else: A(f's_lshr_b32 {d}, {sWAVE}, 2\ns_lshl_b32 {d}, {d}, 4\ns_and_b32 {t}, {sWAVE}, 3\ns_add_u32 {d}, {d}, {t}')
    tile0('s81','s82')
    A('s_lshl_b32 s81, s81, 12\ns_add_u32 s80, s80, s81')
    if o.thr:
        A(f's_cmp_lt_u32 {sWAVE}, {o.thrw}\ns_cbranch_scc1 L_KGO')
        g.lds_spin('v3', F_GO, o.thrw, 'v5', sleep=1)
        A('L_KGO:')
    for T in range(4):
        if T: A(f's_add_u32 s80, s80, {KST}')
        if o.thr and 1<=T<=o.thr:
            l=g.lab('KT')
            A(f's_cmp_ge_u32 {sWAVE}, {o.thrw}\ns_cbranch_scc1 {l}\ns_waitcnt vmcnt(0)')
            if T==o.thr: lds_inc(F_GO, 'v5')
            A(f'{l}:')
        for m in range(4):
            r=16+16*T+4*m
            A(f'buffer_load_dwordx4 v[{r}:{r+3}], v4, {RKV}, s80 offen offset:{m*1024} nt')
    g.stampw(11,20)
    A(f's_mul_i32 s81, {sWAVE}, {KS_SZ}\ns_add_u32 s81, s81, {L_KS}')
    A('v_lshrrev_b32 v6, 4, v1\nv_and_b32 v7, 15, v1\nv_mul_u32_u24 v4, 272, v6\nv_lshl_add_u32 v4, v7, 4, v4\nv_add_u32 v4, s81, v4')
    A('v_mul_u32_u24 v5, 272, v7\nv_lshl_add_u32 v5, v6, 4, v5\nv_add_u32 v5, s81, v5')
    for T in range(4):
        A(f's_waitcnt vmcnt({12-4*T})')
        for m in range(4): A(f'ds_write_b128 v4, v[{16+16*T+4*m}:{19+16*T+4*m}] offset:{m*1088}')
        A('s_waitcnt lgkmcnt(0)')
        for m in range(4): A(f'ds_read_b128 v[{16+16*T+4*m}:{19+16*T+4*m}], v5 offset:{m*64}')
        A('s_waitcnt lgkmcnt(0)')
    lds_inc(F_KL, 'v7')
    g.stampw(15,18); g.stampw(3,21)
    A('s_setprio 2')
    A(f's_cmp_ge_u32 {sWAVE}, 2\ns_cbranch_scc1 L_QPX')
    get_E('v12')
    A(f's_cmp_eq_u32 {sWAVE}, 0\ns_cbranch_scc1 L_QP0\ns_mov_b32 s79, 1\ns_branch L_FLAGS\nL_KFLB:\ns_branch L_QPX\nL_QP0:')
    A(f's_lshl_b32 s80, {sG}, 13\ns_lshl_b32 s81, {sB}, 7\ns_add_u32 s80, s80, s81\ns_add_u32 s80, s80, {QF}\ns_add_u32 s81, s80, {QF2-QF}')
    A(f'v_lshrrev_b32 v6, 3, v1\nv_lshlrev_b32 v5, 10, v6\nv_and_b32 v7, 7, v1\nv_lshl_add_u32 v5, v7, 4, v5')
    A(f'v_lshrrev_b32 v6, 4, v1\nv_mul_u32_u24 v13, 272, v6\nv_and_b32 v7, 15, v1\nv_lshl_add_u32 v13, v7, 4, v13\nv_add_u32 v13, {L_Q}, v13')
    if o.qdelay: g.lds_spin('v3', F_KL, o.qdelay, 'v7', sleep=2)
    xpoll([f'buffer_load_dwordx4 v[96:99], v5, {RWS}, s80 offen sc1', f'buffer_load_dwordx4 v[100:103], v5, {RWS}, s81 offen sc1'], 96, 100, 4, 'v12', 'v7', sleep=o.qsleep)
    A('ds_write_b128 v13, v[96:99]\ns_waitcnt lgkmcnt(0)')
    g.lds_set('v3', F_QREADY, 1, 'v7')
    g.stamp(6)
    A('L_QPX:')
    A(f'v_and_b32 v6, 3, v1\nv_mul_u32_u24 v6, 272, v6\nv_lshrrev_b32 v7, 4, v1\nv_lshl_add_u32 v6, v7, 4, v6\nv_add_u32 v6, {L_Q}, v6')
    A(f'v_bfe_u32 v5, v1, 2, 2\nv_lshlrev_b32 v4, {(KST//32).bit_length()-1}, v5\nv_lshrrev_b32 v5, 5, v1\nv_lshl_add_u32 v4, v5, 6, v4\nv_and_b32 v5, 3, v1\nv_lshl_add_u32 v4, v5, 4, v4\nv_bfe_u32 v5, v1, 4, 1\nv_lshl_add_u32 v4, v5, 3, v4')
    A(f's_and_b32 s86, {sJ}, 1\ns_lshl_b32 s81, {sPAIR}, 14\ns_lshl_b32 s82, s86, 13\ns_add_u32 s81, s81, s82')
    tile0('s82','s83')
    A('s_lshl_b32 s82, s82, 7\ns_add_u32 s81, s81, s82')
    A(f'v_and_b32 v5, 3, v1\nv_lshlrev_b32 v5, 3, v5\ns_lshl_b32 s82, {sPAIR}, 10\ns_add_u32 s82, s82, {ST}\ns_lshl_b32 s84, s86, 9\ns_add_u32 s83, s82, s84\ns_xor_b32 s84, s84, 512\ns_add_u32 s82, s82, s84')
    A(f'v_lshlrev_b32 v14, 3, v1\nv_add_u32 v14, {L_X1S}, v14\ns_lshl_b32 s84, {sWAVE}, 5\nv_add_u32 v13, s84, v14\nv_add_u32 v15, {L_X1S+512}, v5')
    get_mode('v7')
    g.lds_spin('v3', F_QREADY, 1, 'v7', sleep=1)
    for m in range(4): A(f'ds_read_b128 v[{96+4*m}:{99+4*m}], v6 offset:{m*64}')
    for m in range(4):
        A(f's_waitcnt lgkmcnt({3-m})')
        for T in range(4):
            r=16+16*T+4*m; d=80+4*T
            c='0' if m==0 else f'v[{d}:{d+3}]'
            A(f'v_mfma_f32_16x16x32_bf16 v[{d}:{d+3}], v[{r}:{r+3}], v[{96+4*m}:{99+4*m}], {c}')
    for T in range(1,4):
        mk = 0x000f000f << (4*T)
        A(f's_mov_b32 vcc_lo, 0x{mk:x}\ns_mov_b32 vcc_hi, 0x{mk:x}')
        for r in range(4): A(f'v_cndmask_b32 v{80+r}, v{80+r}, v{80+4*T+r}, vcc')
    g.rnd2(80,81,8); g.rnd2(82,83,9)
    for r in range(4): A(f'v_mul_f32 v{80+r}, 0x{SCALE:x}, v{80+r}')
    g.rnd2(80,81,8); g.rnd2(82,83,9)
    A('v_max3_f32 v10, v80, v81, v82\nv_max_f32 v10, v10, v83')
    A('v_max_f32_dpp v10, v10, v10 row_ror:4 row_mask:0xf bank_mask:0xf\nv_max_f32_dpp v10, v10, v10 row_ror:8 row_mask:0xf bank_mask:0xf')
    g.red_rows('v_max_f32', [10], [12])
    for r in range(4): A(f'v_sub_f32 v{80+r}, v{80+r}, v10')
    for r in range(4): A(f'v_mul_f32 v{80+r}, 0x{LOG2E:x}, v{80+r}')
    for r in range(4): A(f'v_exp_f32 v{80+r}, v{80+r}')
    A('v_add_f32 v11, v80, v81\nv_add_f32 v12, v82, v83\nv_add_f32 v11, v11, v12')
    A('v_add_f32_dpp v11, v11, v11 row_ror:4 row_mask:0xf bank_mask:0xf\nv_add_f32_dpp v11, v11, v11 row_ror:8 row_mask:0xf bank_mask:0xf')
    g.red_rows('v_add_f32', [11], [12])
    A('s_mov_b64 exec, 15\nds_write_b64 v13, v[10:11]\ns_mov_b64 exec, -1\ns_waitcnt lgkmcnt(0)\ns_barrier')
    A(f's_cmp_lg_u32 {sWAVE}, 0\ns_cbranch_scc1 L_STW')
    A('ds_read_b64 v[24:25], v14\ns_waitcnt lgkmcnt(0)')
    A('v_max_f32_dpp v20, v24, v24 row_ror:4 row_mask:0xf bank_mask:0xf\nv_max_f32_dpp v20, v20, v20 row_ror:8 row_mask:0xf bank_mask:0xf')
    g.red_rows('v_max_f32', [20], [12])
    A(f'v_sub_f32 v24, v24, v20\nv_mul_f32 v24, 0x{LOG2E:x}, v24\nv_exp_f32 v24, v24\nv_mul_f32 v21, v24, v25')
    A('v_add_f32_dpp v21, v21, v21 row_ror:4 row_mask:0xf bank_mask:0xf\nv_add_f32_dpp v21, v21, v21 row_ror:8 row_mask:0xf bank_mask:0xf')
    g.red_rows('v_add_f32', [21], [12])
    g.nosent([20,21])
    A('s_mov_b64 exec, 15')
    g.pub(f'buffer_store_dwordx2 v[20:21], v5, {RWL}, s83 offen', True)
    A('s_mov_b64 exec, -1')
    g.stamp(19)
    g.poll([f'buffer_load_dwordx2 v[26:27], v5, {RWL}, s82 offen sc1'], [26,27], 'v12', sleep=o.stsleep)
    A('v_max_f32 v28, v20, v26')
    A(f'v_sub_f32 v24, v20, v28\nv_sub_f32 v26, v26, v28\nv_mul_f32 v24, 0x{LOG2E:x}, v24\nv_mul_f32 v26, 0x{LOG2E:x}, v26\nv_exp_f32 v24, v24\nv_exp_f32 v26, v26')
    A('v_mul_f32 v21, v24, v21\nv_mul_f32 v27, v26, v27\nv_add_f32 v21, v21, v27')
    A('v_rcp_f32 v29, v21\nv_fma_f32 v30, -v21, v29, 1.0\nv_fmac_f32 v29, v30, v29')
    A('ds_write_b64 v15, v[28:29]\ns_waitcnt lgkmcnt(0)')
    A('L_STW:\ns_barrier')
    A('ds_read_b64 v[28:29], v15\ns_waitcnt lgkmcnt(0)')
    A(f'v_sub_f32 v10, v10, v28\nv_mul_f32 v10, 0x{LOG2E:x}, v10\nv_exp_f32 v10, v10\nv_mul_f32 v10, v10, v29')
    for r in range(4): A(f'v_mul_f32 v{80+r}, v{80+r}, v10')
    A('v_cvt_pk_bf16_f32 v8, v80, v81\nv_cvt_pk_bf16_f32 v9, v82, v83')
    g.nosent([8,9])
    g.pub(f'buffer_store_dwordx2 v[8:9], v4, {RWL}, s81 offen', True)
    g.stampw(15,7)
    A('s_barrier')
    A(f's_cmp_eq_u32 {sJ}, 3\ns_cbranch_scc1 L_KW3')
    g.dma_voff('v12','v13',1024,'v14')
    A(f's_lshl_b32 s82, {sG}, 19\ns_lshl_b32 s83, {sWAVE}, 15\ns_add_u32 s82, s82, s83\ns_lshl_b32 s84, {sB}, 7\ns_add_u32 s82, s82, s84\ns_lshl_b32 s83, {sWAVE}, 12')
    blk_dma(RW1, 4, 's82', 1024, 's83', 'v12', 'v13')
    if not o.dnlate:
        A(f's_cmp_eq_u32 {sG}, 7\ns_cbranch_scc1 L_KWD0')
        A(f's_lshl_b32 s82, {sG}, 18\ns_lshl_b32 s83, {sWAVE}, 14\ns_add_u32 s82, s82, s83\ns_add_u32 s82, s82, s84\ns_lshl_b32 s83, {sWAVE}, 11\ns_add_u32 s83, s83, {L_W2}')
        blk_dma(RWD, 2, 's82', 1024, 's83', 'v12', 'v13')
        A('s_waitcnt vmcnt(2)\ns_branch L_KWD1\nL_KWD0:\ns_waitcnt vmcnt(0)\nL_KWD1:\ns_barrier')
    else:
        A('s_waitcnt vmcnt(0)\ns_barrier')
    A(f's_and_b32 s82, s2, 63\ns_and_b32 s84, {sWAVE}, 3')
    A(f's_cmp_ge_u32 {sWAVE}, 12\ns_cbranch_scc1 L_WO\ns_cmp_ge_u32 {sWAVE}, 8\ns_cbranch_scc1 L_DN')
    A(f'v_lshlrev_b32 v4, 4, v1\ns_lshl_b32 s80, {sG}, 13\ns_lshl_b32 s81, {sWAVE}, 10\ns_add_u32 s80, s80, s81\ns_add_u32 s85, s80, {GU}\ns_add_u32 s80, s80, {OO}')
    A(f's_mul_i32 s81, {sWAVE}, 1056\ns_add_u32 s81, s81, {L_ACT}\nv_add_u32 v5, s81, v4')
    A(f'v_bfe_u32 v7, v1, 1, 3\nv_mul_u32_u24 v6, 544, v7\nv_lshrrev_b32 v7, 4, v1\nv_lshl_add_u32 v6, v7, 5, v6\nv_and_b32 v7, 1, v1\nv_lshl_add_u32 v6, v7, 4, v6\ns_lshl_b32 s82, {sWAVE}, 7\ns_add_u32 s82, s82, {L_ACT2}\nv_add_u32 v6, s82, v6\ns_add_u32 s86, s85, 4096')
    g.poll([f'buffer_load_dwordx4 v[16:19], v4, {RWL}, s80 offen sc1'], range(16,20), 'v12', sleep=o.osleep)
    A('ds_write_b128 v5, v[16:19]\ns_waitcnt lgkmcnt(0)\ns_barrier')
    A(f's_cmp_ge_u32 {sWAVE}, 4\ns_cbranch_scc1 L_END\ns_cmp_eq_u32 {sG}, 7\ns_cbranch_scc1 L_END')
    g.poll([f'buffer_load_dwordx4 v[16:19], v4, {RWL}, s85 offen sc1', f'buffer_load_dwordx4 v[20:23], v4, {RWL}, s86 offen sc1'], range(16,24), 'v12')
    for i in range(8): g.unpack(16+i, 32+2*i, 33+2*i)
    for i in range(8): A(f'v_mul_f32 v{32+i}, v{32+i}, v{40+i}')
    for i in range(4): A(f'v_cvt_pk_bf16_f32 v{16+i}, v{32+2*i}, v{33+2*i}')
    A('ds_write_b128 v6, v[16:19]\ns_waitcnt lgkmcnt(0)\ns_barrier')
    A('s_branch L_END')
    A('L_WO:')
    g.tr_addr('v5', 's84', L_W, 'v6', 'v7')
    g.tr_frags('v5', 16, [4*((mp>>1)&3)+2*((mp>>3)^o.dhswap)+(mp&1) for mp in range(16)])
    g.act_addr('v6', L_ACT, 1056, 'v7')
    A(f's_lshl_b32 s83, s82, 11\ns_lshl_b32 s85, s84, 9\ns_add_u32 s83, s83, s85\ns_add_u32 s83, s83, {WP}')
    g.part_store_addr('v4', 's83', 'v7')
    A('s_waitcnt vmcnt(0) lgkmcnt(0)\ns_barrier')
    gemv16(16, 'v6', 8, [80,96])
    g.nosent(range(8,12))
    A(HALF)
    A(f'buffer_store_dwordx4 v[8:11], v4, {RWS}, 0 offen sc1')
    A('s_mov_b64 exec, -1')
    lds_inc(F_C3, 'v7')
    g.stampw(12,11)
    if o.stamps:
        A(f's_cmp_lg_u32 {sG}, 7\ns_cbranch_scc1 L_END\ns_cmp_eq_u32 {sWAVE}, 12\ns_cbranch_scc1 L_DUMP')
    A('s_branch L_END')
    A('L_DN:')
    g.tr_addr('v5', 's84', L_W2, 'v6', 'v7')
    g.act_addr('v6', L_ACT2, 544, 'v7')
    A(f's_lshl_b32 s83, s82, 11\ns_lshl_b32 s85, s84, 9\ns_add_u32 s83, s83, s85\ns_add_u32 s83, s83, {DP}')
    g.part_store_addr('v4', 's83', 'v7')
    A('s_waitcnt vmcnt(0)\ns_barrier')
    A(f's_cmp_eq_u32 {sG}, 7\ns_cbranch_scc1 L_END')
    if o.dnlate:
        A(f's_lshl_b32 s82, {sG}, 18\ns_lshl_b32 s83, s84, 16\ns_add_u32 s82, s82, s83\ns_lshl_b32 s83, {sB}, 7\ns_add_u32 s82, s82, s83\ns_lshl_b32 s83, s84, 13\ns_add_u32 s83, s83, {L_W2}')
        g.lds_spin('v3', F_C3, 4, 'v7', sleep=1)
        blk_dma(RWD, 8, 's82', 1024, 's83', 'v12', 'v13')
        A('s_waitcnt vmcnt(0)')
        lds_inc(F_SUB, 'v7')
        g.lds_spin('v3', F_SUB, 4, 'v7', sleep=0)
    g.tr_frags('v5', 16, range(8))
    A('s_waitcnt lgkmcnt(0)\ns_barrier')
    g.gemv_tile(16, 8, 'v6', 48, 8)
    g.nosent(range(8,12))
    A(HALF)
    A(f'buffer_store_dwordx4 v[8:11], v4, {RWS}, 0 offen sc1')
    A('s_mov_b64 exec, -1')
    g.stampw(8,14)
    if o.stamps:
        A(f's_cmp_eq_u32 {sWAVE}, 8\ns_cbranch_scc1 L_DUMP')
    A('s_branch L_END')
    A('L_KW3:')
    if o.stamps:
        A(f's_cmp_lg_u32 {sG}, 7\ns_cbranch_scc1 L_KW3a\ns_cmp_eq_u32 {sWAVE}, 15\ns_cbranch_scc1 L_DUMP\ns_branch L_END\nL_KW3a:')
    else:
        A(f's_cmp_eq_u32 {sG}, 7\ns_cbranch_scc1 L_END')
    g.dma_voff('v12','v13',3584,'v14')
    A(f's_mul_i32 s82, {sWAVE}, {32*3584}\ns_lshl_b32 s83, {sG}, 2\ns_and_b32 s84, {sB}, 3\ns_add_u32 s83, s83, s84\ns_lshl_b32 s83, s83, 7\ns_add_u32 s82, s82, s83\ns_lshl_b32 s83, {sWAVE}, 12')
    if o.gulate:
        A(f's_cmp_lg_u32 {sWAVE}, 0\ns_cbranch_scc1 L_GUW\ns_lshl_b32 s80, {sPAIR}, 10\ns_add_u32 s80, s80, {OO}\nv_mov_b32 v5, 0')
        g.poll([f'buffer_load_dword v16, v5, {RWL}, s80 offen sc1'], [16], 'v7', sleep=4)
        A('L_GUW:\ns_barrier')
    if o.gutr:
        for i in range(4):
            g.dma(RW1, 'v13' if i&1 else 'v12', 's82', i*8*3584, 's83', i*1024)
            A('s_waitcnt vmcnt(0)')
    else:
        blk_dma(RW1, 4, 's82', 3584, 's83', 'v12', 'v13')
    A('s_waitcnt vmcnt(0)\ns_barrier')
    A(f's_cmp_ge_u32 {sWAVE}, 12\ns_cbranch_scc1 L_GU\ns_cmp_ge_u32 {sWAVE}, 8\ns_cbranch_scc1 L_END')
    A(f'v_lshlrev_b32 v4, 4, v1\ns_lshl_b32 s80, {sWAVE}, 12\ns_add_u32 s80, s80, {MT}\ns_add_u32 s81, s80, {MT2-MT}')
    A(f'ds_read_b32 v13, v3 offset:{F_E}\ns_waitcnt lgkmcnt(0)')
    xpoll([f'buffer_load_dwordx4 v[48:51], v4, {RWS}, s80 offen offset:1024 sc1', f'buffer_load_dwordx4 v[52:55], v4, {RWS}, s80 offen offset:2048 sc1',
           f'buffer_load_dwordx4 v[56:59], v4, {RWS}, s81 offen offset:1024 sc1', f'buffer_load_dwordx4 v[60:63], v4, {RWS}, s81 offen offset:2048 sc1'], 48, 56, 8, 'v13', 'v12', sleep=8)
    for i in range(8): g.unpack(48+i, 32+2*i, 33+2*i)
    for i in range(8): A(f'v_add_f32 v{40+i}, 1.0, v{40+i}')
    for i in range(4): g.rnd2(40+2*i,41+2*i,13)
    A(f's_mul_i32 s81, {sWAVE}, 1056\ns_add_u32 s81, s81, {L_ACT}\nv_add_u32 v5, s81, v4')
    A(f'v_lshrrev_b32 v7, 3, v1\nv_lshlrev_b32 v4, 10, v7\nv_and_b32 v7, 7, v1\nv_lshl_add_u32 v4, v7, 4, v4')
    A(f's_lshl_b32 s80, {sG}, 13\ns_lshl_b32 s81, {sWAVE}, 7\ns_add_u32 s80, s80, s81\ns_add_u32 s80, s80, {X1}')
    g.poll([f'buffer_load_dwordx4 v[8:11], v4, {RWL}, s80 offen sc1'], range(8,12), 'v12', sleep=o.osleep)
    g.ln8(8, 16, 48)
    for i in range(8): A(f'v_mul_f32 v{16+i}, v{16+i}, v{40+i}')
    for i in range(4): g.rnd2(16+2*i,17+2*i,48+i)
    for i in range(8): A(f'v_add_f32 v{16+i}, v{16+i}, v{32+i}')
    for i in range(4): A(f'v_cvt_pk_bf16_f32 v{8+i}, v{16+2*i}, v{17+2*i}')
    A('ds_write_b128 v5, v[8:11]\ns_waitcnt lgkmcnt(0)\ns_barrier')
    A('s_branch L_END')
    A('L_GU:')
    A(f's_and_b32 s84, {sWAVE}, 3')
    g.tr_addr('v5', 's84', L_W, 'v6', 'v7')
    g.tr_frags('v5', 16, range(16))
    g.act_addr('v6', L_ACT, 1056, 'v7')
    A(f's_lshl_b32 s83, {sPAIR}, 10\ns_lshl_b32 s85, s84, 8\ns_add_u32 s83, s83, s85\ns_add_u32 s83, s83, {GU}')
    A('v_and_b32 v7, 15, v1\nv_lshlrev_b32 v4, 5, v7\nv_lshrrev_b32 v7, 4, v1\nv_lshl_add_u32 v4, v7, 3, v4')
    A('s_waitcnt lgkmcnt(0)\ns_barrier')
    gemv16(16, 'v6', 8, [80,96])
    g.rnd2(8,9,12); g.rnd2(10,11,13)
    A(f's_cmp_ge_u32 {sB}, 4\ns_cbranch_scc1 L_T2U')
    g.silu_inplace([8,9,10,11],[16,17,18,19])
    A('v_cvt_pk_bf16_f32 v12, v8, v9\nv_cvt_pk_bf16_f32 v13, v10, v11')
    A('L_T2U:')
    g.nosent([12,13])
    A(HALF)
    g.pub(f'buffer_store_dwordx2 v[12:13], v4, {RWL}, s83 offen', True)
    A('s_mov_b64 exec, -1')
    g.stampw(12,13)
    if o.stamps:
        A(f's_cmp_lg_u32 {sWAVE}, 12\ns_cbranch_scc1 L_END')
    A('L_DUMP:')
    if o.stamps:
        A(f'v_lshlrev_b32 v4, 2, v1\nv_add_u32 v5, {L_STAMP}, v4\nds_read_b32 v6, v5\nv_mov_b32 v7, 0\nv_lshlrev_b32 v4, 3, v1')
        A(f's_add_u32 s80, s58, 0x{STAMP:x}\ns_addc_u32 s81, s59, 0\ns_lshl_b32 s82, s2, 8\ns_add_u32 s80, s80, s82\ns_addc_u32 s81, s81, 0')
        A('s_waitcnt lgkmcnt(0)\ns_mov_b32 exec_hi, 0\nglobal_store_dwordx2 v4, v[6:7], s[80:81]')
        if o.dbgst:
            A('s_mov_b64 exec, -1\nv_mov_b32 v8, 0')
            for i,sl in enumerate(o.dbgst): A(f'v_writelane_b32 v8, {sl}, {i+1}')
            A(f'v_lshlrev_b32 v8, 2, v8\nv_add_u32 v8, {L_STAMP}, v8\nds_read_b32 v9, v8\nds_read_b32 v10, v3 offset:{F_E}\nv_lshlrev_b32 v11, 2, v1\ns_waitcnt lgkmcnt(0)')
            A(f'v_cmp_ne_u32 vcc, 0, v9\nv_sub_u32 v9, v9, v10\nv_add_u32 v9, 1000, v9\ns_and_b32 exec_lo, vcc_lo, 0xfffe\ns_mov_b32 exec_hi, 0\ns_cbranch_execz L_END')
            A(f'buffer_atomic_umax v9, v11, {RDBG}, 0 offen sc1')
    A('L_END:\ns_endpgm\nL_CODE_END:')
    return g.L

def emit(o, fname):
    body = build(o)
    body, n = fix_hazards(body)
    hdr = open('cdna_kernels/'+NAME+'.s.ref').read().split('; Override launch')[0]
    out = hdr + f'; @launch grid=(256,1,1) block=(1024,1,1) lds={LDS_SIZE}\n'
    out += f'.amdgcn_target "amdgcn-amd-amdhsa--gfx950"\n.text\n.globl {NAME}_kernel\n.p2align 8\n.type {NAME}_kernel,@function\n{NAME}_kernel:\n'
    out += '\n'.join(('' if l.endswith(':') else '    ')+l for l in body) + '\n'
    out += f'''.section .rodata,"a"
.p2align 6
.amdhsa_kernel {NAME}_kernel
  .amdhsa_next_free_vgpr 128
  .amdhsa_next_free_sgpr 102
  .amdhsa_accum_offset 128
  .amdhsa_group_segment_fixed_size 0
  .amdhsa_kernarg_size 112
  .amdhsa_user_sgpr_count 2
  .amdhsa_user_sgpr_kernarg_segment_ptr 1
  .amdhsa_system_sgpr_workgroup_id_x 1
  .amdhsa_float_denorm_mode_32 3
  .amdhsa_float_denorm_mode_16_64 3
.end_amdhsa_kernel
'''
    open(fname,'w').write(out)
    print(fname, len(body), 'lines', n, 'nops inserted')

if __name__=='__main__':
    ap=argparse.ArgumentParser()
    ap.add_argument('-o', default='k.s')
    ap.add_argument('--stamps', action='store_true')
    ap.add_argument('--local', action='store_true')
    for k,d in dict(codepf=1,mpdelay=0,mpsleep=2,fldelay=40,hdelay=8,mtearly=0,pgate=12,psleep=4,thr=0,thrw=4,qdelay=8,qsleep=2,stsleep=0,osleep=0,gulate=1,dnlate=1,gutr=0,dhswap=0).items():
        ap.add_argument('--'+k, type=int, default=d)
    ap.add_argument('--dearly', type=lambda x:[int(t) for t in x.split(',') if t], default=[4,5,6,7])
    ap.add_argument('--cearly', type=lambda x:[int(t) for t in x.split(',') if t], default=list(range(16)))
    ap.add_argument('--cpre', type=lambda x:[int(t) for t in x.split(',') if t], default=[])
    ap.add_argument('--dbgst', type=lambda x:[int(t) for t in x.split(',') if t], default=[])
    ap.add_argument('--kmap', default='int')
    o=ap.parse_args()
    emit(o, o.o)
```

```python
import sys, argparse
from asmlib import fix_hazards
NAME='adaLN_cond__sliding_block_cached__swiglu_ffn__decode'

PP=0x000000; OO=0x100000; ST=0x110000; X1=0x120000; GU=0x130000; LREG=0x140000; GOFF=0x180000
QF=0x300000; QF2=0x310000; HH=0x320000; HH2=0x322000; MT=0x400000; MT2=0x420000; WP=0x440000; DP=0x460000
MP=0x480000; MP2=0x4A0000; FL=0x4C0000; FLB=0x4C8000; WS_USED=0x4D0000
STAMP=0x10000000
L_W=0x0; L_W2=0x10000; L_WM=0x10000; L_KS=0x0; KS_SZ=4352
L_OP=0x16000; OPP=2112
L_Y=0x14000; L_H=0x18000
L_ACT=0x20000; L_ACT2=0x18000; L_Q=0x22200; L_FLAGS=0x22800; L_X1S=0x22900; L_STAMP=0x23100; LDS_SIZE=0x23400
F_QREADY=4; F_MODE=8; F_E=12; F_SUB=16; F_Y=20; F_C1=24; F_C3=28; F_CLR=32; F_MOK=36; F_R=40; F_GO=44; F_VGO=48; F_KL=52
sWAVE,sG,sB,sJ,sMODE = 's3','s4','s5','s6','s7'
RK,RV,RWS,RW1,RWM,RC,RX,ROUT,RDBG = 's[8:11]','s[12:15]','s[16:19]','s[20:23]','s[24:27]','s[28:31]','s[60:63]','s[64:67]','s[68:71]'
RWL='s[92:95]'
sTO='s72'
sPAIR='s73'
sW8='s74'
LOG2E=0x3fb8aa3b
SCALE=0x3db504f3

class G:
    def __init__(self, opt):
        self.L=[]; self.o=opt; self.nl=0; self.nstamp=0
    def __call__(self, s):
        for l in s.split('\n'):
            l=l.strip()
            if l: self.L.append(l)
    def lab(self, p='L'):
        self.nl+=1; return f'{p}_{self.nl}'
    def stamp(self, slot, va='v126', vb='v127'):
        if not self.o.stamps: return
        self(f's_memrealtime s[98:99]\ns_waitcnt lgkmcnt(0)\nv_mov_b32 {va}, {L_STAMP+4*slot}\nv_mov_b32 {vb}, s98\nds_write_b32 {va}, {vb}\ns_waitcnt lgkmcnt(0)')
    def stampw(self, wave, slot):
        if not self.o.stamps: return
        l=self.lab('NSW')
        self(f's_cmp_lg_u32 {sWAVE}, {wave}\ns_cbranch_scc1 {l}')
        self.stamp(slot)
        self(f'{l}:')
    def timeout(self, done):
        self(f's_cmp_eq_u32 {sTO}, 0\ns_cbranch_scc1 {done}\ns_sub_u32 {sTO}, {sTO}, 1')
    def lds_spin(self, vflag, off, target, vt, st='s76', sleep=1):
        a=self.lab('SPIN'); d=self.lab('SPD')
        self(f'{a}:\nds_read_b32 {vt}, {vflag} offset:{off}\ns_waitcnt lgkmcnt(0)\nv_readfirstlane_b32 {st}, {vt}\ns_cmp_ge_u32 {st}, {target}\ns_cbranch_scc1 {d}')
        self.timeout(d)
        if sleep: self(f's_sleep {sleep}')
        self(f's_branch {a}\n{d}:')
    def lds_set(self, vflag, off, val, vt):
        self(f'v_mov_b32 {vt}, {val}\nds_write_b32 {vflag}, {vt} offset:{off}')
    def poll(self, loads, regs, vt, sleep=0):
        a=self.lab('POLL'); d=self.lab('PLD')
        self(f'{a}:')
        for l in loads: self(l)
        self('s_waitcnt vmcnt(0)')
        self.chk(regs, vt)
        self(f's_cbranch_vccz {d}')
        self.timeout(d)
        if sleep: self(f's_sleep {sleep}')
        self(f's_branch {a}\n{d}:')
    def chk(self, regs, vt):
        r=list(regs)
        if len(r)==1:
            self(f'v_cmp_eq_u32 vcc, -1, v{r[0]}'); return
        if len(r)==2:
            self(f'v_max_u32 {vt}, v{r[0]}, v{r[1]}')
        else:
            self(f'v_max3_u32 {vt}, v{r[0]}, v{r[1]}, v{r[2]}')
            r=r[3:]
            while len(r)>=2:
                self(f'v_max3_u32 {vt}, {vt}, v{r[0]}, v{r[1]}'); r=r[2:]
            if r: self(f'v_max_u32 {vt}, {vt}, v{r[0]}')
        self(f'v_cmp_eq_u32 vcc, -1, {vt}')
    def nosent(self, regs):
        for r in regs: self(f'v_min_u32 v{r}, -2, v{r}')
    def pub(self, instr, local_ok=False):
        if local_ok:
            a=self.lab('PUBL'); d=self.lab('PUBD')
            self(f's_cmp_eq_u32 {sMODE}, 1\ns_cbranch_scc1 {a}\n{instr} sc1\ns_branch {d}\n{a}:\n{instr}\n{d}:')
        else:
            self(instr+' sc1')
    def unpack(self, src, dlo, dhi):
        self(f'v_lshlrev_b32 v{dlo}, 16, v{src}\nv_and_b32 v{dhi}, 0xffff0000, v{src}')
    def rnd2(self, a, b, t):
        self(f'v_cvt_pk_bf16_f32 v{t}, v{a}, v{b}')
        self.unpack(t, a, b)
    def wave_red(self, op, regs, tmps):
        for mod in ('quad_perm:[1,0,3,2]','quad_perm:[2,3,0,1]','row_half_mirror','row_mirror'):
            for r in regs: self(f'{op}_dpp v{r}, v{r}, v{r} {mod} row_mask:0xf bank_mask:0xf')
        self.red_rows(op, regs, tmps)
    def red_rows(self, op, regs, tmps):
        for sw in ('v_permlane16_swap_b32','v_permlane32_swap_b32'):
            for r,t in zip(regs,tmps): self(f'v_mov_b32 v{t}, v{r}')
            for r,t in zip(regs,tmps): self(f'{sw} v{r}, v{t}')
            for r,t in zip(regs,tmps): self(f'{op} v{r}, v{r}, v{t}')
    def silu_inplace(self, xs, ts):
        self(f's_mov_b32 s77, 0x{(LOG2E|0x80000000):x}')
        for x,t in zip(xs,ts): self(f'v_mul_f32 v{t}, s77, v{x}')
        for x,t in zip(xs,ts): self(f'v_exp_f32 v{t}, v{t}')
        for x,t in zip(xs,ts): self(f'v_add_f32 v{t}, 1.0, v{t}')
        for x,t in zip(xs,ts): self(f'v_rcp_f32 v{t}, v{t}')
        for x,t in zip(xs,ts): self(f'v_mul_f32 v{x}, v{x}, v{t}')
    def silu8(self, src, x0, t0):
        for i in range(4): self.unpack(src+i, x0+2*i, x0+2*i+1)
        self.silu_inplace(list(range(x0,x0+8)), list(range(t0,t0+8)))
        for i in range(4): self(f'v_cvt_pk_bf16_f32 v{src+i}, v{x0+2*i}, v{x0+2*i+1}')
    def ln8(self, src, x0, t0):
        X=list(range(x0,x0+8)); T=list(range(t0,t0+8)); s1,s2,u1,u2=t0+8,t0+9,t0+10,t0+11
        for i in range(4): self.unpack(src+i, x0+2*i, x0+2*i+1)
        self(f'v_readfirstlane_b32 s77, v{x0}')
        for x,t in zip(X,T): self(f'v_subrev_f32 v{t}, s77, v{x}')
        self(f'v_add_f32 v{s1}, v{T[0]}, v{T[1]}\nv_mul_f32 v{s2}, v{T[0]}, v{T[0]}')
        self(f'v_fmac_f32 v{s2}, v{T[1]}, v{T[1]}')
        for t in T[2:]:
            self(f'v_add_f32 v{s1}, v{s1}, v{t}\nv_fmac_f32 v{s2}, v{t}, v{t}')
        self.wave_red('v_add_f32', [s1,s2], [u1,u2])
        self(f'v_mul_f32 v{s1}, 0x3b000000, v{s1}\nv_mul_f32 v{s2}, 0x3b000000, v{s2}')
        self(f'v_fma_f32 v{s2}, -v{s1}, v{s1}, v{s2}\nv_max_f32 v{s2}, 0, v{s2}\nv_add_f32 v{s1}, s77, v{s1}')
        self.rnd2(s1, s2, u1)
        self(f'v_add_f32 v{s2}, 0x3727c5ac, v{s2}')
        self(f'v_cvt_pk_bf16_f32 v{u1}, v{s2}, v{s2}\nv_lshlrev_b32 v{s2}, 16, v{u1}\nv_sqrt_f32 v{s2}, v{s2}')
        self(f'v_cvt_pk_bf16_f32 v{u1}, v{s2}, v{s2}\nv_lshlrev_b32 v{s2}, 16, v{u1}\nv_rcp_f32 v{s2}, v{s2}')
        for x in X: self(f'v_sub_f32 v{x}, v{x}, v{s1}')
        for i in range(4): self.rnd2(X[2*i], X[2*i+1], T[i])
        for x in X: self(f'v_mul_f32 v{x}, v{x}, v{s2}')
        for i in range(4): self.rnd2(X[2*i], X[2*i+1], T[i])
    def dma_voff(self, ve, vo, pitch, vt):
        self(f'v_lshrrev_b32 {vt}, 3, v1\ns_mov_b32 s77, {pitch}\nv_mul_lo_u32 {ve}, {vt}, s77')
        self(f'v_bfe_u32 {vt}, v1, 4, 1\nv_lshlrev_b32 {vt}, 1, {vt}\nv_and_b32 {vo}, 7, v1\nv_xor_b32 {vt}, {vt}, {vo}\nv_lshlrev_b32 {vt}, 4, {vt}\nv_add_u32 {ve}, {ve}, {vt}\nv_xor_b32 {vo}, 64, {ve}')
    def dma(self, srd, voff, s_src, src_imm, s_lds, lds_imm, nt=True):
        self(f's_add_u32 s78, {s_src}, {src_imm}\ns_add_u32 m0, {s_lds}, {lds_imm}')
        self(f'buffer_load_dwordx4 {voff}, {srd}, s78 offen{" nt" if nt else ""} lds')
    def tr_addr(self, vd, s_ct, base, vt, vt2):
        self(f'v_lshrrev_b32 {vt}, 4, v1\nv_lshlrev_b32 {vd}, 10, {vt}\nv_and_b32 {vt}, 1, {vt}\nv_lshlrev_b32 {vt}, 1, {vt}')
        self(f'v_bfe_u32 {vt2}, v1, 3, 1\nv_or_b32 {vt}, {vt}, {vt2}\nv_xor_b32 {vt}, {s_ct}, {vt}\nv_lshl_add_u32 {vd}, {vt}, 5, {vd}')
        self(f'v_bfe_u32 {vt}, v1, 2, 2\nv_lshl_add_u32 {vd}, {vt}, 7, {vd}\nv_and_b32 {vt}, 3, v1\nv_lshl_add_u32 {vd}, {vt}, 3, {vd}\nv_add_u32 {vd}, {base}, {vd}')
    def tr_frags(self, vaddr, r0, msteps):
        for i,m in enumerate(msteps):
            self(f'ds_read_b64_tr_b16 v[{r0+4*i}:{r0+4*i+1}], {vaddr} offset:{m*4096}\nds_read_b64_tr_b16 v[{r0+4*i+2}:{r0+4*i+3}], {vaddr} offset:{m*4096+512}')
    def act_addr(self, vd, base, pitch, vt):
        self(f'v_and_b32 {vt}, 7, v1\nv_mul_u32_u24 {vd}, {pitch}, {vt}\nv_lshrrev_b32 {vt}, 4, v1\nv_lshl_add_u32 {vd}, {vt}, 4, {vd}\nv_add_u32 {vd}, {base}, {vd}')
    def gemv_tile(self, wf0, nk, vact, a0, d0):
        for m in range(nk): self(f'ds_read_b128 v[{a0+4*m}:{a0+4*m+3}], {vact} offset:{m*64}')
        for m in range(nk):
            self(f's_waitcnt lgkmcnt({min(15,nk-1-m)})')
            c = '0' if m==0 else f'v[{d0}:{d0+3}]'
            self(f'v_mfma_f32_16x16x32_bf16 v[{d0}:{d0+3}], v[{wf0+4*m}:{wf0+4*m+3}], v[{a0+4*m}:{a0+4*m+3}], {c}')
    def part_store_addr(self, vd, s_base, vt):
        self(f'v_and_b32 {vt}, 15, v1\nv_lshlrev_b32 {vd}, 6, {vt}\nv_lshrrev_b32 {vt}, 4, v1\nv_lshl_add_u32 {vd}, {vt}, 4, {vd}\nv_add_u32 {vd}, {s_base}, {vd}')

def build(o):
    g=G(o); A=g
    HALF='s_mov_b32 exec_lo, 0x00ff00ff\ns_mov_b32 exec_hi, 0x00ff00ff'
    HI8='s_mov_b32 vcc_lo, 0xff00ff00\ns_mov_b32 vcc_hi, 0xff00ff00'
    SENT='v_mov_b32 v8, -1\nv_mov_b32 v9, -1\nv_mov_b32 v10, -1\nv_mov_b32 v11, -1\nv_lshlrev_b32 v5, 4, v1'
    def lds_inc(off, vt):
        A(f'v_mov_b32 {vt}, 1\ns_mov_b64 exec, 1\nds_add_u32 v3, {vt} offset:{off}\ns_mov_b64 exec, -1')
    def xor_chk(a0, b0, n, vE, vt):
        for i in range(n): A(f'v_xor_b32 v{b0+i}, v{b0+i}, v{a0+i}')
        A(f'v_xor_b32 {vt}, v{b0}, {vE}')
        for i in range(1,n): A(f'v_bitop3_b32 {vt}, {vt}, v{b0+i}, {vE} bitop3:0xf6')
        A(f'v_cmp_ne_u32 vcc, 0, {vt}')
    def xpoll(loads, a0, b0, n, vE, vt, sleep=0):
        a=g.lab('XP'); d=g.lab('XPD')
        A(f'{a}:')
        for l in loads: A(l)
        A('s_waitcnt vmcnt(0)')
        xor_chk(a0,b0,n,vE,vt)
        A(f's_cbranch_vccz {d}')
        g.timeout(d)
        if sleep: A(f's_sleep {sleep}')
        A(f's_branch {a}\n{d}:')
    def get_E(vd): g.lds_spin('v3', F_E, 1, vd, sleep=1)
    def pair_prep(vaddr, delta, vE, vEm, vt):
        A(HI8)
        A(f'v_mov_b32 {vt}, {delta}\nv_cndmask_b32 {vt}, 0, {vt}, vcc\nv_add_u32 {vaddr}, {vaddr}, {vt}\nv_cndmask_b32 {vEm}, 0, {vE}, vcc')
    def get_mode(vt):
        g.lds_spin('v3', F_MOK, 1, vt, sleep=1)
        A(f'ds_read_b32 {vt}, v3 offset:{F_MODE}\ns_waitcnt lgkmcnt(0)')
        A(f'v_readfirstlane_b32 {sMODE}, {vt}\ns_cmp_eq_u32 {sMODE}, 1\ns_cselect_b64 s[92:93], s[58:59], s[100:101]')
    def blk_dma(srd, n, s_src, pitch, s_lds, ve, vo):
        for i in range(n): g.dma(srd, vo if i&1 else ve, s_src, i*8*pitch, s_lds, i*1024)
    def gemv16(wf, vact, d, ab, order=None):
        def rd(gq):
            for m in range(4): A(f'ds_read_b128 v[{ab[gq&1]+4*m}:{ab[gq&1]+4*m+3}], {vact} offset:{(4*gq+m)*64}')
        rd(0); rd(1)
        for gq in range(4):
            for m in range(4):
                A(f's_waitcnt lgkmcnt({(4 if gq<3 else 0)+3-m})')
                c='0' if (gq==0 and m==0) else f'v[{d}:{d+3}]'
                A(f'v_mfma_f32_16x16x32_bf16 v[{d}:{d+3}], v[{wf+16*gq+4*m}:{wf+16*gq+4*m+3}], v[{ab[gq&1]+4*m}:{ab[gq&1]+4*m+3}], {c}')
            if gq<2: rd(gq+2)
    def clear_all_local(fl):
        A(SENT)
        A(f's_cmp_ge_u32 {sJ}, 2\ns_cbranch_scc1 L_CAK')
        A(f's_lshl_b32 s80, {sPAIR}, 10\ns_lshl_b32 s81, {sJ}, 9\ns_add_u32 s81, s81, s80\ns_add_u32 s81, s81, {OO}\ns_mov_b32 exec_hi, 0')
        A(f'buffer_store_dwordx4 v[8:11], v5, {RWL}, s81 offen{fl}\ns_mov_b64 exec, -1')
        A(f's_cmp_lg_u32 {sJ}, 0\ns_cbranch_scc1 L_CAD\ns_add_u32 s80, s80, {X1}')
        A(f'buffer_store_dwordx4 v[8:11], v5, {RWL}, s80 offen{fl}\ns_branch L_CAD')
        A('L_CAK:')
        A(f's_lshl_b32 s80, {sPAIR}, 14\ns_and_b32 s81, {sJ}, 1\ns_lshl_b32 s82, s81, 13\ns_add_u32 s80, s80, s82')
        for i in range(8):
            if i==4: A('s_add_u32 s80, s80, 4096')
            A(f'buffer_store_dwordx4 v[8:11], v5, {RWL}, s80 offen offset:{(i%4)*1024}{fl}')
        A(f's_lshl_b32 s80, {sPAIR}, 10\ns_lshl_b32 s82, s81, 9\ns_add_u32 s82, s82, s80\ns_add_u32 s82, s82, {ST}\ns_mov_b32 exec_hi, 0')
        A(f'buffer_store_dwordx4 v[8:11], v5, {RWL}, s82 offen{fl}\ns_mov_b64 exec, -1')
        A(f's_cmp_lg_u32 {sJ}, 3\ns_cbranch_scc1 L_CAD\ns_add_u32 s80, s80, {GU}')
        A(f'buffer_store_dwordx4 v[8:11], v5, {RWL}, s80 offen{fl}')
        A('L_CAD:')

    A(f"""s_cmp_ge_u32 s2, 256
s_cbranch_scc1 L_END
s_load_dwordx16 s[32:47], s[0:1], 0
s_load_dwordx8 s[48:55], s[0:1], 64
s_load_dwordx4 s[56:59], s[0:1], 96
v_and_b32 v1, 63, v0
v_lshrrev_b32 v2, 6, v0
v_readfirstlane_b32 {sWAVE}, v2
s_and_b32 {sG}, s2, 7
s_bfe_u32 {sB}, s2, 0x30003
s_lshr_b32 {sJ}, s2, 6
s_mov_b32 {sMODE}, 0
s_mov_b32 {sTO}, 0x200000
s_lshl_b32 {sPAIR}, {sG}, 3
s_add_u32 {sPAIR}, {sPAIR}, {sB}
s_and_b32 {sW8}, {sWAVE}, 7
v_mov_b32 v3, {L_FLAGS}
v_lshl_add_u32 v4, v1, 2, v3
v_mov_b32 v5, 0
s_cmp_lg_u32 {sWAVE}, 0
s_cbranch_scc1 L_NOINIT
ds_write_b32 v4, v5""")
    if o.stamps: A(f'ds_write_b32 v4, v5 offset:{L_STAMP-L_FLAGS}')
    A(f"""L_NOINIT:
s_lshl_b32 s76, {sB}, 24
s_lshl_b32 s77, {sG}, 21
s_add_u32 s76, s76, s77
s_add_u32 s76, s76, 0x180000
s_mov_b32 s10, 0x80000
s_mov_b32 s11, 0x20000
s_mov_b32 s14, 0x1c0000
s_mov_b32 s15, 0x20000
s_mov_b32 s18, {WS_USED}
s_mov_b32 s19, 0x20000
s_mov_b32 s26, 0x300000
s_mov_b32 s27, 0x20000
s_mov_b32 s30, 0x2000
s_mov_b32 s31, 0x20000
s_mov_b32 s62, 0x2000
s_mov_b32 s63, 0x20000
s_mov_b32 s66, 0x2000
s_mov_b32 s67, 0x20000
s_mov_b32 s70, 0x100
s_mov_b32 s71, 0x20000
s_mov_b32 s22, 0x400000
s_mov_b32 s23, 0x20000
s_mov_b32 s94, {LREG}
s_mov_b32 s95, 0x20000
s_cmp_eq_u32 {sJ}, 3
s_cselect_b32 s22, 0x1c0000, s22
s_waitcnt lgkmcnt(0)
s_cmp_ge_u32 {sJ}, 2
s_cselect_b64 s[8:9], s[34:35], s[36:37]
s_add_u32 s8, s8, s76
s_addc_u32 s9, s9, 0
s_mov_b64 s[12:13], s[48:49]
s_mov_b64 s[16:17], s[58:59]
s_mov_b64 s[24:25], s[52:53]
s_mov_b64 s[28:29], s[50:51]
s_mov_b64 s[60:61], s[32:33]
s_mov_b64 s[64:65], s[54:55]
s_mov_b64 s[68:69], s[56:57]
s_mov_b64 s[20:21], s[38:39]
s_cmp_eq_u32 {sJ}, 2
s_cselect_b64 s[20:21], s[40:41], s[20:21]
s_cmp_lt_u32 {sB}, 4
s_cselect_b64 s[76:77], s[44:45], s[46:47]
s_cmp_eq_u32 {sJ}, 3
s_cselect_b64 s[20:21], s[76:77], s[20:21]
s_mov_b64 s[92:93], s[58:59]
s_add_u32 s100, s58, {GOFF}
s_addc_u32 s101, s59, 0""")
    RKV=RK; RWD=RV
    A(f's_cmp_lg_u32 s2, 0\ns_cbranch_scc1 L_NOE\ns_cmp_lg_u32 {sWAVE}, 0\ns_cbranch_scc1 L_NOE')
    A(f's_memrealtime s[96:97]\ns_waitcnt lgkmcnt(0)\ns_or_b32 s76, s96, 1\nv_mov_b32 v5, s76\nv_lshlrev_b32 v6, 7, v1\ns_mov_b64 exec, 3\nbuffer_store_dword v5, v6, {RDBG}, 0 offen sc1\ns_mov_b64 exec, -1')
    A('L_NOE:')
    A(f's_cmp_ge_u32 {sJ}, 2\ns_cbranch_scc1 L_PREK')
    A(f's_cmp_eq_u32 {sWAVE}, 13\ns_cbranch_scc1 L_PRE13\ns_cmp_eq_u32 {sWAVE}, 15\ns_cbranch_scc1 L_PREV15')
    A(f's_cmp_lg_u32 {sJ}, 0\ns_cbranch_scc1 L_B0\ns_cmp_ge_u32 {sWAVE}, 12\ns_cbranch_scc1 L_B0\ns_cmp_ge_u32 {sWAVE}, 8\ns_cbranch_scc1 L_PREC')
    A(f's_and_b32 s80, s2, 15\ns_lshr_b32 s81, s2, 4')
    g.dma_voff('v12','v13',6144,'v14')
    A(f's_lshl_b32 s84, s81, 7\ns_lshl_b32 s85, {sWAVE}, 4\ns_add_u32 s84, s84, s85\ns_mul_i32 s84, s84, 6144\ns_lshl_b32 s85, s80, 7\ns_add_u32 s84, s84, s85')
    A(f's_lshl_b32 s85, {sWAVE}, 11\ns_add_u32 s85, s85, {L_WM}')
    blk_dma(RWM, 2, 's84', 6144, 's85', 'v12', 'v13')
    A(f's_cmp_lt_u32 {sWAVE}, 4\ns_cbranch_scc1 L_B0')
    A(f'v_lshlrev_b32 v4, 4, v1\ns_and_b32 s87, {sWAVE}, 3\ns_lshl_b32 s87, s87, 11')
    A(f'buffer_load_dwordx4 v[88:91], v4, {RX}, s87 offen\nbuffer_load_dwordx4 v[92:95], v4, {RX}, s87 offen offset:1024\ns_branch L_B0')
    A('L_PREC:')
    A(f'v_lshlrev_b32 v4, 4, v1\ns_lshl_b32 s83, {sW8}, 11')
    A(f'buffer_load_dwordx4 v[104:107], v4, {RC}, s83 offen\nbuffer_load_dwordx4 v[100:103], v4, {RC}, s83 offen offset:1024\ns_branch L_B0')
    A('L_PREV15:')
    A(SENT)
    A(f's_lshl_b32 s80, {sPAIR}, 10\ns_lshl_b32 s81, {sJ}, 9\ns_add_u32 s81, s81, s80\ns_add_u32 s81, s81, {OO}\ns_mov_b32 exec_hi, 0')
    A(f'buffer_store_dwordx4 v[8:11], v5, {RWL}, s81 offen\ns_mov_b64 exec, -1')
    A(f's_cmp_lg_u32 {sJ}, 0\ns_cbranch_scc1 L_B0\ns_add_u32 s80, s80, {X1}')
    A(f'buffer_store_dwordx4 v[8:11], v5, {RWL}, s80 offen\ns_branch L_B0')
    A('L_PREK:')
    A(f's_cmp_lt_u32 {sWAVE}, 8\ns_cbranch_scc1 L_B0\ns_cmp_eq_u32 {sWAVE}, 14\ns_cbranch_scc1 L_B0\ns_cmp_eq_u32 {sWAVE}, 13\ns_cbranch_scc1 L_PRE13')
    A(SENT)
    A(f's_and_b32 s81, {sJ}, 1\ns_and_b32 s83, s2, 63\ns_lshl_b32 s83, s83, 11')
    A(f's_cmp_ge_u32 {sWAVE}, 12\ns_cbranch_scc1 L_PREK2')
    A(f's_lshl_b32 s80, {sPAIR}, 14\ns_lshl_b32 s82, s81, 13\ns_add_u32 s80, s80, s82\ns_lshl_b32 s82, {sW8}, 11\ns_add_u32 s80, s80, s82')
    A(f'buffer_store_dwordx4 v[8:11], v5, {RWL}, s80 offen\nbuffer_store_dwordx4 v[8:11], v5, {RWL}, s80 offen offset:1024\ns_branch L_B0')
    A('L_PREK2:')
    A(f's_cmp_eq_u32 {sWAVE}, 15\ns_cbranch_scc1 L_PREK3')
    A(f's_lshl_b32 s80, {sPAIR}, 10\ns_lshl_b32 s82, s81, 9\ns_add_u32 s82, s82, s80\ns_add_u32 s82, s82, {ST}\ns_mov_b32 exec_hi, 0')
    A(f'buffer_store_dwordx4 v[8:11], v5, {RWL}, s82 offen\ns_mov_b64 exec, -1')
    A(f's_cmp_eq_u32 {sJ}, 2\ns_cbranch_scc1 L_PREK4\ns_add_u32 s80, s80, {GU}')
    A(f'buffer_store_dwordx4 v[8:11], v5, {RWL}, s80 offen\ns_branch L_B0')
    A(f'L_PREK4:\ns_add_u32 s80, s83, {WP}\ns_branch L_PREK5')
    A(f'L_PREK3:\ns_cmp_lg_u32 {sJ}, 2\ns_cbranch_scc1 L_B0\ns_add_u32 s80, s83, {DP}')
    A(f'L_PREK5:\nbuffer_store_dwordx4 v[8:11], v5, {RWS}, s80 offen sc1\nbuffer_store_dwordx4 v[8:11], v5, {RWS}, s80 offen offset:1024 sc1\ns_branch L_B0')
    A('L_PRE13:')
    if o.codepf:
        A(f's_getpc_b64 s[80:81]\nL_PC:\ns_sub_u32 s80, s80, L_PC-{NAME}_kernel\ns_subb_u32 s81, s81, 0')
        A(f's_lshr_b32 s82, s2, 3\ns_lshl_b32 s82, s82, 10\nv_lshlrev_b32 v4, 4, v1\nv_add_u32 v4, s82, v4\nv_min_u32 v4, L_CODE_END-{NAME}_kernel-16, v4')
        A('global_load_dwordx4 v[100:103], v4, s[80:81]')
    A('L_B0:\ns_barrier')
    g.stampw(0,0)
    A(f's_cmp_eq_u32 {sWAVE}, 14\ns_cbranch_scc1 L_EP')
    A(f's_cmp_eq_u32 {sWAVE}, 15\ns_cbranch_scc1 L_SYNC')
    A(f's_cmp_eq_u32 {sJ}, 0\ns_cbranch_scc1 L_TC\ns_cmp_eq_u32 {sJ}, 1\ns_cbranch_scc1 L_TD')
    A(f's_cmp_lt_u32 {sWAVE}, 8\ns_cbranch_scc1 L_KPATH\ns_cmp_eq_u32 {sWAVE}, 13\ns_cbranch_scc1 L_KPATH')
    A('s_waitcnt vmcnt(0)')
    lds_inc(F_CLR, 'v5')
    A('s_branch L_KPATH')
    A('L_SYNC:\ns_setprio 3\ns_waitcnt vmcnt(0)')
    get_E('v12')
    A(f's_cmp_lt_u32 {sJ}, 2\ns_cbranch_scc1 L_SY1')
    g.lds_spin('v3', F_CLR, 5, 'v7', sleep=1)
    A('L_SY1:')
    A(f's_getreg_b32 s83, hwreg(HW_REG_XCC_ID)\nv_mov_b32 v13, s83\ns_lshl_b32 s84, s2, 7\ns_add_u32 s84, s84, {FL}\nv_mov_b32 v14, s84')
    A(f's_mov_b64 exec, 1\nbuffer_store_dwordx2 v[12:13], v14, {RWS}, 0 offen sc1\ns_mov_b64 exec, -1')
    g.stamp(4)
    A(f's_setprio 0\ns_cmp_ge_u32 {sJ}, 2\ns_cbranch_scc1 L_KPATH\ns_branch L_VWAIT')
    A('L_EP:\ns_setprio 3')
    A(f's_and_b32 s80, s2, 1\ns_lshl_b32 s80, s80, 7\nv_mov_b32 v9, s80\nL_EPL:\nbuffer_load_dword v12, v9, {RDBG}, 0 offen sc1\ns_waitcnt vmcnt(0)\nv_cmp_eq_u32 vcc, 0, v12\ns_cbranch_vccz L_EPD')
    g.timeout('L_EPD')
    A(f's_branch L_EPL\nL_EPD:\nds_write_b32 v3, v12 offset:{F_E}')
    g.stamp(24)
    A(f's_setprio 0\ns_cmp_ge_u32 {sJ}, 2\ns_cbranch_scc1 L_KPATH')
    A(f's_setprio 3\ns_sleep {o.fldelay}\ns_mov_b32 s79, 0')
    A('L_FLAGS:')
    A(f'v_and_b32 v7, 31, v1\nv_lshlrev_b32 v14, 3, v7\nv_add_u32 v14, {sG}, v14\nv_lshrrev_b32 v15, 3, v7\nv_lshlrev_b32 v15, 6, v15\nv_and_b32 v7, 7, v1\nv_add_u32 v15, v15, v7\ns_lshl_b32 s84, {sB}, 3\nv_add_u32 v15, s84, v15')
    A(f's_mov_b32 vcc_lo, 0\ns_mov_b32 vcc_hi, -1\nv_cndmask_b32 v15, v14, v15, vcc\nv_lshlrev_b32 v15, 7, v15\nv_add_u32 v15, {FL}, v15')
    A(f'L_FLP:\nbuffer_load_dwordx2 v[96:97], v15, {RWS}, 0 offen sc1\ns_waitcnt vmcnt(0)\nv_cmp_ne_u32 vcc, v96, v12\ns_cbranch_vccz L_FLD')
    g.timeout('L_FLD')
    A('s_sleep 8\ns_branch L_FLP\nL_FLD:')
    A('s_getreg_b32 s83, hwreg(HW_REG_XCC_ID)')
    A(f'v_cmp_ne_u32 vcc, s83, v97\ns_cmp_eq_u32 vcc_lo, 0\ns_cselect_b32 s84, {1 if o.local else 0}, 0\nv_mov_b32 v14, s84\ns_cmp_eq_u32 s84, 1\ns_cbranch_scc1 L_FLOK')
    A('s_mov_b64 s[92:93], s[100:101]')
    clear_all_local(' sc1')
    A(f's_lshl_b32 s80, s2, 7\ns_add_u32 s80, s80, {FLB}\nv_mov_b32 v5, s80\ns_mov_b32 s80, {FLB-FL}\ns_waitcnt vmcnt(0)')
    A(f's_mov_b64 exec, 1\nbuffer_store_dword v12, v5, {RWS}, 0 offen sc1\ns_mov_b64 exec, -1')
    A(f'L_FBP:\nbuffer_load_dword v8, v15, {RWS}, s80 offen sc1\ns_waitcnt vmcnt(0)\nv_cmp_ne_u32 vcc, v8, v12\ns_cmp_eq_u32 vcc_lo, 0\ns_cbranch_scc1 L_FLOK')
    g.timeout('L_FLOK')
    A('s_sleep 4\ns_branch L_FBP')
    A(f'L_FLOK:\nds_write_b32 v3, v14 offset:{F_MODE}\ns_waitcnt lgkmcnt(0)')
    g.lds_set('v3', F_MOK, 1, 'v7')
    g.stamp(5)
    A('s_cmp_eq_u32 s79, 1\ns_cbranch_scc1 L_KFLB\ns_setprio 0\ns_branch L_VWAIT')

    A('L_TC:')
    A(f's_cmp_ge_u32 {sWAVE}, 12\ns_cbranch_scc1 L_C_MT\ns_cmp_ge_u32 {sWAVE}, 8\ns_cbranch_scc1 L_C_S\ns_cmp_ge_u32 {sWAVE}, 4\ns_cbranch_scc1 L_C_LN')
    g.tr_addr('v5', sWAVE, L_WM, 'v6', 'v7')
    A(f's_lshl_b32 s84, s81, 8\ns_add_u32 s84, s84, {L_ACT}')
    g.act_addr('v6', 's84', 1056, 'v7')
    A(f's_lshl_b32 s86, s2, 11\ns_lshl_b32 s84, {sWAVE}, 9\ns_add_u32 s86, s86, s84\ns_add_u32 s86, s86, {MP}')
    A('v_and_b32 v7, 7, v1\nv_lshlrev_b32 v4, 6, v7\nv_lshrrev_b32 v7, 4, v1\nv_lshl_add_u32 v4, v7, 4, v4')
    A('s_waitcnt vmcnt(0)')
    lds_inc(F_C1, 'v7')
    get_E('v12')
    pair_prep('v4', MP2-MP, 'v12', 'v12', 'v7')
    g.lds_spin('v3', F_C1, 12, 'v7', sleep=0)
    g.tr_frags('v5', 48, range(4))
    g.gemv_tile(48, 4, 'v6', 64, 80)
    for r in range(4): A(f'v_xor_b32 v{80+r}, v{80+r}, v12')
    A(f'buffer_store_dwordx4 v[80:83], v4, {RWS}, s86 offen sc1')
    lds_inc(F_C1, 'v7')
    g.stampw(0,1)
    A('s_branch L_VWAIT')
    A('L_C_LN:')
    A('s_waitcnt vmcnt(2)')
    lds_inc(F_C1, 'v5')
    A('s_waitcnt vmcnt(0)')
    A(f's_add_u32 s87, s87, {L_Y}\nv_add_u32 v4, s87, v4')
    for k,src in enumerate((88,92)):
        g.ln8(src, 48, 56)
        for i in range(4): A(f'v_cvt_pk_bf16_f32 v{src+i}, v{48+2*i}, v{49+2*i}')
        A(f'ds_write_b128 v4, v[{src}:{src+3}] offset:{k*1024}')
    A('s_waitcnt lgkmcnt(0)')
    lds_inc(F_Y, 'v5')
    A('s_branch L_VWAIT')
    A('L_C_S:')
    A(f's_mul_i32 s85, {sW8}, 2112\ns_add_u32 s85, s85, {L_ACT}\nv_add_u32 v5, s85, v4')
    A('s_waitcnt vmcnt(1)')
    g.silu8(104, 16, 24)
    A('ds_write_b128 v5, v[104:107]\ns_waitcnt vmcnt(0)')
    g.silu8(100, 16, 24)
    A('ds_write_b128 v5, v[100:103] offset:1056\ns_waitcnt lgkmcnt(0)')
    lds_inc(F_C1, 'v5')
    A(f's_cmp_lg_u32 {sWAVE}, 8\ns_cbranch_scc1 L_VWAIT')
    A('s_setprio 3')
    get_E('v15')
    A('v_lshrrev_b32 v7, 4, v1\nv_lshlrev_b32 v5, 14, v7\nv_bfe_u32 v6, v1, 1, 3\nv_lshl_add_u32 v5, v6, 6, v5\nv_and_b32 v7, 1, v1\nv_lshl_add_u32 v5, v7, 4, v5')
    A(f's_lshr_b32 s80, s2, 1\ns_lshl_b32 s80, s80, 9\ns_and_b32 s81, s2, 1\ns_lshl_b32 s81, s81, 5\ns_add_u32 s80, s80, s81\ns_add_u32 s80, s80, {MP}\ns_add_u32 s81, s80, 0x10000\ns_add_u32 s82, s80, {MP2-MP}\ns_add_u32 s83, s81, {MP2-MP}')
    A(f'v_lshlrev_b32 v6, 10, v6\nv_lshl_add_u32 v6, v7, 3, v6\ns_lshl_b32 s84, s2, 4\ns_add_u32 s84, s84, {L_Y}\nv_add_u32 v6, s84, v6')
    A(f'v_and_b32 v7, 15, v1\nv_lshlrev_b32 v8, 3, v7\nv_bfe_u32 v7, v1, 4, 1\nv_mul_u32_u24 v9, {HH2-HH}, v7\nv_add_u32 v8, v8, v9\nv_mul_lo_u32 v9, v7, v15\ns_lshl_b32 s84, s2, 7\ns_add_u32 s84, s84, {HH}')
    g.lds_spin('v3', F_Y, 4, 'v7', sleep=1)
    A('ds_read_b64 v[10:11], v6')
    g.lds_spin('v3', F_C1, 16, 'v7', sleep=1)
    if o.mpdelay: A(f's_sleep {o.mpdelay}')
    xpoll([f'buffer_load_dwordx4 v[{16+4*k}:{19+4*k}], v5, {RWS}, s{80+k} offen sc1' for k in range(4)], 16, 24, 8, 'v15', 'v7', sleep=o.mpsleep)
    for r in range(4): A(f'v_add_f32 v{16+r}, v{16+r}, v{20+r}')
    for r in range(4): A(f'v_mov_b32 v{20+r}, v{16+r}')
    for r in range(4): A(f'v_permlane32_swap_b32 v{16+r}, v{20+r}')
    for r in range(4): A(f'v_add_f32 v{16+r}, v{16+r}, v{20+r}')
    g.rnd2(16,17,12); g.rnd2(18,19,13)
    for r in range(4): A(f'v_mov_b32 v{20+r}, v{16+r}')
    for r in range(4): A(f'v_permlane16_swap_b32 v{16+r}, v{20+r}')
    for r in range(4): A(f'v_add_f32 v{20+r}, 1.0, v{20+r}')
    g.rnd2(20,21,12); g.rnd2(22,23,13)
    g.unpack(10,24,25); g.unpack(11,26,27)
    for r in range(4): A(f'v_mul_f32 v{24+r}, v{24+r}, v{20+r}')
    g.rnd2(24,25,12); g.rnd2(26,27,13)
    for r in range(4): A(f'v_add_f32 v{24+r}, v{24+r}, v{16+r}')
    A('v_cvt_pk_bf16_f32 v10, v24, v25\nv_cvt_pk_bf16_f32 v11, v26, v27\nv_xor_b32 v10, v10, v9\nv_xor_b32 v11, v11, v9\ns_mov_b32 exec_hi, 0')
    A(f'buffer_store_dwordx2 v[10:11], v8, {RWS}, s84 offen sc1\ns_mov_b64 exec, -1')
    g.lds_set('v3', F_R, 1, 'v7')
    A('s_setprio 0')
    g.stamp(25)
    A('s_branch L_VWAIT')
    A('L_C_MT:')
    A(f'v_lshrrev_b32 v7, 2, v1\nv_mul_u32_u24 v12, 6144, v7\nv_and_b32 v7, 3, v1\nv_lshl_add_u32 v12, v7, 4, v12')
    A(f's_and_b32 s85, {sWAVE}, 1\ns_mul_i32 s88, s85, {256*6144}\ns_lshl_b32 s89, {sPAIR}, 6\ns_add_u32 s88, s88, s89\ns_add_u32 s88, s88, 2048\ns_lshl_b32 s89, s85, 14')
    A(f'v_lshrrev_b32 v7, 4, v1\nv_lshlrev_b32 v6, 9, v7\nv_bfe_u32 v7, v1, 2, 2\nv_lshl_add_u32 v6, v7, 6, v6\nv_and_b32 v7, 3, v1\nv_lshl_add_u32 v6, v7, 3, v6\ns_lshl_b32 s84, s85, 5\nv_add_u32 v6, s84, v6')
    g.act_addr('v8', L_ACT, 1056, 'v7')
    A(f'v_and_b32 v7, 7, v1\nv_lshlrev_b32 v9, 12, v7\nv_lshrrev_b32 v7, 4, v1\nv_lshl_add_u32 v9, v7, 3, v9\ns_lshl_b32 s86, {sPAIR}, 6\ns_add_u32 s86, s86, s84\ns_add_u32 s86, s86, {MT}')
    if o.mtearly==0: g.lds_spin('v3', F_R, 1, 'v7', sleep=2)
    A('s_setprio 1')
    for i in range(16): g.dma(RWM, 'v12', 's88', i*16*6144, 's89', L_W+i*1024)
    lds_inc(F_GO, 'v7')
    get_E('v10')
    pair_prep('v9', MT2-MT, 'v10', 'v10', 'v7')
    A('s_waitcnt vmcnt(0)')
    lds_inc(F_SUB, 'v7')
    g.lds_spin('v3', F_SUB, 2, 'v7', sleep=1)
    g.lds_spin('v3', F_C1, 12, 'v7', sleep=1)
    def rdm(gq):
        for m in range(4):
            mm=4*gq+m; o_=16*(gq&1)+4*m
            A(f'ds_read_b64_tr_b16 v[{32+o_}:{33+o_}], v6 offset:{mm*2048}\nds_read_b64_tr_b16 v[{34+o_}:{35+o_}], v6 offset:{mm*2048+256}')
            A(f'ds_read_b128 v[{64+o_}:{67+o_}], v8 offset:{mm*64}')
    rdm(0)
    for gq in range(4):
        if gq<3: rdm(gq+1); A('s_waitcnt lgkmcnt(12)')
        else: A('s_waitcnt lgkmcnt(0)')
        for m in range(4):
            o_=16*(gq&1)+4*m
            c='0' if (gq==0 and m==0) else 'v[12:15]'
            A(f'v_mfma_f32_16x16x32_bf16 v[12:15], v[{32+o_}:{35+o_}], v[{64+o_}:{67+o_}], {c}')
    A('v_cvt_pk_bf16_f32 v100, v12, v13\nv_cvt_pk_bf16_f32 v101, v14, v15\nv_xor_b32 v100, v100, v10\nv_xor_b32 v101, v101, v10')
    A(f'buffer_store_dwordx2 v[100:101], v9, {RWS}, s86 offen sc1\ns_setprio 0')
    A('s_branch L_VW_C')

    A('L_TD:')
    A(f's_cmp_ge_u32 {sWAVE}, 12\ns_cbranch_scc1 L_VWAIT\ns_cmp_ge_u32 {sWAVE}, 8\ns_cbranch_scc1 L_D_H')
    g.dma_voff('v12','v13',8192,'v14')
    A(f's_lshl_b32 s85, {sWAVE}, 13\ns_lshl_b32 s84, {sWAVE}, 19\ns_lshl_b32 s86, {sPAIR}, 7\ns_add_u32 s84, s84, s86')
    blk_dma(RW1, 8, 's84', 8192, 's85', 'v12', 'v13')
    lds_inc(F_GO, 'v7')
    A('s_waitcnt vmcnt(0)')
    lds_inc(F_SUB, 'v7')
    A(f's_cmp_ge_u32 {sWAVE}, 4\ns_cbranch_scc1 L_VWAIT')
    g.tr_addr('v5', sWAVE, L_W, 'v6', 'v7')
    g.act_addr('v6', L_H, 1056, 'v7')
    A(f's_lshl_b32 s86, {sPAIR}, 10\ns_lshl_b32 s84, {sWAVE}, 5\ns_add_u32 s86, s86, s84\ns_add_u32 s86, s86, {QF}')
    A(f'v_and_b32 v7, 7, v1\nv_lshlrev_b32 v4, 7, v7\nv_lshrrev_b32 v7, 4, v1\nv_lshl_add_u32 v4, v7, 3, v4')
    get_E('v12')
    pair_prep('v4', QF2-QF, 'v12', 'v12', 'v7')
    g.lds_spin('v3', F_SUB, 8, 'v7', sleep=1)
    g.tr_frags('v5', 16, range(16))
    g.stampw(0,16)
    get_mode('v7')
    A('s_setprio 3')
    g.lds_spin('v3', F_C3, 4, 'v7', sleep=0)
    gemv16(16, 'v6', 8, [80,96])
    A('v_cvt_pk_bf16_f32 v14, v8, v9\nv_cvt_pk_bf16_f32 v15, v10, v11\nv_xor_b32 v14, v14, v12\nv_xor_b32 v15, v15, v12')
    g.pub(f'buffer_store_dwordx2 v[14:15], v4, {RWS}, s86 offen', True)
    lds_inc(F_VGO, 'v7')
    A('s_setprio 0')
    g.stampw(0,3)
    A('s_branch L_VWAIT')
    A('L_D_H:\ns_setprio 3')
    A(f'v_lshlrev_b32 v4, 4, v1\ns_lshl_b32 s80, {sW8}, 11\ns_add_u32 s81, s80, {HH2}\ns_add_u32 s80, s80, {HH}')
    A(f'v_and_b32 v7, 7, v1\nv_mul_u32_u24 v6, 1056, v7\nv_lshrrev_b32 v7, 3, v1\nv_lshl_add_u32 v6, v7, 4, v6\ns_lshl_b32 s84, {sW8}, 8\ns_add_u32 s84, s84, {L_H}\nv_add_u32 v6, s84, v6')
    get_E('v15')
    g.lds_spin('v3', F_SUB, o.hdelay, 'v7', sleep=1)
    xpoll([f'buffer_load_dwordx4 v[16:19], v4, {RWS}, s80 offen sc1', f'buffer_load_dwordx4 v[20:23], v4, {RWS}, s80 offen offset:1024 sc1',
           f'buffer_load_dwordx4 v[24:27], v4, {RWS}, s81 offen sc1', f'buffer_load_dwordx4 v[28:31], v4, {RWS}, s81 offen offset:1024 sc1'], 16, 24, 8, 'v15', 'v7', sleep=o.mpsleep)
    A('ds_write_b128 v6, v[16:19]\nds_write_b128 v6, v[20:23] offset:128\ns_waitcnt lgkmcnt(0)')
    lds_inc(F_C3, 'v5')
    A('s_setprio 0')
    g.stampw(8,2)
    A('L_VWAIT:')
    A(f's_cmp_eq_u32 {sJ}, 1\ns_cbranch_scc1 L_VW_D')
    pm=0
    for w in o.cpre: pm|=1<<w
    if pm: A(f's_mov_b32 s80, {pm}\ns_lshr_b32 s80, s80, {sWAVE}\ns_bitcmp1_b32 s80, 0\ns_cbranch_scc1 L_VPATH')
    g.lds_spin('v3', F_R, 1, 'v7', sleep=2)
    g.lds_spin('v3', F_GO, 2, 'v7', sleep=1)
    A('L_VW_C:')
    cm=0
    for w in o.cearly: cm|=1<<w
    A(f's_mov_b32 s80, {cm}\ns_lshr_b32 s80, s80, {sWAVE}\ns_bitcmp1_b32 s80, 0\ns_cbranch_scc1 L_VPATH')
    A(f's_cmp_lg_u32 {sWAVE}, 9\ns_cbranch_scc1 L_VW_D2')
    get_E('v12')
    A(f's_lshl_b32 s80, {sPAIR}, 10\ns_add_u32 s80, s80, {QF}\ns_add_u32 s81, s80, {QF2-QF}\nv_mov_b32 v5, 0')
    xpoll([f'buffer_load_dword v16, v5, {RWS}, s80 offen sc1', f'buffer_load_dword v17, v5, {RWS}, s81 offen sc1'], 16, 17, 1, 'v12', 'v7', sleep=4)
    g.lds_set('v3', F_VGO, 4, 'v7')
    A('s_branch L_VPATH\nL_VW_D:')
    em=0
    for w in o.dearly: em|=1<<w
    A(f's_mov_b32 s80, {em}\ns_lshr_b32 s80, s80, {sWAVE}\ns_bitcmp1_b32 s80, 0\ns_cbranch_scc0 L_VW_D2')
    g.lds_spin('v3', F_GO, 8, 'v7', sleep=1)
    A('s_branch L_VPATH\nL_VW_D2:')
    g.lds_spin('v3', F_VGO, 4, 'v7', sleep=2)
    A('L_VPATH:')
    A(f'v_lshrrev_b32 v5, 3, v1\nv_lshlrev_b32 v2, 11, v5\nv_and_b32 v5, 7, v1\nv_lshl_add_u32 v2, v5, 4, v2')
    A(f's_lshl_b32 s80, {sWAVE}, 15\ns_xor_b32 s81, {sJ}, {o.dhswap}\ns_lshl_b32 s81, s81, 7\ns_add_u32 s80, s80, s81\ns_add_u32 s81, s80, 16384')
    for blk in range(2):
        for u in range(8):
            r=8+32*blk+4*u
            A(f'buffer_load_dwordx4 v[{r}:{r+3}], v2, {RKV}, s{80+blk} offen offset:{u*256} nt')
    lds_inc(F_KL, 'v7')
    g.stampw(0,22); g.stampw(11,23)
    if o.stamps:
        A(f's_cmp_lg_u32 {sWAVE}, 15\ns_cbranch_scc1 L_NS26\ns_waitcnt vmcnt(0)')
        g.stamp(26)
        A('L_NS26:')
    A('s_mov_b32 s88, 0x05040100\ns_mov_b32 s89, 0x07060302')
    A(f'v_and_b32 v7, 15, v1\nv_lshlrev_b32 v6, 4, v7\nv_lshrrev_b32 v7, 5, v1\nv_lshl_add_u32 v6, v7, 8, v6')
    A(f's_mul_i32 s84, {sWAVE}, {OPP}\ns_add_u32 s84, s84, {L_OP}\nv_add_u32 v6, s84, v6')
    A(f'v_lshrrev_b32 v7, 4, v1\nv_lshlrev_b32 v4, 7, v7\nv_and_b32 v7, 7, v1\nv_lshl_add_u32 v4, v7, 4, v4\ns_lshl_b32 s84, {sPAIR}, 14\ns_lshl_b32 s85, {sWAVE}, 10\ns_add_u32 s84, s84, s85')
    get_mode('v7')
    PL=[f'buffer_load_dwordx4 v[72:75], v4, {RWL}, s84 offen sc1', f'buffer_load_dwordx4 v[80:83], v4, {RWL}, s84 offen offset:512 sc1']
    PR=[72,73,74,75,80,81,82,83]
    TB=[88,8]
    def perms(blk):
        B=8+32*blk
        for w in range(4):
            t=TB[blk]+8*w
            for a in range(4): A(f'v_perm_b32 v{t+a}, v{B+4*(2*a+1)+w}, v{B+4*(2*a)+w}, s88')
            for a in range(4): A(f'v_perm_b32 v{t+4+a}, v{B+4*(2*a+1)+w}, v{B+4*(2*a)+w}, s89')
    A(f'ds_read_b32 v7, v3 offset:{F_KL}\ns_waitcnt lgkmcnt(0)\nv_readfirstlane_b32 s85, v7\ns_cmp_lt_u32 s85, {o.pgate}\ns_cbranch_scc1 L_PE')
    for l in PL: A(l)
    A('s_waitcnt vmcnt(10)')
    perms(0)
    A('s_waitcnt vmcnt(2)')
    perms(1)
    A('s_waitcnt vmcnt(0)')
    g.chk(PR, 'v7')
    A('s_cbranch_vccz L_PD\ns_branch L_PP')
    A('L_PE:\ns_waitcnt vmcnt(8)')
    perms(0)
    A('s_waitcnt vmcnt(0)')
    perms(1)
    g.lds_spin('v3', F_KL, o.pgate, 'v7', sleep=2)
    A('L_PP:')
    g.poll(PL, PR, 'v7', sleep=o.psleep)
    A('L_PD:')
    g.stampw(0,8); g.stampw(11,9)
    A(HI8)
    for blk in range(2):
        for r in range(4): A(f'v_cndmask_b32 v{76+8*blk+r}, 0, v{72+8*blk+r}, vcc')
    A('s_not_b64 vcc, vcc')
    for blk in range(2):
        for r in range(4): A(f'v_cndmask_b32 v{72+8*blk+r}, 0, v{72+8*blk+r}, vcc')
    Dd=40
    for blk in range(2):
        for q in range(2):
            for w in range(4):
                t=TB[blk]+8*w+4*q; d=Dd+4*w
                c0='0' if (blk==0 and q==0) else f'v[{d}:{d+3}]'
                A(f'v_mfma_f32_16x16x32_bf16 v[{d}:{d+3}], v[{72+8*blk+4*q}:{75+8*blk+4*q}], v[{t}:{t+3}], {c0}')
    A('s_mov_b32 exec_lo, 0xff0000ff\ns_mov_b32 exec_hi, 0xff0000ff')
    for w in range(4): A(f'ds_write_b128 v6, v[{Dd+4*w}:{Dd+4*w+3}] offset:{w*512}')
    A('s_mov_b64 exec, -1')
    A(f'v_lshrrev_b32 v5, 3, v1\nv_mul_u32_u24 v4, {2*OPP}, v5\nv_and_b32 v5, 7, v1\nv_lshl_add_u32 v4, v5, 4, v4\ns_lshl_b32 s85, {sW8}, 8\ns_add_u32 s84, s85, {L_OP}\nv_add_u32 v4, s84, v4')
    A(f'v_lshlrev_b32 v5, 3, v1\ns_lshl_b32 s84, {sPAIR}, 10\ns_lshr_b32 s85, s85, 2\ns_add_u32 s84, s84, s85\ns_lshl_b32 s85, {sJ}, 9\ns_add_u32 s84, s84, s85\ns_add_u32 s84, s84, {OO}')
    g.stampw(14,29); g.stampw(13,30); g.stampw(15,31)
    A('s_waitcnt lgkmcnt(0)\ns_barrier')
    g.stampw(8,28)
    A(f's_cmp_lt_u32 {sWAVE}, 8\ns_cbranch_scc1 L_VT')
    for k in range(4): A(f'ds_read_b128 v[{8+4*k}:{11+4*k}], v4 offset:{(k>>1)*OPP+(k&1)*128}')
    A('s_waitcnt lgkmcnt(0)')
    for r in range(4): A(f'v_add_f32 v{8+r}, v{8+r}, v{12+r}\nv_add_f32 v{16+r}, v{16+r}, v{20+r}')
    for r in range(4): A(f'v_add_f32 v{8+r}, v{8+r}, v{16+r}')
    for r in range(4): A(f'v_add_f32_dpp v{8+r}, v{8+r}, v{8+r} row_ror:8 row_mask:0xf bank_mask:0xf')
    g.red_rows('v_add_f32', [8,9,10,11], [12,13,14,15])
    A('v_cvt_pk_bf16_f32 v12, v8, v9\nv_cvt_pk_bf16_f32 v13, v10, v11')
    g.nosent([12,13])
    A('s_mov_b64 exec, 0xff')
    g.pub(f'buffer_store_dwordx2 v[12:13], v5, {RWL}, s84 offen', True)
    A('s_mov_b64 exec, -1')
    g.stampw(8,10)
    if o.stamps:
        A(f's_cmp_lg_u32 {sJ}, 1\ns_cbranch_scc1 L_END\ns_cmp_eq_u32 {sWAVE}, 8\ns_cbranch_scc1 L_DUMP')
    A('s_branch L_END')
    A('L_VT:')
    A(f's_cmp_lg_u32 {sJ}, 0\ns_cbranch_scc1 L_END\ns_cmp_ge_u32 {sWAVE}, 3\ns_cbranch_scc1 L_END')
    A(f'ds_read_b32 v13, v3 offset:{F_E}')
    A(f's_cmp_eq_u32 {sWAVE}, 2\ns_cbranch_scc1 L_FIN')
    A(f'v_lshlrev_b32 v4, 4, v1\ns_lshl_b32 s80, {sWAVE}, 10\nv_add_u32 v4, s80, v4')
    A(f'v_bfe_u32 v6, v1, 2, 3\nv_lshrrev_b32 v7, 5, v1\nv_lshlrev_b32 v7, 5, v7\nv_and_b32 v8, 3, v1\nv_lshl_add_u32 v7, v8, 3, v7\ns_lshl_b32 s81, {sWAVE}, 6\nv_add_u32 v7, s81, v7')
    A(f'v_lshl_add_u32 v5, v6, 10, v7\ns_lshl_b32 s81, {sB}, 7\nv_lshl_add_u32 v9, v6, 12, v7\ns_add_u32 s80, s81, {MT}')
    A(f'buffer_load_dwordx2 v[56:57], v5, {RX}, s81 offen')
    A(f's_add_u32 s81, s80, {MT2-MT}\ns_waitcnt lgkmcnt(0)')
    xpoll([f'buffer_load_dwordx2 v[60:61], v9, {RWS}, s80 offen sc1', f'buffer_load_dwordx2 v[62:63], v9, {RWS}, s81 offen sc1'], 60, 62, 2, 'v13', 'v12')
    g.unpack(60,48,49); g.unpack(61,50,51)
    g.unpack(56,52,53); g.unpack(57,54,55)
    A(f'v_lshl_add_u32 v5, v6, 7, v7\ns_lshl_b32 s82, {sPAIR}, 10\ns_add_u32 s82, s82, {X1}')
    A(f'v_lshlrev_b32 v8, 1, v5\nv_add_u32 v8, {L_X1S}, v8')
    A(f's_lshl_b32 s80, {sB}, 14\ns_add_u32 s80, s80, {WP}')
    for k in range(4): A(f's_add_u32 s{88+k}, s80, {k*4096}')
    g.poll([f'buffer_load_dwordx4 v[{16+4*k}:{19+4*k}], v4, {RWS}, s{88+(k>>1)} offen offset:{(k&1)*2048} sc1' for k in range(8)], range(16,48), 'v12')
    for r in range(4):
        A(f'v_add_f32 v{16+r}, v{16+r}, v{20+r}\nv_add_f32 v{24+r}, v{24+r}, v{28+r}\nv_add_f32 v{32+r}, v{32+r}, v{36+r}\nv_add_f32 v{40+r}, v{40+r}, v{44+r}')
        A(f'v_add_f32 v{16+r}, v{16+r}, v{24+r}\nv_add_f32 v{32+r}, v{32+r}, v{40+r}\nv_add_f32 v{16+r}, v{16+r}, v{32+r}')
    g.rnd2(16,17,12); g.rnd2(18,19,13)
    for r in range(4): A(f'v_mul_f32 v{16+r}, v{16+r}, v{48+r}')
    g.rnd2(16,17,12); g.rnd2(18,19,13)
    for r in range(4): A(f'v_add_f32 v{16+r}, v{16+r}, v{52+r}')
    g.rnd2(16,17,12); g.rnd2(18,19,13)
    g.nosent([12,13])
    g.pub(f'buffer_store_dwordx2 v[12:13], v5, {RWL}, s82 offen', True)
    A('ds_write_b128 v8, v[16:19]')
    g.stampw(0,12)
    A('s_waitcnt lgkmcnt(0)\ns_barrier')
    A('s_branch L_END')
    A('L_FIN:')
    A(f'v_lshrrev_b32 v5, 4, v1\nv_lshlrev_b32 v4, 9, v5\nv_and_b32 v5, 15, v1\nv_lshl_add_u32 v4, v5, 2, v4\ns_lshl_b32 s80, {sG}, 6\nv_add_u32 v4, s80, v4')
    A(f's_lshl_b32 s80, {sG}, 12\ns_lshl_b32 s81, {sB}, 7\ns_add_u32 s80, s80, s81\ns_add_u32 s80, s80, {MT+3072}\nv_lshrrev_b32 v5, 1, v1\nv_lshlrev_b32 v5, 2, v5')
    A(f's_add_u32 s81, s80, {MT2-MT}\ns_waitcnt lgkmcnt(0)')
    xpoll([f'buffer_load_dword v50, v5, {RWS}, s80 offen sc1', f'buffer_load_dword v51, v5, {RWS}, s81 offen sc1'], 50, 51, 1, 'v13', 'v12', sleep=4)
    g.unpack(50,48,49)
    A('s_mov_b32 vcc_lo, 0xaaaaaaaa\ns_mov_b32 vcc_hi, 0xaaaaaaaa\nv_cndmask_b32 v48, v48, v49, vcc')
    A(f's_lshl_b32 s80, {sB}, 14\ns_add_u32 s80, s80, {DP}')
    for k in range(4): A(f's_add_u32 s{88+k}, s80, {k*4096}')
    A(f's_lshl_b32 s81, {sG}, 8\ns_add_u32 s81, s81, {L_X1S}\nv_lshlrev_b32 v6, 2, v1\nv_add_u32 v6, s81, v6')
    A(f'v_lshlrev_b32 v7, 1, v1\ns_lshl_b32 s82, {sG}, 10\ns_lshl_b32 s83, {sB}, 7\ns_add_u32 s82, s82, s83')
    A('s_barrier')
    A('ds_read_b32 v50, v6')
    g.poll([f'buffer_load_dword v{16+k}, v4, {RWS}, s{88+(k>>1)} offen offset:{(k&1)*2048} sc1' for k in range(7)], range(16,23), 'v12')
    A('v_add_f32 v16, v16, v17\nv_add_f32 v18, v18, v19\nv_add_f32 v20, v20, v21\nv_add_f32 v16, v16, v18\nv_add_f32 v20, v20, v22\nv_add_f32 v16, v16, v20')
    g.rnd2(16,17,12)
    A('v_mul_f32 v16, v16, v48')
    g.rnd2(16,17,12)
    A('s_waitcnt lgkmcnt(0)\nv_add_f32 v16, v16, v50\nv_cvt_pk_bf16_f32 v12, v16, v16')
    A(f'buffer_store_short v12, v7, {ROUT}, s82 offen')
    g.stamp(15)
    A('s_branch L_DUMP')

    A('L_KPATH:')
    KST={'lin':4096,'int':65536,'g4':16384}[o.kmap]
    A(f'v_lshlrev_b32 v4, 4, v1\ns_and_b32 s86, {sJ}, 1\ns_lshl_b32 s80, s86, 18')
    def tile0(d, t):
        if o.kmap=='lin': A(f's_lshl_b32 {d}, {sWAVE}, 2')
        elif o.kmap=='int': A(f's_mov_b32 {d}, {sWAVE}')
        else: A(f's_lshr_b32 {d}, {sWAVE}, 2\ns_lshl_b32 {d}, {d}, 4\ns_and_b32 {t}, {sWAVE}, 3\ns_add_u32 {d}, {d}, {t}')
    tile0('s81','s82')
    A('s_lshl_b32 s81, s81, 12\ns_add_u32 s80, s80, s81')
    if o.thr:
        A(f's_cmp_lt_u32 {sWAVE}, {o.thrw}\ns_cbranch_scc1 L_KGO')
        g.lds_spin('v3', F_GO, o.thrw, 'v5', sleep=1)
        A('L_KGO:')
    for T in range(4):
        if T: A(f's_add_u32 s80, s80, {KST}')
        if o.thr and 1<=T<=o.thr:
            l=g.lab('KT')
            A(f's_cmp_ge_u32 {sWAVE}, {o.thrw}\ns_cbranch_scc1 {l}\ns_waitcnt vmcnt(0)')
            if T==o.thr: lds_inc(F_GO, 'v5')
            A(f'{l}:')
        for m in range(4):
            r=16+16*T+4*m
            A(f'buffer_load_dwordx4 v[{r}:{r+3}], v4, {RKV}, s80 offen offset:{m*1024} nt')
    g.stampw(11,20)
    A(f's_mul_i32 s81, {sWAVE}, {KS_SZ}\ns_add_u32 s81, s81, {L_KS}')
    A('v_lshrrev_b32 v6, 4, v1\nv_and_b32 v7, 15, v1\nv_mul_u32_u24 v4, 272, v6\nv_lshl_add_u32 v4, v7, 4, v4\nv_add_u32 v4, s81, v4')
    A('v_mul_u32_u24 v5, 272, v7\nv_lshl_add_u32 v5, v6, 4, v5\nv_add_u32 v5, s81, v5')
    for T in range(4):
        A(f's_waitcnt vmcnt({12-4*T})')
        for m in range(4): A(f'ds_write_b128 v4, v[{16+16*T+4*m}:{19+16*T+4*m}] offset:{m*1088}')
        A('s_waitcnt lgkmcnt(0)')
        for m in range(4): A(f'ds_read_b128 v[{16+16*T+4*m}:{19+16*T+4*m}], v5 offset:{m*64}')
        A('s_waitcnt lgkmcnt(0)')
    lds_inc(F_KL, 'v7')
    g.stampw(15,18); g.stampw(3,21)
    A('s_setprio 2')
    A(f's_cmp_ge_u32 {sWAVE}, 2\ns_cbranch_scc1 L_QPX')
    get_E('v12')
    A(f's_cmp_eq_u32 {sWAVE}, 0\ns_cbranch_scc1 L_QP0\ns_mov_b32 s79, 1\ns_branch L_FLAGS\nL_KFLB:\ns_branch L_QPX\nL_QP0:')
    A(f's_lshl_b32 s80, {sG}, 13\ns_lshl_b32 s81, {sB}, 7\ns_add_u32 s80, s80, s81\ns_add_u32 s80, s80, {QF}\ns_add_u32 s81, s80, {QF2-QF}')
    A(f'v_lshrrev_b32 v6, 3, v1\nv_lshlrev_b32 v5, 10, v6\nv_and_b32 v7, 7, v1\nv_lshl_add_u32 v5, v7, 4, v5')
    A(f'v_lshrrev_b32 v6, 4, v1\nv_mul_u32_u24 v13, 272, v6\nv_and_b32 v7, 15, v1\nv_lshl_add_u32 v13, v7, 4, v13\nv_add_u32 v13, {L_Q}, v13')
    if o.qdelay: g.lds_spin('v3', F_KL, o.qdelay, 'v7', sleep=2)
    xpoll([f'buffer_load_dwordx4 v[96:99], v5, {RWS}, s80 offen sc1', f'buffer_load_dwordx4 v[100:103], v5, {RWS}, s81 offen sc1'], 96, 100, 4, 'v12', 'v7', sleep=o.qsleep)
    A('ds_write_b128 v13, v[96:99]\ns_waitcnt lgkmcnt(0)')
    g.lds_set('v3', F_QREADY, 1, 'v7')
    g.stamp(6)
    A('L_QPX:')
    A(f'v_and_b32 v6, 3, v1\nv_mul_u32_u24 v6, 272, v6\nv_lshrrev_b32 v7, 4, v1\nv_lshl_add_u32 v6, v7, 4, v6\nv_add_u32 v6, {L_Q}, v6')
    A(f'v_bfe_u32 v5, v1, 2, 2\nv_lshlrev_b32 v4, {(KST//32).bit_length()-1}, v5\nv_lshrrev_b32 v5, 5, v1\nv_lshl_add_u32 v4, v5, 6, v4\nv_and_b32 v5, 3, v1\nv_lshl_add_u32 v4, v5, 4, v4\nv_bfe_u32 v5, v1, 4, 1\nv_lshl_add_u32 v4, v5, 3, v4')
    A(f's_and_b32 s86, {sJ}, 1\ns_lshl_b32 s81, {sPAIR}, 14\ns_lshl_b32 s82, s86, 13\ns_add_u32 s81, s81, s82')
    tile0('s82','s83')
    A('s_lshl_b32 s82, s82, 7\ns_add_u32 s81, s81, s82')
    A(f'v_and_b32 v5, 3, v1\nv_lshlrev_b32 v5, 3, v5\ns_lshl_b32 s82, {sPAIR}, 10\ns_add_u32 s82, s82, {ST}\ns_lshl_b32 s84, s86, 9\ns_add_u32 s83, s82, s84\ns_xor_b32 s84, s84, 512\ns_add_u32 s82, s82, s84')
    A(f'v_lshlrev_b32 v14, 3, v1\nv_add_u32 v14, {L_X1S}, v14\ns_lshl_b32 s84, {sWAVE}, 5\nv_add_u32 v13, s84, v14\nv_add_u32 v15, {L_X1S+512}, v5')
    get_mode('v7')
    g.lds_spin('v3', F_QREADY, 1, 'v7', sleep=1)
    for m in range(4): A(f'ds_read_b128 v[{96+4*m}:{99+4*m}], v6 offset:{m*64}')
    for m in range(4):
        A(f's_waitcnt lgkmcnt({3-m})')
        for T in range(4):
            r=16+16*T+4*m; d=80+4*T
            c='0' if m==0 else f'v[{d}:{d+3}]'
            A(f'v_mfma_f32_16x16x32_bf16 v[{d}:{d+3}], v[{r}:{r+3}], v[{96+4*m}:{99+4*m}], {c}')
    for T in range(1,4):
        mk = 0x000f000f << (4*T)
        A(f's_mov_b32 vcc_lo, 0x{mk:x}\ns_mov_b32 vcc_hi, 0x{mk:x}')
        for r in range(4): A(f'v_cndmask_b32 v{80+r}, v{80+r}, v{80+4*T+r}, vcc')
    g.rnd2(80,81,8); g.rnd2(82,83,9)
    for r in range(4): A(f'v_mul_f32 v{80+r}, 0x{SCALE:x}, v{80+r}')
    g.rnd2(80,81,8); g.rnd2(82,83,9)
    A('v_max3_f32 v10, v80, v81, v82\nv_max_f32 v10, v10, v83')
    A('v_max_f32_dpp v10, v10, v10 row_ror:4 row_mask:0xf bank_mask:0xf\nv_max_f32_dpp v10, v10, v10 row_ror:8 row_mask:0xf bank_mask:0xf')
    g.red_rows('v_max_f32', [10], [12])
    for r in range(4): A(f'v_sub_f32 v{80+r}, v{80+r}, v10')
    for r in range(4): A(f'v_mul_f32 v{80+r}, 0x{LOG2E:x}, v{80+r}')
    for r in range(4): A(f'v_exp_f32 v{80+r}, v{80+r}')
    A('v_add_f32 v11, v80, v81\nv_add_f32 v12, v82, v83\nv_add_f32 v11, v11, v12')
    A('v_add_f32_dpp v11, v11, v11 row_ror:4 row_mask:0xf bank_mask:0xf\nv_add_f32_dpp v11, v11, v11 row_ror:8 row_mask:0xf bank_mask:0xf')
    g.red_rows('v_add_f32', [11], [12])
    A('s_mov_b64 exec, 15\nds_write_b64 v13, v[10:11]\ns_mov_b64 exec, -1\ns_waitcnt lgkmcnt(0)\ns_barrier')
    A(f's_cmp_lg_u32 {sWAVE}, 0\ns_cbranch_scc1 L_STW')
    A('ds_read_b64 v[24:25], v14\ns_waitcnt lgkmcnt(0)')
    A('v_max_f32_dpp v20, v24, v24 row_ror:4 row_mask:0xf bank_mask:0xf\nv_max_f32_dpp v20, v20, v20 row_ror:8 row_mask:0xf bank_mask:0xf')
    g.red_rows('v_max_f32', [20], [12])
    A(f'v_sub_f32 v24, v24, v20\nv_mul_f32 v24, 0x{LOG2E:x}, v24\nv_exp_f32 v24, v24\nv_mul_f32 v21, v24, v25')
    A('v_add_f32_dpp v21, v21, v21 row_ror:4 row_mask:0xf bank_mask:0xf\nv_add_f32_dpp v21, v21, v21 row_ror:8 row_mask:0xf bank_mask:0xf')
    g.red_rows('v_add_f32', [21], [12])
    g.nosent([20,21])
    A('s_mov_b64 exec, 15')
    g.pub(f'buffer_store_dwordx2 v[20:21], v5, {RWL}, s83 offen', True)
    A('s_mov_b64 exec, -1')
    g.stamp(19)
    g.poll([f'buffer_load_dwordx2 v[26:27], v5, {RWL}, s82 offen sc1'], [26,27], 'v12', sleep=o.stsleep)
    A('v_max_f32 v28, v20, v26')
    A(f'v_sub_f32 v24, v20, v28\nv_sub_f32 v26, v26, v28\nv_mul_f32 v24, 0x{LOG2E:x}, v24\nv_mul_f32 v26, 0x{LOG2E:x}, v26\nv_exp_f32 v24, v24\nv_exp_f32 v26, v26')
    A('v_mul_f32 v21, v24, v21\nv_mul_f32 v27, v26, v27\nv_add_f32 v21, v21, v27')
    A('v_rcp_f32 v29, v21\nv_fma_f32 v30, -v21, v29, 1.0\nv_fmac_f32 v29, v30, v29')
    A('ds_write_b64 v15, v[28:29]\ns_waitcnt lgkmcnt(0)')
    A('L_STW:\ns_barrier')
    A('ds_read_b64 v[28:29], v15\ns_waitcnt lgkmcnt(0)')
    A(f'v_sub_f32 v10, v10, v28\nv_mul_f32 v10, 0x{LOG2E:x}, v10\nv_exp_f32 v10, v10\nv_mul_f32 v10, v10, v29')
    for r in range(4): A(f'v_mul_f32 v{80+r}, v{80+r}, v10')
    A('v_cvt_pk_bf16_f32 v8, v80, v81\nv_cvt_pk_bf16_f32 v9, v82, v83')
    g.nosent([8,9])
    g.pub(f'buffer_store_dwordx2 v[8:9], v4, {RWL}, s81 offen', True)
    g.stampw(15,7)
    A('s_barrier')
    A(f's_cmp_eq_u32 {sJ}, 3\ns_cbranch_scc1 L_KW3')
    g.dma_voff('v12','v13',1024,'v14')
    A('v_and_b32 v16, 0x7f, v12\nv_bfe_u32 v14, v1, 3, 2\nv_lshl_add_u32 v16, v14, 17, v16\nv_lshrrev_b32 v14, 5, v1\nv_lshl_add_u32 v16, v14, 13, v16\nv_xor_b32 v17, 64, v16')
    A(f's_lshl_b32 s82, {sG}, 19\ns_lshl_b32 s83, {sW8}, 10\ns_add_u32 s82, s82, s83\ns_lshr_b32 s83, {sWAVE}, 3\ns_lshl_b32 s83, s83, 16\ns_add_u32 s82, s82, s83\ns_lshl_b32 s84, {sB}, 7\ns_add_u32 s82, s82, s84\ns_lshl_b32 s83, {sWAVE}, 12')
    blk_dma(RW1, 4, 's82', 2048, 's83', 'v16', 'v17')
    if not o.dnlate:
        A(f's_cmp_eq_u32 {sG}, 7\ns_cbranch_scc1 L_KWD0')
        A(f's_lshl_b32 s82, {sG}, 18\ns_lshl_b32 s83, {sWAVE}, 14\ns_add_u32 s82, s82, s83\ns_add_u32 s82, s82, s84\ns_lshl_b32 s83, {sWAVE}, 11\ns_add_u32 s83, s83, {L_W2}')
        blk_dma(RWD, 2, 's82', 1024, 's83', 'v12', 'v13')
        A('s_waitcnt vmcnt(2)\ns_branch L_KWD1\nL_KWD0:\ns_waitcnt vmcnt(0)\nL_KWD1:\ns_barrier')
    else:
        A('s_waitcnt vmcnt(0)\ns_barrier')
    A(f's_and_b32 s82, s2, 63\ns_and_b32 s84, {sWAVE}, 3')
    A(f's_cmp_ge_u32 {sWAVE}, 12\ns_cbranch_scc1 L_WO\ns_cmp_ge_u32 {sWAVE}, 8\ns_cbranch_scc1 L_DN')
    A(f'v_lshlrev_b32 v4, 4, v1\ns_lshl_b32 s80, {sG}, 13\ns_lshl_b32 s81, {sWAVE}, 10\ns_add_u32 s80, s80, s81\ns_add_u32 s85, s80, {GU}\ns_add_u32 s80, s80, {OO}')
    A(f's_mul_i32 s81, {sWAVE}, 1056\ns_add_u32 s81, s81, {L_ACT}\nv_add_u32 v5, s81, v4')
    A(f'v_bfe_u32 v7, v1, 1, 3\nv_mul_u32_u24 v6, 544, v7\nv_lshrrev_b32 v7, 4, v1\nv_lshl_add_u32 v6, v7, 5, v6\nv_and_b32 v7, 1, v1\nv_lshl_add_u32 v6, v7, 4, v6\ns_lshl_b32 s82, {sWAVE}, 7\ns_add_u32 s82, s82, {L_ACT2}\nv_add_u32 v6, s82, v6\ns_add_u32 s86, s85, 4096')
    g.poll([f'buffer_load_dwordx4 v[16:19], v4, {RWL}, s80 offen sc1'], range(16,20), 'v12', sleep=o.osleep)
    A('ds_write_b128 v5, v[16:19]\ns_waitcnt lgkmcnt(0)\ns_barrier')
    A(f's_cmp_ge_u32 {sWAVE}, 4\ns_cbranch_scc1 L_END\ns_cmp_eq_u32 {sG}, 7\ns_cbranch_scc1 L_END')
    g.poll([f'buffer_load_dwordx4 v[16:19], v4, {RWL}, s85 offen sc1', f'buffer_load_dwordx4 v[20:23], v4, {RWL}, s86 offen sc1'], range(16,24), 'v12')
    for i in range(8): g.unpack(16+i, 32+2*i, 33+2*i)
    for i in range(8): A(f'v_mul_f32 v{32+i}, v{32+i}, v{40+i}')
    for i in range(4): A(f'v_cvt_pk_bf16_f32 v{16+i}, v{32+2*i}, v{33+2*i}')
    A('ds_write_b128 v6, v[16:19]\ns_waitcnt lgkmcnt(0)\ns_barrier')
    A('s_branch L_END')
    A('L_WO:')
    g.tr_addr('v5', 's84', L_W, 'v6', 'v7')
    g.tr_frags('v5', 16, range(16))
    g.act_addr('v6', L_ACT, 1056, 'v7')
    A(f's_lshl_b32 s83, s82, 11\ns_lshl_b32 s85, s84, 9\ns_add_u32 s83, s83, s85\ns_add_u32 s83, s83, {WP}')
    g.part_store_addr('v4', 's83', 'v7')
    A('s_waitcnt vmcnt(0) lgkmcnt(0)\ns_barrier')
    gemv16(16, 'v6', 8, [80,96])
    g.nosent(range(8,12))
    A(HALF)
    A(f'buffer_store_dwordx4 v[8:11], v4, {RWS}, 0 offen sc1')
    A('s_mov_b64 exec, -1')
    lds_inc(F_C3, 'v7')
    g.stampw(12,11)
    if o.stamps:
        A(f's_cmp_lg_u32 {sG}, 7\ns_cbranch_scc1 L_END\ns_cmp_eq_u32 {sWAVE}, 12\ns_cbranch_scc1 L_DUMP')
    A('s_branch L_END')
    A('L_DN:')
    g.tr_addr('v5', 's84', L_W2, 'v6', 'v7')
    g.act_addr('v6', L_ACT2, 544, 'v7')
    A(f's_lshl_b32 s83, s82, 11\ns_lshl_b32 s85, s84, 9\ns_add_u32 s83, s83, s85\ns_add_u32 s83, s83, {DP}')
    g.part_store_addr('v4', 's83', 'v7')
    A('s_waitcnt vmcnt(0)\ns_barrier')
    A(f's_cmp_eq_u32 {sG}, 7\ns_cbranch_scc1 L_END')
    if o.dnlate:
        A(f's_lshl_b32 s82, {sG}, 18\ns_lshl_b32 s83, s84, 16\ns_add_u32 s82, s82, s83\ns_lshl_b32 s83, {sB}, 7\ns_add_u32 s82, s82, s83\ns_lshl_b32 s83, s84, 13\ns_add_u32 s83, s83, {L_W2}')
        g.lds_spin('v3', F_C3, 4, 'v7', sleep=1)
        blk_dma(RWD, 8, 's82', 1024, 's83', 'v12', 'v13')
        A('s_waitcnt vmcnt(0)')
        lds_inc(F_SUB, 'v7')
        g.lds_spin('v3', F_SUB, 4, 'v7', sleep=0)
    g.tr_frags('v5', 16, range(8))
    A('s_waitcnt lgkmcnt(0)\ns_barrier')
    g.gemv_tile(16, 8, 'v6', 48, 8)
    g.nosent(range(8,12))
    A(HALF)
    A(f'buffer_store_dwordx4 v[8:11], v4, {RWS}, 0 offen sc1')
    A('s_mov_b64 exec, -1')
    g.stampw(8,14)
    if o.stamps:
        A(f's_cmp_eq_u32 {sWAVE}, 8\ns_cbranch_scc1 L_DUMP')
    A('s_branch L_END')
    A('L_KW3:')
    if o.stamps:
        A(f's_cmp_lg_u32 {sG}, 7\ns_cbranch_scc1 L_KW3a\ns_cmp_eq_u32 {sWAVE}, 15\ns_cbranch_scc1 L_DUMP\ns_branch L_END\nL_KW3a:')
    else:
        A(f's_cmp_eq_u32 {sG}, 7\ns_cbranch_scc1 L_END')
    g.dma_voff('v12','v13',3584,'v14')
    A(f's_mul_i32 s82, {sWAVE}, {32*3584}\ns_lshl_b32 s83, {sG}, 2\ns_and_b32 s84, {sB}, 3\ns_add_u32 s83, s83, s84\ns_lshl_b32 s83, s83, 7\ns_add_u32 s82, s82, s83\ns_lshl_b32 s83, {sWAVE}, 12')
    if o.gulate:
        if o.gulate==1:
            A(f's_cmp_lg_u32 {sWAVE}, 0\ns_cbranch_scc1 L_GUW\ns_lshl_b32 s80, {sPAIR}, 10\ns_add_u32 s80, s80, {OO}\nv_mov_b32 v5, 0')
            g.poll([f'buffer_load_dword v16, v5, {RWL}, s80 offen sc1'], [16], 'v7', sleep=4)
        else:
            A(f's_cmp_lg_u32 {sWAVE}, 0\ns_cbranch_scc1 L_GUW\ns_lshl_b32 s80, {sG}, 13\ns_add_u32 s80, s80, {OO}\nv_and_b32 v5, 15, v1\nv_lshlrev_b32 v5, 9, v5')
            A(f'L_GUP:\nbuffer_load_dword v16, v5, {RWL}, s80 offen sc1\ns_waitcnt vmcnt(0)\nv_cmp_ne_u32 vcc, -1, v16\ns_and_b32 s81, vcc_lo, 0xffff\ns_bcnt1_i32_b32 s81, s81\ns_cmp_ge_u32 s81, {o.gulate-1}\ns_cbranch_scc1 L_GUW')
            g.timeout('L_GUW')
            A('s_sleep 4\ns_branch L_GUP')
        A('L_GUW:\ns_barrier')
    if o.gutr:
        for i in range(4):
            g.dma(RW1, 'v13' if i&1 else 'v12', 's82', i*8*3584, 's83', i*1024)
            A('s_waitcnt vmcnt(0)')
    else:
        blk_dma(RW1, 4, 's82', 3584, 's83', 'v12', 'v13')
    A('s_waitcnt vmcnt(0)\ns_barrier')
    A(f's_cmp_ge_u32 {sWAVE}, 12\ns_cbranch_scc1 L_GU\ns_cmp_ge_u32 {sWAVE}, 8\ns_cbranch_scc1 L_END')
    A(f'v_lshlrev_b32 v4, 4, v1\ns_lshl_b32 s80, {sWAVE}, 12\ns_add_u32 s80, s80, {MT}\ns_add_u32 s81, s80, {MT2-MT}')
    A(f'ds_read_b32 v13, v3 offset:{F_E}\ns_waitcnt lgkmcnt(0)')
    xpoll([f'buffer_load_dwordx4 v[48:51], v4, {RWS}, s80 offen offset:1024 sc1', f'buffer_load_dwordx4 v[52:55], v4, {RWS}, s80 offen offset:2048 sc1',
           f'buffer_load_dwordx4 v[56:59], v4, {RWS}, s81 offen offset:1024 sc1', f'buffer_load_dwordx4 v[60:63], v4, {RWS}, s81 offen offset:2048 sc1'], 48, 56, 8, 'v13', 'v12', sleep=8)
    for i in range(8): g.unpack(48+i, 32+2*i, 33+2*i)
    for i in range(8): A(f'v_add_f32 v{40+i}, 1.0, v{40+i}')
    for i in range(4): g.rnd2(40+2*i,41+2*i,13)
    A(f's_mul_i32 s81, {sWAVE}, 1056\ns_add_u32 s81, s81, {L_ACT}\nv_add_u32 v5, s81, v4')
    A(f'v_lshrrev_b32 v7, 3, v1\nv_lshlrev_b32 v4, 10, v7\nv_and_b32 v7, 7, v1\nv_lshl_add_u32 v4, v7, 4, v4')
    A(f's_lshl_b32 s80, {sG}, 13\ns_lshl_b32 s81, {sWAVE}, 7\ns_add_u32 s80, s80, s81\ns_add_u32 s80, s80, {X1}')
    g.poll([f'buffer_load_dwordx4 v[8:11], v4, {RWL}, s80 offen sc1'], range(8,12), 'v12', sleep=o.osleep)
    g.ln8(8, 16, 48)
    for i in range(8): A(f'v_mul_f32 v{16+i}, v{16+i}, v{40+i}')
    for i in range(4): g.rnd2(16+2*i,17+2*i,48+i)
    for i in range(8): A(f'v_add_f32 v{16+i}, v{16+i}, v{32+i}')
    for i in range(4): A(f'v_cvt_pk_bf16_f32 v{8+i}, v{16+2*i}, v{17+2*i}')
    A('ds_write_b128 v5, v[8:11]\ns_waitcnt lgkmcnt(0)\ns_barrier')
    A('s_branch L_END')
    A('L_GU:')
    A(f's_and_b32 s84, {sWAVE}, 3')
    g.tr_addr('v5', 's84', L_W, 'v6', 'v7')
    g.tr_frags('v5', 16, range(16))
    g.act_addr('v6', L_ACT, 1056, 'v7')
    A(f's_lshl_b32 s83, {sPAIR}, 10\ns_lshl_b32 s85, s84, 8\ns_add_u32 s83, s83, s85\ns_add_u32 s83, s83, {GU}')
    A('v_and_b32 v7, 15, v1\nv_lshlrev_b32 v4, 5, v7\nv_lshrrev_b32 v7, 4, v1\nv_lshl_add_u32 v4, v7, 3, v4')
    A('s_waitcnt lgkmcnt(0)\ns_barrier')
    gemv16(16, 'v6', 8, [80,96])
    g.rnd2(8,9,12); g.rnd2(10,11,13)
    A(f's_cmp_ge_u32 {sB}, 4\ns_cbranch_scc1 L_T2U')
    g.silu_inplace([8,9,10,11],[16,17,18,19])
    A('v_cvt_pk_bf16_f32 v12, v8, v9\nv_cvt_pk_bf16_f32 v13, v10, v11')
    A('L_T2U:')
    g.nosent([12,13])
    A(HALF)
    g.pub(f'buffer_store_dwordx2 v[12:13], v4, {RWL}, s83 offen', True)
    A('s_mov_b64 exec, -1')
    g.stampw(12,13)
    if o.stamps:
        A(f's_cmp_lg_u32 {sWAVE}, 12\ns_cbranch_scc1 L_END')
    A('L_DUMP:')
    if o.stamps:
        A(f'v_lshlrev_b32 v4, 2, v1\nv_add_u32 v5, {L_STAMP}, v4\nds_read_b32 v6, v5\nv_mov_b32 v7, 0\nv_lshlrev_b32 v4, 3, v1')
        A(f's_add_u32 s80, s58, 0x{STAMP:x}\ns_addc_u32 s81, s59, 0\ns_lshl_b32 s82, s2, 8\ns_add_u32 s80, s80, s82\ns_addc_u32 s81, s81, 0')
        A('s_waitcnt lgkmcnt(0)\ns_mov_b32 exec_hi, 0\nglobal_store_dwordx2 v4, v[6:7], s[80:81]')
        if o.dbgst:
            A('s_mov_b64 exec, -1\nv_mov_b32 v8, 0')
            for i,sl in enumerate(o.dbgst): A(f'v_writelane_b32 v8, {sl}, {i+1}')
            A(f'v_lshlrev_b32 v8, 2, v8\nv_add_u32 v8, {L_STAMP}, v8\nds_read_b32 v9, v8\nds_read_b32 v10, v3 offset:{F_E}\nv_lshlrev_b32 v11, 2, v1\ns_waitcnt lgkmcnt(0)')
            A(f'v_cmp_ne_u32 vcc, 0, v9\nv_sub_u32 v9, v9, v10\nv_add_u32 v9, 1000, v9\ns_and_b32 exec_lo, vcc_lo, 0xfffe\ns_mov_b32 exec_hi, 0\ns_cbranch_execz L_END')
            A(f'buffer_atomic_umax v9, v11, {RDBG}, 0 offen sc1')
    A('L_END:\ns_endpgm\nL_CODE_END:')
    return g.L

def emit(o, fname):
    body = build(o)
    body, n = fix_hazards(body)
    hdr = open('cdna_kernels/'+NAME+'.s.ref').read().split('; Override launch')[0]
    out = hdr + f'; @launch grid=(256,1,1) block=(1024,1,1) lds={LDS_SIZE}\n'
    out += f'.amdgcn_target "amdgcn-amd-amdhsa--gfx950"\n.text\n.globl {NAME}_kernel\n.p2align 8\n.type {NAME}_kernel,@function\n{NAME}_kernel:\n'
    out += '\n'.join(('' if l.endswith(':') else '    ')+l for l in body) + '\n'
    out += f'''.section .rodata,"a"
.p2align 6
.amdhsa_kernel {NAME}_kernel
  .amdhsa_next_free_vgpr 128
  .amdhsa_next_free_sgpr 102
  .amdhsa_accum_offset 128
  .amdhsa_group_segment_fixed_size 0
  .amdhsa_kernarg_size 112
  .amdhsa_user_sgpr_count 2
  .amdhsa_user_sgpr_kernarg_segment_ptr 1
  .amdhsa_system_sgpr_workgroup_id_x 1
  .amdhsa_float_denorm_mode_32 3
  .amdhsa_float_denorm_mode_16_64 3
.end_amdhsa_kernel
'''
    open(fname,'w').write(out)
    print(fname, len(body), 'lines', n, 'nops inserted')

if __name__=='__main__':
    ap=argparse.ArgumentParser()
    ap.add_argument('-o', default='k.s')
    ap.add_argument('--stamps', action='store_true')
    ap.add_argument('--local', action='store_true')
    for k,d in dict(codepf=1,mpdelay=0,mpsleep=2,fldelay=80,hdelay=8,mtearly=0,pgate=12,psleep=4,thr=0,thrw=4,qdelay=8,qsleep=2,stsleep=0,osleep=0,gulate=1,dnlate=1,gutr=0,dhswap=0).items():
        ap.add_argument('--'+k, type=int, default=d)
    ap.add_argument('--dearly', type=lambda x:[int(t) for t in x.split(',') if t], default=[4,5,6,7])
    ap.add_argument('--cearly', type=lambda x:[int(t) for t in x.split(',') if t], default=list(range(16)))
    ap.add_argument('--cpre', type=lambda x:[int(t) for t in x.split(',') if t], default=[])
    ap.add_argument('--dbgst', type=lambda x:[int(t) for t in x.split(',') if t], default=[])
    ap.add_argument('--kmap', default='int')
    o=ap.parse_args()
    emit(o, o.o)
```

```python
import sys, argparse
from asmlib import fix_hazards
NAME='adaLN_cond__sliding_block_cached__swiglu_ffn__decode'

PP=0x000000; OO=0x100000; ST=0x110000; X1=0x120000; GU=0x130000; LREG=0x140000; GOFF=0x180000
QF=0x300000; QF2=0x310000; HH=0x320000; HH2=0x322000; MT=0x400000; MT2=0x420000; WP=0x440000; DP=0x460000
MP=0x480000; MP2=0x4A0000; FL=0x4C0000; FLB=0x4C8000; WS_USED=0x4D0000
STAMP=0x10000000
L_W=0x0; L_W2=0x10000; L_WM=0x10000; L_KS=0x0; KS_SZ=4352
L_OP=0x16000; OPP=2112
L_Y=0x14000; L_H=0x18000
L_ACT=0x20000; L_ACT2=0x18000; L_Q=0x22200; L_FLAGS=0x22800; L_X1S=0x22900; L_STAMP=0x23100; LDS_SIZE=0x23400
F_QREADY=4; F_MODE=8; F_E=12; F_SUB=16; F_Y=20; F_C1=24; F_C3=28; F_CLR=32; F_MOK=36; F_R=40; F_GO=44; F_VGO=48; F_KL=52
sWAVE,sG,sB,sJ,sMODE = 's3','s4','s5','s6','s7'
RK,RV,RWS,RW1,RWM,RC,RX,ROUT,RDBG = 's[8:11]','s[12:15]','s[16:19]','s[20:23]','s[24:27]','s[28:31]','s[60:63]','s[64:67]','s[68:71]'
RWL='s[92:95]'
sTO='s72'
sPAIR='s73'
sW8='s74'
LOG2E=0x3fb8aa3b
SCALE=0x3db504f3

class G:
    def __init__(self, opt):
        self.L=[]; self.o=opt; self.nl=0; self.nstamp=0
    def __call__(self, s):
        for l in s.split('\n'):
            l=l.strip()
            if l: self.L.append(l)
    def lab(self, p='L'):
        self.nl+=1; return f'{p}_{self.nl}'
    def stamp(self, slot, va='v126', vb='v127'):
        if not self.o.stamps: return
        self(f's_memrealtime s[98:99]\ns_waitcnt lgkmcnt(0)\nv_mov_b32 {va}, {L_STAMP+4*slot}\nv_mov_b32 {vb}, s98\nds_write_b32 {va}, {vb}\ns_waitcnt lgkmcnt(0)')
    def stampw(self, wave, slot):
        if not self.o.stamps: return
        l=self.lab('NSW')
        self(f's_cmp_lg_u32 {sWAVE}, {wave}\ns_cbranch_scc1 {l}')
        self.stamp(slot)
        self(f'{l}:')
    def timeout(self, done):
        self(f's_cmp_eq_u32 {sTO}, 0\ns_cbranch_scc1 {done}\ns_sub_u32 {sTO}, {sTO}, 1')
    def lds_spin(self, vflag, off, target, vt, st='s76', sleep=1):
        a=self.lab('SPIN'); d=self.lab('SPD')
        self(f'{a}:\nds_read_b32 {vt}, {vflag} offset:{off}\ns_waitcnt lgkmcnt(0)\nv_readfirstlane_b32 {st}, {vt}\ns_cmp_ge_u32 {st}, {target}\ns_cbranch_scc1 {d}')
        self.timeout(d)
        if sleep: self(f's_sleep {sleep}')
        self(f's_branch {a}\n{d}:')
    def lds_set(self, vflag, off, val, vt):
        self(f'v_mov_b32 {vt}, {val}\nds_write_b32 {vflag}, {vt} offset:{off}')
    def poll(self, loads, regs, vt, sleep=0):
        a=self.lab('POLL'); d=self.lab('PLD')
        self(f'{a}:')
        for l in loads: self(l)
        self('s_waitcnt vmcnt(0)')
        self.chk(regs, vt)
        self(f's_cbranch_vccz {d}')
        self.timeout(d)
        if sleep: self(f's_sleep {sleep}')
        self(f's_branch {a}\n{d}:')
    def chk(self, regs, vt):
        r=list(regs)
        if len(r)==1:
            self(f'v_cmp_eq_u32 vcc, -1, v{r[0]}'); return
        if len(r)==2:
            self(f'v_max_u32 {vt}, v{r[0]}, v{r[1]}')
        else:
            self(f'v_max3_u32 {vt}, v{r[0]}, v{r[1]}, v{r[2]}')
            r=r[3:]
            while len(r)>=2:
                self(f'v_max3_u32 {vt}, {vt}, v{r[0]}, v{r[1]}'); r=r[2:]
            if r: self(f'v_max_u32 {vt}, {vt}, v{r[0]}')
        self(f'v_cmp_eq_u32 vcc, -1, {vt}')
    def nosent(self, regs):
        for r in regs: self(f'v_min_u32 v{r}, -2, v{r}')
    def pub(self, instr, local_ok=False):
        if local_ok:
            a=self.lab('PUBL'); d=self.lab('PUBD')
            self(f's_cmp_eq_u32 {sMODE}, 1\ns_cbranch_scc1 {a}\n{instr} sc1\ns_branch {d}\n{a}:\n{instr}\n{d}:')
        else:
            self(instr+' sc1')
    def unpack(self, src, dlo, dhi):
        self(f'v_lshlrev_b32 v{dlo}, 16, v{src}\nv_and_b32 v{dhi}, 0xffff0000, v{src}')
    def rnd2(self, a, b, t):
        self(f'v_cvt_pk_bf16_f32 v{t}, v{a}, v{b}')
        self.unpack(t, a, b)
    def wave_red(self, op, regs, tmps):
        for mod in ('quad_perm:[1,0,3,2]','quad_perm:[2,3,0,1]','row_half_mirror','row_mirror'):
            for r in regs: self(f'{op}_dpp v{r}, v{r}, v{r} {mod} row_mask:0xf bank_mask:0xf')
        self.red_rows(op, regs, tmps)
    def red_rows(self, op, regs, tmps):
        for sw in ('v_permlane16_swap_b32','v_permlane32_swap_b32'):
            for r,t in zip(regs,tmps): self(f'v_mov_b32 v{t}, v{r}')
            for r,t in zip(regs,tmps): self(f'{sw} v{r}, v{t}')
            for r,t in zip(regs,tmps): self(f'{op} v{r}, v{r}, v{t}')
    def silu_inplace(self, xs, ts):
        self(f's_mov_b32 s77, 0x{(LOG2E|0x80000000):x}')
        for x,t in zip(xs,ts): self(f'v_mul_f32 v{t}, s77, v{x}')
        for x,t in zip(xs,ts): self(f'v_exp_f32 v{t}, v{t}')
        for x,t in zip(xs,ts): self(f'v_add_f32 v{t}, 1.0, v{t}')
        for x,t in zip(xs,ts): self(f'v_rcp_f32 v{t}, v{t}')
        for x,t in zip(xs,ts): self(f'v_mul_f32 v{x}, v{x}, v{t}')
    def silu8(self, src, x0, t0):
        for i in range(4): self.unpack(src+i, x0+2*i, x0+2*i+1)
        self.silu_inplace(list(range(x0,x0+8)), list(range(t0,t0+8)))
        for i in range(4): self(f'v_cvt_pk_bf16_f32 v{src+i}, v{x0+2*i}, v{x0+2*i+1}')
    def ln8(self, src, x0, t0):
        X=list(range(x0,x0+8)); T=list(range(t0,t0+8)); s1,s2,u1,u2=t0+8,t0+9,t0+10,t0+11
        for i in range(4): self.unpack(src+i, x0+2*i, x0+2*i+1)
        self(f'v_readfirstlane_b32 s77, v{x0}')
        for x,t in zip(X,T): self(f'v_subrev_f32 v{t}, s77, v{x}')
        self(f'v_add_f32 v{s1}, v{T[0]}, v{T[1]}\nv_mul_f32 v{s2}, v{T[0]}, v{T[0]}')
        self(f'v_fmac_f32 v{s2}, v{T[1]}, v{T[1]}')
        for t in T[2:]:
            self(f'v_add_f32 v{s1}, v{s1}, v{t}\nv_fmac_f32 v{s2}, v{t}, v{t}')
        self.wave_red('v_add_f32', [s1,s2], [u1,u2])
        self(f'v_mul_f32 v{s1}, 0x3b000000, v{s1}\nv_mul_f32 v{s2}, 0x3b000000, v{s2}')
        self(f'v_fma_f32 v{s2}, -v{s1}, v{s1}, v{s2}\nv_max_f32 v{s2}, 0, v{s2}\nv_add_f32 v{s1}, s77, v{s1}')
        self.rnd2(s1, s2, u1)
        self(f'v_add_f32 v{s2}, 0x3727c5ac, v{s2}')
        self(f'v_cvt_pk_bf16_f32 v{u1}, v{s2}, v{s2}\nv_lshlrev_b32 v{s2}, 16, v{u1}\nv_sqrt_f32 v{s2}, v{s2}')
        self(f'v_cvt_pk_bf16_f32 v{u1}, v{s2}, v{s2}\nv_lshlrev_b32 v{s2}, 16, v{u1}\nv_rcp_f32 v{s2}, v{s2}')
        for x in X: self(f'v_sub_f32 v{x}, v{x}, v{s1}')
        for i in range(4): self.rnd2(X[2*i], X[2*i+1], T[i])
        for x in X: self(f'v_mul_f32 v{x}, v{x}, v{s2}')
        for i in range(4): self.rnd2(X[2*i], X[2*i+1], T[i])
    def dma_voff(self, ve, vo, pitch, vt):
        self(f'v_lshrrev_b32 {vt}, 3, v1\ns_mov_b32 s77, {pitch}\nv_mul_lo_u32 {ve}, {vt}, s77')
        self(f'v_bfe_u32 {vt}, v1, 4, 1\nv_lshlrev_b32 {vt}, 1, {vt}\nv_and_b32 {vo}, 7, v1\nv_xor_b32 {vt}, {vt}, {vo}\nv_lshlrev_b32 {vt}, 4, {vt}\nv_add_u32 {ve}, {ve}, {vt}\nv_xor_b32 {vo}, 64, {ve}')
    def dma(self, srd, voff, s_src, src_imm, s_lds, lds_imm, nt=True):
        self(f's_add_u32 s78, {s_src}, {src_imm}\ns_add_u32 m0, {s_lds}, {lds_imm}')
        self(f'buffer_load_dwordx4 {voff}, {srd}, s78 offen{" nt" if nt else ""} lds')
    def tr_addr(self, vd, s_ct, base, vt, vt2):
        self(f'v_lshrrev_b32 {vt}, 4, v1\nv_lshlrev_b32 {vd}, 10, {vt}\nv_and_b32 {vt}, 1, {vt}\nv_lshlrev_b32 {vt}, 1, {vt}')
        self(f'v_bfe_u32 {vt2}, v1, 3, 1\nv_or_b32 {vt}, {vt}, {vt2}\nv_xor_b32 {vt}, {s_ct}, {vt}\nv_lshl_add_u32 {vd}, {vt}, 5, {vd}')
        self(f'v_bfe_u32 {vt}, v1, 2, 2\nv_lshl_add_u32 {vd}, {vt}, 7, {vd}\nv_and_b32 {vt}, 3, v1\nv_lshl_add_u32 {vd}, {vt}, 3, {vd}\nv_add_u32 {vd}, {base}, {vd}')
    def tr_frags(self, vaddr, r0, msteps):
        for i,m in enumerate(msteps):
            self(f'ds_read_b64_tr_b16 v[{r0+4*i}:{r0+4*i+1}], {vaddr} offset:{m*4096}\nds_read_b64_tr_b16 v[{r0+4*i+2}:{r0+4*i+3}], {vaddr} offset:{m*4096+512}')
    def act_addr(self, vd, base, pitch, vt):
        self(f'v_and_b32 {vt}, 7, v1\nv_mul_u32_u24 {vd}, {pitch}, {vt}\nv_lshrrev_b32 {vt}, 4, v1\nv_lshl_add_u32 {vd}, {vt}, 4, {vd}\nv_add_u32 {vd}, {base}, {vd}')
    def gemv_tile(self, wf0, nk, vact, a0, d0):
        for m in range(nk): self(f'ds_read_b128 v[{a0+4*m}:{a0+4*m+3}], {vact} offset:{m*64}')
        for m in range(nk):
            self(f's_waitcnt lgkmcnt({min(15,nk-1-m)})')
            c = '0' if m==0 else f'v[{d0}:{d0+3}]'
            self(f'v_mfma_f32_16x16x32_bf16 v[{d0}:{d0+3}], v[{wf0+4*m}:{wf0+4*m+3}], v[{a0+4*m}:{a0+4*m+3}], {c}')
    def part_store_addr(self, vd, s_base, vt):
        self(f'v_and_b32 {vt}, 15, v1\nv_lshlrev_b32 {vd}, 6, {vt}\nv_lshrrev_b32 {vt}, 4, v1\nv_lshl_add_u32 {vd}, {vt}, 4, {vd}\nv_add_u32 {vd}, {s_base}, {vd}')

def build(o):
    g=G(o); A=g
    HALF='s_mov_b32 exec_lo, 0x00ff00ff\ns_mov_b32 exec_hi, 0x00ff00ff'
    HI8='s_mov_b32 vcc_lo, 0xff00ff00\ns_mov_b32 vcc_hi, 0xff00ff00'
    SENT='v_mov_b32 v8, -1\nv_mov_b32 v9, -1\nv_mov_b32 v10, -1\nv_mov_b32 v11, -1\nv_lshlrev_b32 v5, 4, v1'
    def lds_inc(off, vt):
        A(f'v_mov_b32 {vt}, 1\ns_mov_b64 exec, 1\nds_add_u32 v3, {vt} offset:{off}\ns_mov_b64 exec, -1')
    def xor_chk(a0, b0, n, vE, vt):
        for i in range(n): A(f'v_xor_b32 v{b0+i}, v{b0+i}, v{a0+i}')
        A(f'v_xor_b32 {vt}, v{b0}, {vE}')
        for i in range(1,n): A(f'v_bitop3_b32 {vt}, {vt}, v{b0+i}, {vE} bitop3:0xf6')
        A(f'v_cmp_ne_u32 vcc, 0, {vt}')
    def xpoll(loads, a0, b0, n, vE, vt, sleep=0):
        a=g.lab('XP'); d=g.lab('XPD')
        A(f'{a}:')
        for l in loads: A(l)
        A('s_waitcnt vmcnt(0)')
        xor_chk(a0,b0,n,vE,vt)
        A(f's_cbranch_vccz {d}')
        g.timeout(d)
        if sleep: A(f's_sleep {sleep}')
        A(f's_branch {a}\n{d}:')
    def get_E(vd): g.lds_spin('v3', F_E, 1, vd, sleep=1)
    def pair_prep(vaddr, delta, vE, vEm, vt):
        A(HI8)
        A(f'v_mov_b32 {vt}, {delta}\nv_cndmask_b32 {vt}, 0, {vt}, vcc\nv_add_u32 {vaddr}, {vaddr}, {vt}\nv_cndmask_b32 {vEm}, 0, {vE}, vcc')
    def get_mode(vt):
        g.lds_spin('v3', F_MOK, 1, vt, sleep=1)
        A(f'ds_read_b32 {vt}, v3 offset:{F_MODE}\ns_waitcnt lgkmcnt(0)')
        A(f'v_readfirstlane_b32 {sMODE}, {vt}\ns_cmp_eq_u32 {sMODE}, 1\ns_cselect_b64 s[92:93], s[58:59], s[100:101]')
    def blk_dma(srd, n, s_src, pitch, s_lds, ve, vo):
        for i in range(n): g.dma(srd, vo if i&1 else ve, s_src, i*8*pitch, s_lds, i*1024)
    def gemv16(wf, vact, d, ab, order=None):
        def rd(gq):
            for m in range(4): A(f'ds_read_b128 v[{ab[gq&1]+4*m}:{ab[gq&1]+4*m+3}], {vact} offset:{(4*gq+m)*64}')
        rd(0); rd(1)
        for gq in range(4):
            for m in range(4):
                A(f's_waitcnt lgkmcnt({(4 if gq<3 else 0)+3-m})')
                c='0' if (gq==0 and m==0) else f'v[{d}:{d+3}]'
                A(f'v_mfma_f32_16x16x32_bf16 v[{d}:{d+3}], v[{wf+16*gq+4*m}:{wf+16*gq+4*m+3}], v[{ab[gq&1]+4*m}:{ab[gq&1]+4*m+3}], {c}')
            if gq<2: rd(gq+2)
    def clear_all_local(fl):
        A(SENT)
        A(f's_cmp_ge_u32 {sJ}, 2\ns_cbranch_scc1 L_CAK')
        A(f's_lshl_b32 s80, {sPAIR}, 10\ns_lshl_b32 s81, {sJ}, 9\ns_add_u32 s81, s81, s80\ns_add_u32 s81, s81, {OO}\ns_mov_b32 exec_hi, 0')
        A(f'buffer_store_dwordx4 v[8:11], v5, {RWL}, s81 offen{fl}\ns_mov_b64 exec, -1')
        A(f's_cmp_lg_u32 {sJ}, 0\ns_cbranch_scc1 L_CAD\ns_add_u32 s80, s80, {X1}')
        A(f'buffer_store_dwordx4 v[8:11], v5, {RWL}, s80 offen{fl}\ns_branch L_CAD')
        A('L_CAK:')
        A(f's_lshl_b32 s80, {sPAIR}, 14\ns_and_b32 s81, {sJ}, 1\ns_lshl_b32 s82, s81, 13\ns_add_u32 s80, s80, s82')
        for i in range(8):
            if i==4: A('s_add_u32 s80, s80, 4096')
            A(f'buffer_store_dwordx4 v[8:11], v5, {RWL}, s80 offen offset:{(i%4)*1024}{fl}')
        A(f's_lshl_b32 s80, {sPAIR}, 10\ns_lshl_b32 s82, s81, 9\ns_add_u32 s82, s82, s80\ns_add_u32 s82, s82, {ST}\ns_mov_b32 exec_hi, 0')
        A(f'buffer_store_dwordx4 v[8:11], v5, {RWL}, s82 offen{fl}\ns_mov_b64 exec, -1')
        A(f's_cmp_lg_u32 {sJ}, 3\ns_cbranch_scc1 L_CAD\ns_add_u32 s80, s80, {GU}')
        A(f'buffer_store_dwordx4 v[8:11], v5, {RWL}, s80 offen{fl}')
        A('L_CAD:')

    A(f"""s_cmp_ge_u32 s2, 256
s_cbranch_scc1 L_END
s_load_dwordx16 s[32:47], s[0:1], 0
s_load_dwordx8 s[48:55], s[0:1], 64
s_load_dwordx4 s[56:59], s[0:1], 96
v_and_b32 v1, 63, v0
v_lshrrev_b32 v2, 6, v0
v_readfirstlane_b32 {sWAVE}, v2
s_and_b32 {sG}, s2, 7
s_bfe_u32 {sB}, s2, 0x30003
s_lshr_b32 {sJ}, s2, 6
s_mov_b32 {sMODE}, 0
s_mov_b32 {sTO}, 0x200000
s_lshl_b32 {sPAIR}, {sG}, 3
s_add_u32 {sPAIR}, {sPAIR}, {sB}
s_and_b32 {sW8}, {sWAVE}, 7
v_mov_b32 v3, {L_FLAGS}
v_lshl_add_u32 v4, v1, 2, v3
v_mov_b32 v5, 0
s_cmp_lg_u32 {sWAVE}, 0
s_cbranch_scc1 L_NOINIT
ds_write_b32 v4, v5""")
    if o.stamps: A(f'ds_write_b32 v4, v5 offset:{L_STAMP-L_FLAGS}')
    A(f"""L_NOINIT:
s_lshl_b32 s76, {sB}, 24
s_lshl_b32 s77, {sG}, 21
s_add_u32 s76, s76, s77
s_add_u32 s76, s76, 0x180000
s_mov_b32 s10, 0x80000
s_mov_b32 s11, 0x20000
s_mov_b32 s14, 0x1c0000
s_mov_b32 s15, 0x20000
s_mov_b32 s18, {WS_USED}
s_mov_b32 s19, 0x20000
s_mov_b32 s26, 0x300000
s_mov_b32 s27, 0x20000
s_mov_b32 s30, 0x2000
s_mov_b32 s31, 0x20000
s_mov_b32 s62, 0x2000
s_mov_b32 s63, 0x20000
s_mov_b32 s66, 0x2000
s_mov_b32 s67, 0x20000
s_mov_b32 s70, 0x100
s_mov_b32 s71, 0x20000
s_mov_b32 s22, 0x400000
s_mov_b32 s23, 0x20000
s_mov_b32 s94, {LREG}
s_mov_b32 s95, 0x20000
s_cmp_eq_u32 {sJ}, 3
s_cselect_b32 s22, 0x1c0000, s22
s_waitcnt lgkmcnt(0)
s_cmp_ge_u32 {sJ}, 2
s_cselect_b64 s[8:9], s[34:35], s[36:37]
s_add_u32 s8, s8, s76
s_addc_u32 s9, s9, 0
s_mov_b64 s[12:13], s[48:49]
s_mov_b64 s[16:17], s[58:59]
s_mov_b64 s[24:25], s[52:53]
s_mov_b64 s[28:29], s[50:51]
s_mov_b64 s[60:61], s[32:33]
s_mov_b64 s[64:65], s[54:55]
s_mov_b64 s[68:69], s[56:57]
s_mov_b64 s[20:21], s[38:39]
s_cmp_eq_u32 {sJ}, 2
s_cselect_b64 s[20:21], s[40:41], s[20:21]
s_cmp_lt_u32 {sB}, 4
s_cselect_b64 s[76:77], s[44:45], s[46:47]
s_cmp_eq_u32 {sJ}, 3
s_cselect_b64 s[20:21], s[76:77], s[20:21]
s_mov_b64 s[92:93], s[58:59]
s_add_u32 s100, s58, {GOFF}
s_addc_u32 s101, s59, 0""")
    RKV=RK; RWD=RV
    A(f's_cmp_lg_u32 s2, 0\ns_cbranch_scc1 L_NOE\ns_cmp_lg_u32 {sWAVE}, 0\ns_cbranch_scc1 L_NOE')
    A(f's_memrealtime s[96:97]\ns_waitcnt lgkmcnt(0)\ns_or_b32 s76, s96, 1\nv_mov_b32 v5, s76\nv_lshlrev_b32 v6, 7, v1\ns_mov_b64 exec, 3\nbuffer_store_dword v5, v6, {RDBG}, 0 offen sc1\ns_mov_b64 exec, -1')
    A('L_NOE:')
    A(f's_cmp_ge_u32 {sJ}, 2\ns_cbranch_scc1 L_PREK')
    A(f's_cmp_eq_u32 {sWAVE}, 13\ns_cbranch_scc1 L_PRE13\ns_cmp_eq_u32 {sWAVE}, 15\ns_cbranch_scc1 L_PREV15')
    A(f's_cmp_lg_u32 {sJ}, 0\ns_cbranch_scc1 L_B0\ns_cmp_ge_u32 {sWAVE}, 12\ns_cbranch_scc1 L_B0\ns_cmp_ge_u32 {sWAVE}, 8\ns_cbranch_scc1 L_PREC')
    A(f's_and_b32 s80, s2, 15\ns_lshr_b32 s81, s2, 4')
    g.dma_voff('v12','v13',6144,'v14')
    A(f's_lshl_b32 s84, s81, 7\ns_lshl_b32 s85, {sWAVE}, 4\ns_add_u32 s84, s84, s85\ns_mul_i32 s84, s84, 6144\ns_lshl_b32 s85, s80, 7\ns_add_u32 s84, s84, s85')
    A(f's_lshl_b32 s85, {sWAVE}, 11\ns_add_u32 s85, s85, {L_WM}')
    blk_dma(RWM, 2, 's84', 6144, 's85', 'v12', 'v13')
    A(f's_cmp_lt_u32 {sWAVE}, 4\ns_cbranch_scc1 L_B0')
    A(f'v_lshlrev_b32 v4, 4, v1\ns_and_b32 s87, {sWAVE}, 3\ns_lshl_b32 s87, s87, 11')
    A(f'buffer_load_dwordx4 v[88:91], v4, {RX}, s87 offen\nbuffer_load_dwordx4 v[92:95], v4, {RX}, s87 offen offset:1024\ns_branch L_B0')
    A('L_PREC:')
    A(f'v_lshlrev_b32 v4, 4, v1\ns_lshl_b32 s83, {sW8}, 11')
    A(f'buffer_load_dwordx4 v[104:107], v4, {RC}, s83 offen\nbuffer_load_dwordx4 v[100:103], v4, {RC}, s83 offen offset:1024\ns_branch L_B0')
    A('L_PREV15:')
    A(SENT)
    A(f's_lshl_b32 s80, {sPAIR}, 10\ns_lshl_b32 s81, {sJ}, 9\ns_add_u32 s81, s81, s80\ns_add_u32 s81, s81, {OO}\ns_mov_b32 exec_hi, 0')
    A(f'buffer_store_dwordx4 v[8:11], v5, {RWL}, s81 offen\ns_mov_b64 exec, -1')
    A(f's_cmp_lg_u32 {sJ}, 0\ns_cbranch_scc1 L_B0\ns_add_u32 s80, s80, {X1}')
    A(f'buffer_store_dwordx4 v[8:11], v5, {RWL}, s80 offen\ns_branch L_B0')
    A('L_PREK:')
    A(f's_cmp_lt_u32 {sWAVE}, 8\ns_cbranch_scc1 L_B0\ns_cmp_eq_u32 {sWAVE}, 14\ns_cbranch_scc1 L_B0\ns_cmp_eq_u32 {sWAVE}, 13\ns_cbranch_scc1 L_PRE13')
    A(SENT)
    A(f's_and_b32 s81, {sJ}, 1\ns_and_b32 s83, s2, 63\ns_lshl_b32 s83, s83, 11')
    A(f's_cmp_ge_u32 {sWAVE}, 12\ns_cbranch_scc1 L_PREK2')
    A(f's_lshl_b32 s80, {sPAIR}, 14\ns_lshl_b32 s82, s81, 13\ns_add_u32 s80, s80, s82\ns_lshl_b32 s82, {sW8}, 11\ns_add_u32 s80, s80, s82')
    A(f'buffer_store_dwordx4 v[8:11], v5, {RWL}, s80 offen\nbuffer_store_dwordx4 v[8:11], v5, {RWL}, s80 offen offset:1024\ns_branch L_B0')
    A('L_PREK2:')
    A(f's_cmp_eq_u32 {sWAVE}, 15\ns_cbranch_scc1 L_PREK3')
    A(f's_lshl_b32 s80, {sPAIR}, 10\ns_lshl_b32 s82, s81, 9\ns_add_u32 s82, s82, s80\ns_add_u32 s82, s82, {ST}\ns_mov_b32 exec_hi, 0')
    A(f'buffer_store_dwordx4 v[8:11], v5, {RWL}, s82 offen\ns_mov_b64 exec, -1')
    A(f's_cmp_eq_u32 {sJ}, 2\ns_cbranch_scc1 L_PREK4\ns_add_u32 s80, s80, {GU}')
    A(f'buffer_store_dwordx4 v[8:11], v5, {RWL}, s80 offen\ns_branch L_B0')
    A(f'L_PREK4:\ns_add_u32 s80, s83, {WP}\ns_branch L_PREK5')
    A(f'L_PREK3:\ns_cmp_lg_u32 {sJ}, 2\ns_cbranch_scc1 L_B0\ns_add_u32 s80, s83, {DP}')
    A(f'L_PREK5:\nbuffer_store_dwordx4 v[8:11], v5, {RWS}, s80 offen sc1\nbuffer_store_dwordx4 v[8:11], v5, {RWS}, s80 offen offset:1024 sc1\ns_branch L_B0')
    A('L_PRE13:')
    if o.codepf:
        A(f's_getpc_b64 s[80:81]\nL_PC:\ns_sub_u32 s80, s80, L_PC-{NAME}_kernel\ns_subb_u32 s81, s81, 0')
        A(f's_lshr_b32 s82, s2, 3\ns_lshl_b32 s82, s82, 10\nv_lshlrev_b32 v4, 4, v1\nv_add_u32 v4, s82, v4\nv_min_u32 v4, L_CODE_END-{NAME}_kernel-16, v4')
        A('global_load_dwordx4 v[100:103], v4, s[80:81]')
    A('L_B0:\ns_barrier')
    g.stampw(0,0)
    A(f's_cmp_eq_u32 {sWAVE}, 14\ns_cbranch_scc1 L_EP')
    A(f's_cmp_eq_u32 {sWAVE}, 15\ns_cbranch_scc1 L_SYNC')
    A(f's_cmp_eq_u32 {sJ}, 0\ns_cbranch_scc1 L_TC\ns_cmp_eq_u32 {sJ}, 1\ns_cbranch_scc1 L_TD')
    A(f's_cmp_lt_u32 {sWAVE}, 8\ns_cbranch_scc1 L_KPATH\ns_cmp_eq_u32 {sWAVE}, 13\ns_cbranch_scc1 L_KPATH')
    A('s_waitcnt vmcnt(0)')
    lds_inc(F_CLR, 'v5')
    A('s_branch L_KPATH')
    A('L_SYNC:\ns_setprio 3\ns_waitcnt vmcnt(0)')
    get_E('v12')
    A(f's_cmp_lt_u32 {sJ}, 2\ns_cbranch_scc1 L_SY1')
    g.lds_spin('v3', F_CLR, 5, 'v7', sleep=1)
    A('L_SY1:')
    A(f's_getreg_b32 s83, hwreg(HW_REG_XCC_ID)\nv_mov_b32 v13, s83\ns_lshl_b32 s84, s2, 7\ns_add_u32 s84, s84, {FL}\nv_mov_b32 v14, s84')
    A(f's_mov_b64 exec, 1\nbuffer_store_dwordx2 v[12:13], v14, {RWS}, 0 offen sc1\ns_mov_b64 exec, -1')
    g.stamp(4)
    A(f's_setprio 0\ns_cmp_ge_u32 {sJ}, 2\ns_cbranch_scc1 L_KPATH\ns_branch L_VWAIT')
    A('L_EP:\ns_setprio 3')
    A(f's_and_b32 s80, s2, 1\ns_lshl_b32 s80, s80, 7\nv_mov_b32 v9, s80\nL_EPL:\nbuffer_load_dword v12, v9, {RDBG}, 0 offen sc1\ns_waitcnt vmcnt(0)\nv_cmp_eq_u32 vcc, 0, v12\ns_cbranch_vccz L_EPD')
    g.timeout('L_EPD')
    A(f's_branch L_EPL\nL_EPD:\nds_write_b32 v3, v12 offset:{F_E}')
    g.stamp(24)
    A(f's_setprio 0\ns_cmp_ge_u32 {sJ}, 2\ns_cbranch_scc1 L_KPATH')
    A(f's_setprio 3\ns_sleep {o.fldelay}\ns_mov_b32 s79, 0')
    A('L_FLAGS:')
    A(f'v_and_b32 v7, 31, v1\nv_lshlrev_b32 v14, 3, v7\nv_add_u32 v14, {sG}, v14\nv_lshrrev_b32 v15, 3, v7\nv_lshlrev_b32 v15, 6, v15\nv_and_b32 v7, 7, v1\nv_add_u32 v15, v15, v7\ns_lshl_b32 s84, {sB}, 3\nv_add_u32 v15, s84, v15')
    A(f's_mov_b32 vcc_lo, 0\ns_mov_b32 vcc_hi, -1\nv_cndmask_b32 v15, v14, v15, vcc\nv_lshlrev_b32 v15, 7, v15\nv_add_u32 v15, {FL}, v15')
    A(f'L_FLP:\nbuffer_load_dwordx2 v[96:97], v15, {RWS}, 0 offen sc1\ns_waitcnt vmcnt(0)\nv_cmp_ne_u32 vcc, v96, v12\ns_cbranch_vccz L_FLD')
    g.timeout('L_FLD')
    A('s_sleep 8\ns_branch L_FLP\nL_FLD:')
    A('s_getreg_b32 s83, hwreg(HW_REG_XCC_ID)')
    A(f'v_cmp_ne_u32 vcc, s83, v97\ns_cmp_eq_u32 vcc_lo, 0\ns_cselect_b32 s84, {1 if o.local else 0}, 0\nv_mov_b32 v14, s84\ns_cmp_eq_u32 s84, 1\ns_cbranch_scc1 L_FLOK')
    A('s_mov_b64 s[92:93], s[100:101]')
    clear_all_local(' sc1')
    A(f's_lshl_b32 s80, s2, 7\ns_add_u32 s80, s80, {FLB}\nv_mov_b32 v5, s80\ns_mov_b32 s80, {FLB-FL}\ns_waitcnt vmcnt(0)')
    A(f's_mov_b64 exec, 1\nbuffer_store_dword v12, v5, {RWS}, 0 offen sc1\ns_mov_b64 exec, -1')
    A(f'L_FBP:\nbuffer_load_dword v8, v15, {RWS}, s80 offen sc1\ns_waitcnt vmcnt(0)\nv_cmp_ne_u32 vcc, v8, v12\ns_cmp_eq_u32 vcc_lo, 0\ns_cbranch_scc1 L_FLOK')
    g.timeout('L_FLOK')
    A('s_sleep 4\ns_branch L_FBP')
    A(f'L_FLOK:\nds_write_b32 v3, v14 offset:{F_MODE}\ns_waitcnt lgkmcnt(0)')
    g.lds_set('v3', F_MOK, 1, 'v7')
    g.stamp(5)
    A('s_cmp_eq_u32 s79, 1\ns_cbranch_scc1 L_KFLB\ns_setprio 0\ns_branch L_VWAIT')

    A('L_TC:')
    A(f's_cmp_ge_u32 {sWAVE}, 12\ns_cbranch_scc1 L_C_MT\ns_cmp_ge_u32 {sWAVE}, 8\ns_cbranch_scc1 L_C_S\ns_cmp_ge_u32 {sWAVE}, 4\ns_cbranch_scc1 L_C_LN')
    g.tr_addr('v5', sWAVE, L_WM, 'v6', 'v7')
    A(f's_lshl_b32 s84, s81, 8\ns_add_u32 s84, s84, {L_ACT}')
    g.act_addr('v6', 's84', 1056, 'v7')
    A(f's_lshl_b32 s86, s2, 11\ns_lshl_b32 s84, {sWAVE}, 9\ns_add_u32 s86, s86, s84\ns_add_u32 s86, s86, {MP}')
    A('v_and_b32 v7, 7, v1\nv_lshlrev_b32 v4, 6, v7\nv_lshrrev_b32 v7, 4, v1\nv_lshl_add_u32 v4, v7, 4, v4')
    A('s_waitcnt vmcnt(0)')
    lds_inc(F_C1, 'v7')
    get_E('v12')
    pair_prep('v4', MP2-MP, 'v12', 'v12', 'v7')
    g.lds_spin('v3', F_C1, 12, 'v7', sleep=0)
    g.tr_frags('v5', 48, range(4))
    g.gemv_tile(48, 4, 'v6', 64, 80)
    for r in range(4): A(f'v_xor_b32 v{80+r}, v{80+r}, v12')
    A(f'buffer_store_dwordx4 v[80:83], v4, {RWS}, s86 offen sc1')
    lds_inc(F_C1, 'v7')
    g.stampw(0,1)
    A('s_branch L_VWAIT')
    A('L_C_LN:')
    A('s_waitcnt vmcnt(2)')
    lds_inc(F_C1, 'v5')
    A('s_waitcnt vmcnt(0)')
    A(f's_add_u32 s87, s87, {L_Y}\nv_add_u32 v4, s87, v4')
    for k,src in enumerate((88,92)):
        g.ln8(src, 48, 56)
        for i in range(4): A(f'v_cvt_pk_bf16_f32 v{src+i}, v{48+2*i}, v{49+2*i}')
        A(f'ds_write_b128 v4, v[{src}:{src+3}] offset:{k*1024}')
    A('s_waitcnt lgkmcnt(0)')
    lds_inc(F_Y, 'v5')
    A('s_branch L_VWAIT')
    A('L_C_S:')
    A(f's_mul_i32 s85, {sW8}, 2112\ns_add_u32 s85, s85, {L_ACT}\nv_add_u32 v5, s85, v4')
    A('s_waitcnt vmcnt(1)')
    g.silu8(104, 16, 24)
    A('ds_write_b128 v5, v[104:107]\ns_waitcnt vmcnt(0)')
    g.silu8(100, 16, 24)
    A('ds_write_b128 v5, v[100:103] offset:1056\ns_waitcnt lgkmcnt(0)')
    lds_inc(F_C1, 'v5')
    A(f's_cmp_lg_u32 {sWAVE}, 8\ns_cbranch_scc1 L_VWAIT')
    A('s_setprio 3')
    get_E('v15')
    A('v_lshrrev_b32 v7, 4, v1\nv_lshlrev_b32 v5, 14, v7\nv_bfe_u32 v6, v1, 1, 3\nv_lshl_add_u32 v5, v6, 6, v5\nv_and_b32 v7, 1, v1\nv_lshl_add_u32 v5, v7, 4, v5')
    A(f's_lshr_b32 s80, s2, 1\ns_lshl_b32 s80, s80, 9\ns_and_b32 s81, s2, 1\ns_lshl_b32 s81, s81, 5\ns_add_u32 s80, s80, s81\ns_add_u32 s80, s80, {MP}\ns_add_u32 s81, s80, 0x10000\ns_add_u32 s82, s80, {MP2-MP}\ns_add_u32 s83, s81, {MP2-MP}')
    A(f'v_lshlrev_b32 v6, 10, v6\nv_lshl_add_u32 v6, v7, 3, v6\ns_lshl_b32 s84, s2, 4\ns_add_u32 s84, s84, {L_Y}\nv_add_u32 v6, s84, v6')
    A(f'v_and_b32 v7, 15, v1\nv_lshlrev_b32 v8, 3, v7\nv_bfe_u32 v7, v1, 4, 1\nv_mul_u32_u24 v9, {HH2-HH}, v7\nv_add_u32 v8, v8, v9\nv_mul_lo_u32 v9, v7, v15\ns_lshl_b32 s84, s2, 7\ns_add_u32 s84, s84, {HH}')
    g.lds_spin('v3', F_Y, 4, 'v7', sleep=1)
    A('ds_read_b64 v[10:11], v6')
    g.lds_spin('v3', F_C1, 16, 'v7', sleep=1)
    if o.mpdelay: A(f's_sleep {o.mpdelay}')
    xpoll([f'buffer_load_dwordx4 v[{16+4*k}:{19+4*k}], v5, {RWS}, s{80+k} offen sc1' for k in range(4)], 16, 24, 8, 'v15', 'v7', sleep=o.mpsleep)
    for r in range(4): A(f'v_add_f32 v{16+r}, v{16+r}, v{20+r}')
    for r in range(4): A(f'v_mov_b32 v{20+r}, v{16+r}')
    for r in range(4): A(f'v_permlane32_swap_b32 v{16+r}, v{20+r}')
    for r in range(4): A(f'v_add_f32 v{16+r}, v{16+r}, v{20+r}')
    g.rnd2(16,17,12); g.rnd2(18,19,13)
    for r in range(4): A(f'v_mov_b32 v{20+r}, v{16+r}')
    for r in range(4): A(f'v_permlane16_swap_b32 v{16+r}, v{20+r}')
    for r in range(4): A(f'v_add_f32 v{20+r}, 1.0, v{20+r}')
    g.rnd2(20,21,12); g.rnd2(22,23,13)
    g.unpack(10,24,25); g.unpack(11,26,27)
    for r in range(4): A(f'v_mul_f32 v{24+r}, v{24+r}, v{20+r}')
    g.rnd2(24,25,12); g.rnd2(26,27,13)
    for r in range(4): A(f'v_add_f32 v{24+r}, v{24+r}, v{16+r}')
    A('v_cvt_pk_bf16_f32 v10, v24, v25\nv_cvt_pk_bf16_f32 v11, v26, v27\nv_xor_b32 v10, v10, v9\nv_xor_b32 v11, v11, v9\ns_mov_b32 exec_hi, 0')
    A(f'buffer_store_dwordx2 v[10:11], v8, {RWS}, s84 offen sc1\ns_mov_b64 exec, -1')
    g.lds_set('v3', F_R, 1, 'v7')
    A('s_setprio 0')
    g.stamp(25)
    A('s_branch L_VWAIT')
    A('L_C_MT:')
    A(f'v_lshrrev_b32 v7, 2, v1\nv_mul_u32_u24 v12, 6144, v7\nv_and_b32 v7, 3, v1\nv_lshl_add_u32 v12, v7, 4, v12')
    A(f's_and_b32 s85, {sWAVE}, 1\ns_mul_i32 s88, s85, {256*6144}\ns_lshl_b32 s89, {sPAIR}, 6\ns_add_u32 s88, s88, s89\ns_add_u32 s88, s88, 2048\ns_lshl_b32 s89, s85, 14')
    A(f'v_lshrrev_b32 v7, 4, v1\nv_lshlrev_b32 v6, 9, v7\nv_bfe_u32 v7, v1, 2, 2\nv_lshl_add_u32 v6, v7, 6, v6\nv_and_b32 v7, 3, v1\nv_lshl_add_u32 v6, v7, 3, v6\ns_lshl_b32 s84, s85, 5\nv_add_u32 v6, s84, v6')
    g.act_addr('v8', L_ACT, 1056, 'v7')
    A(f'v_and_b32 v7, 7, v1\nv_lshlrev_b32 v9, 12, v7\nv_lshrrev_b32 v7, 4, v1\nv_lshl_add_u32 v9, v7, 3, v9\ns_lshl_b32 s86, {sPAIR}, 6\ns_add_u32 s86, s86, s84\ns_add_u32 s86, s86, {MT}')
    if o.mtearly==0: g.lds_spin('v3', F_R, 1, 'v7', sleep=2)
    A('s_setprio 1')
    for i in range(16): g.dma(RWM, 'v12', 's88', i*16*6144, 's89', L_W+i*1024)
    lds_inc(F_GO, 'v7')
    get_E('v10')
    pair_prep('v9', MT2-MT, 'v10', 'v10', 'v7')
    A('s_waitcnt vmcnt(0)')
    lds_inc(F_SUB, 'v7')
    g.lds_spin('v3', F_SUB, 2, 'v7', sleep=1)
    g.lds_spin('v3', F_C1, 12, 'v7', sleep=1)
    def rdm(gq):
        for m in range(4):
            mm=4*gq+m; o_=16*(gq&1)+4*m
            A(f'ds_read_b64_tr_b16 v[{32+o_}:{33+o_}], v6 offset:{mm*2048}\nds_read_b64_tr_b16 v[{34+o_}:{35+o_}], v6 offset:{mm*2048+256}')
            A(f'ds_read_b128 v[{64+o_}:{67+o_}], v8 offset:{mm*64}')
    rdm(0)
    for gq in range(4):
        if gq<3: rdm(gq+1); A('s_waitcnt lgkmcnt(12)')
        else: A('s_waitcnt lgkmcnt(0)')
        for m in range(4):
            o_=16*(gq&1)+4*m
            c='0' if (gq==0 and m==0) else 'v[12:15]'
            A(f'v_mfma_f32_16x16x32_bf16 v[12:15], v[{32+o_}:{35+o_}], v[{64+o_}:{67+o_}], {c}')
    A('v_cvt_pk_bf16_f32 v100, v12, v13\nv_cvt_pk_bf16_f32 v101, v14, v15\nv_xor_b32 v100, v100, v10\nv_xor_b32 v101, v101, v10')
    A(f'buffer_store_dwordx2 v[100:101], v9, {RWS}, s86 offen sc1\ns_setprio 0')
    A('s_branch L_VW_C')

    A('L_TD:')
    A(f's_cmp_ge_u32 {sWAVE}, 12\ns_cbranch_scc1 L_VWAIT\ns_cmp_ge_u32 {sWAVE}, 8\ns_cbranch_scc1 L_D_H')
    g.dma_voff('v12','v13',8192,'v14')
    A(f's_lshl_b32 s85, {sWAVE}, 13\ns_lshl_b32 s84, {sWAVE}, 19\ns_lshl_b32 s86, {sPAIR}, 7\ns_add_u32 s84, s84, s86')
    blk_dma(RW1, 8, 's84', 8192, 's85', 'v12', 'v13')
    lds_inc(F_GO, 'v7')
    A('s_waitcnt vmcnt(0)')
    lds_inc(F_SUB, 'v7')
    A(f's_cmp_ge_u32 {sWAVE}, 4\ns_cbranch_scc1 L_VWAIT')
    g.tr_addr('v5', sWAVE, L_W, 'v6', 'v7')
    g.act_addr('v6', L_H, 1056, 'v7')
    A(f's_lshl_b32 s86, {sPAIR}, 10\ns_lshl_b32 s84, {sWAVE}, 5\ns_add_u32 s86, s86, s84\ns_add_u32 s86, s86, {QF}')
    A(f'v_and_b32 v7, 7, v1\nv_lshlrev_b32 v4, 7, v7\nv_lshrrev_b32 v7, 4, v1\nv_lshl_add_u32 v4, v7, 3, v4')
    get_E('v12')
    pair_prep('v4', QF2-QF, 'v12', 'v12', 'v7')
    g.lds_spin('v3', F_SUB, 8, 'v7', sleep=1)
    g.tr_frags('v5', 16, range(16))
    g.stampw(0,16)
    get_mode('v7')
    A('s_setprio 3')
    g.lds_spin('v3', F_C3, 4, 'v7', sleep=0)
    gemv16(16, 'v6', 8, [80,96])
    A('v_cvt_pk_bf16_f32 v14, v8, v9\nv_cvt_pk_bf16_f32 v15, v10, v11\nv_xor_b32 v14, v14, v12\nv_xor_b32 v15, v15, v12')
    g.pub(f'buffer_store_dwordx2 v[14:15], v4, {RWS}, s86 offen', True)
    lds_inc(F_VGO, 'v7')
    A('s_setprio 0')
    g.stampw(0,3)
    A('s_branch L_VWAIT')
    A('L_D_H:\ns_setprio 3')
    A(f'v_lshlrev_b32 v4, 4, v1\ns_lshl_b32 s80, {sW8}, 11\ns_add_u32 s81, s80, {HH2}\ns_add_u32 s80, s80, {HH}')
    A(f'v_and_b32 v7, 7, v1\nv_mul_u32_u24 v6, 1056, v7\nv_lshrrev_b32 v7, 3, v1\nv_lshl_add_u32 v6, v7, 4, v6\ns_lshl_b32 s84, {sW8}, 8\ns_add_u32 s84, s84, {L_H}\nv_add_u32 v6, s84, v6')
    get_E('v15')
    g.lds_spin('v3', F_SUB, o.hdelay, 'v7', sleep=1)
    xpoll([f'buffer_load_dwordx4 v[16:19], v4, {RWS}, s80 offen sc1', f'buffer_load_dwordx4 v[20:23], v4, {RWS}, s80 offen offset:1024 sc1',
           f'buffer_load_dwordx4 v[24:27], v4, {RWS}, s81 offen sc1', f'buffer_load_dwordx4 v[28:31], v4, {RWS}, s81 offen offset:1024 sc1'], 16, 24, 8, 'v15', 'v7', sleep=o.mpsleep)
    A('ds_write_b128 v6, v[16:19]\nds_write_b128 v6, v[20:23] offset:128\ns_waitcnt lgkmcnt(0)')
    lds_inc(F_C3, 'v5')
    A('s_setprio 0')
    g.stampw(8,2)
    A('L_VWAIT:')
    A(f's_cmp_eq_u32 {sJ}, 1\ns_cbranch_scc1 L_VW_D')
    pm=0
    for w in o.cpre: pm|=1<<w
    if pm: A(f's_mov_b32 s80, {pm}\ns_lshr_b32 s80, s80, {sWAVE}\ns_bitcmp1_b32 s80, 0\ns_cbranch_scc1 L_VPATH')
    g.lds_spin('v3', F_R, 1, 'v7', sleep=2)
    g.lds_spin('v3', F_GO, 2, 'v7', sleep=1)
    A('L_VW_C:')
    cm=0
    for w in o.cearly: cm|=1<<w
    A(f's_mov_b32 s80, {cm}\ns_lshr_b32 s80, s80, {sWAVE}\ns_bitcmp1_b32 s80, 0\ns_cbranch_scc1 L_VPATH')
    A(f's_cmp_lg_u32 {sWAVE}, 9\ns_cbranch_scc1 L_VW_D2')
    get_E('v12')
    A(f's_lshl_b32 s80, {sPAIR}, 10\ns_add_u32 s80, s80, {QF}\ns_add_u32 s81, s80, {QF2-QF}\nv_mov_b32 v5, 0')
    xpoll([f'buffer_load_dword v16, v5, {RWS}, s80 offen sc1', f'buffer_load_dword v17, v5, {RWS}, s81 offen sc1'], 16, 17, 1, 'v12', 'v7', sleep=4)
    g.lds_set('v3', F_VGO, 4, 'v7')
    A('s_branch L_VPATH\nL_VW_D:')
    em=0
    for w in o.dearly: em|=1<<w
    A(f's_mov_b32 s80, {em}\ns_lshr_b32 s80, s80, {sWAVE}\ns_bitcmp1_b32 s80, 0\ns_cbranch_scc0 L_VW_D2')
    g.lds_spin('v3', F_GO, 8, 'v7', sleep=1)
    A('s_branch L_VPATH\nL_VW_D2:')
    g.lds_spin('v3', F_VGO, 4, 'v7', sleep=2)
    A('L_VPATH:')
    A(f'v_lshrrev_b32 v5, 3, v1\nv_lshlrev_b32 v2, 11, v5\nv_and_b32 v5, 7, v1\nv_lshl_add_u32 v2, v5, 4, v2')
    A(f's_lshl_b32 s80, {sWAVE}, 15\ns_xor_b32 s81, {sJ}, {o.dhswap}\ns_lshl_b32 s81, s81, 7\ns_add_u32 s80, s80, s81\ns_add_u32 s81, s80, 16384')
    for blk in range(2):
        for u in range(8):
            r=8+32*blk+4*u
            A(f'buffer_load_dwordx4 v[{r}:{r+3}], v2, {RKV}, s{80+blk} offen offset:{u*256} nt')
    lds_inc(F_KL, 'v7')
    g.stampw(0,22); g.stampw(11,23)
    if o.stamps:
        A(f's_cmp_lg_u32 {sWAVE}, 15\ns_cbranch_scc1 L_NS26\ns_waitcnt vmcnt(0)')
        g.stamp(26)
        A('L_NS26:')
    A('s_mov_b32 s88, 0x05040100\ns_mov_b32 s89, 0x07060302')
    A(f'v_and_b32 v7, 15, v1\nv_lshlrev_b32 v6, 4, v7\nv_lshrrev_b32 v7, 5, v1\nv_lshl_add_u32 v6, v7, 8, v6')
    A(f's_mul_i32 s84, {sWAVE}, {OPP}\ns_add_u32 s84, s84, {L_OP}\nv_add_u32 v6, s84, v6')
    A(f'v_lshrrev_b32 v7, 4, v1\nv_lshlrev_b32 v4, 7, v7\nv_and_b32 v7, 7, v1\nv_lshl_add_u32 v4, v7, 4, v4\ns_lshl_b32 s84, {sPAIR}, 14\ns_lshl_b32 s85, {sWAVE}, 10\ns_add_u32 s84, s84, s85')
    get_mode('v7')
    PL=[f'buffer_load_dwordx4 v[72:75], v4, {RWL}, s84 offen sc1', f'buffer_load_dwordx4 v[80:83], v4, {RWL}, s84 offen offset:512 sc1']
    PR=[72,73,74,75,80,81,82,83]
    TB=[88,8]
    def perms(blk):
        B=8+32*blk
        for w in range(4):
            t=TB[blk]+8*w
            for a in range(4): A(f'v_perm_b32 v{t+a}, v{B+4*(2*a+1)+w}, v{B+4*(2*a)+w}, s88')
            for a in range(4): A(f'v_perm_b32 v{t+4+a}, v{B+4*(2*a+1)+w}, v{B+4*(2*a)+w}, s89')
    A(f'ds_read_b32 v7, v3 offset:{F_KL}\ns_waitcnt lgkmcnt(0)\nv_readfirstlane_b32 s85, v7\ns_cmp_lt_u32 s85, {o.pgate}\ns_cbranch_scc1 L_PE')
    for l in PL: A(l)
    A('s_waitcnt vmcnt(10)')
    perms(0)
    A('s_waitcnt vmcnt(2)')
    perms(1)
    A('s_waitcnt vmcnt(0)')
    g.chk(PR, 'v7')
    A('s_cbranch_vccz L_PD\ns_branch L_PP')
    A('L_PE:\ns_waitcnt vmcnt(8)')
    perms(0)
    A('s_waitcnt vmcnt(0)')
    perms(1)
    g.lds_spin('v3', F_KL, o.pgate, 'v7', sleep=2)
    A('L_PP:')
    g.poll(PL, PR, 'v7', sleep=o.psleep)
    A('L_PD:')
    g.stampw(0,8); g.stampw(11,9)
    A(HI8)
    for blk in range(2):
        for r in range(4): A(f'v_cndmask_b32 v{76+8*blk+r}, 0, v{72+8*blk+r}, vcc')
    A('s_not_b64 vcc, vcc')
    for blk in range(2):
        for r in range(4): A(f'v_cndmask_b32 v{72+8*blk+r}, 0, v{72+8*blk+r}, vcc')
    Dd=40
    for blk in range(2):
        for q in range(2):
            for w in range(4):
                t=TB[blk]+8*w+4*q; d=Dd+4*w
                c0='0' if (blk==0 and q==0) else f'v[{d}:{d+3}]'
                A(f'v_mfma_f32_16x16x32_bf16 v[{d}:{d+3}], v[{72+8*blk+4*q}:{75+8*blk+4*q}], v[{t}:{t+3}], {c0}')
    A('s_mov_b32 exec_lo, 0xff0000ff\ns_mov_b32 exec_hi, 0xff0000ff')
    for w in range(4): A(f'ds_write_b128 v6, v[{Dd+4*w}:{Dd+4*w+3}] offset:{w*512}')
    A('s_mov_b64 exec, -1')
    A(f'v_lshrrev_b32 v5, 3, v1\nv_mul_u32_u24 v4, {2*OPP}, v5\nv_and_b32 v5, 7, v1\nv_lshl_add_u32 v4, v5, 4, v4\ns_lshl_b32 s85, {sW8}, 8\ns_add_u32 s84, s85, {L_OP}\nv_add_u32 v4, s84, v4')
    A(f'v_lshlrev_b32 v5, 3, v1\ns_lshl_b32 s84, {sPAIR}, 10\ns_lshr_b32 s85, s85, 2\ns_add_u32 s84, s84, s85\ns_lshl_b32 s85, {sJ}, 9\ns_add_u32 s84, s84, s85\ns_add_u32 s84, s84, {OO}')
    g.stampw(14,29); g.stampw(13,30); g.stampw(15,31)
    A('s_waitcnt lgkmcnt(0)\ns_barrier')
    g.stampw(8,28)
    A(f's_cmp_lt_u32 {sWAVE}, 8\ns_cbranch_scc1 L_VT')
    for k in range(4): A(f'ds_read_b128 v[{8+4*k}:{11+4*k}], v4 offset:{(k>>1)*OPP+(k&1)*128}')
    A('s_waitcnt lgkmcnt(0)')
    for r in range(4): A(f'v_add_f32 v{8+r}, v{8+r}, v{12+r}\nv_add_f32 v{16+r}, v{16+r}, v{20+r}')
    for r in range(4): A(f'v_add_f32 v{8+r}, v{8+r}, v{16+r}')
    for r in range(4): A(f'v_add_f32_dpp v{8+r}, v{8+r}, v{8+r} row_ror:8 row_mask:0xf bank_mask:0xf')
    g.red_rows('v_add_f32', [8,9,10,11], [12,13,14,15])
    A('v_cvt_pk_bf16_f32 v12, v8, v9\nv_cvt_pk_bf16_f32 v13, v10, v11')
    g.nosent([12,13])
    A('s_mov_b64 exec, 0xff')
    g.pub(f'buffer_store_dwordx2 v[12:13], v5, {RWL}, s84 offen', True)
    A('s_mov_b64 exec, -1')
    g.stampw(8,10)
    if o.stamps:
        A(f's_cmp_lg_u32 {sJ}, 1\ns_cbranch_scc1 L_END\ns_cmp_eq_u32 {sWAVE}, 8\ns_cbranch_scc1 L_DUMP')
    A('s_branch L_END')
    A('L_VT:')
    A(f's_cmp_lg_u32 {sJ}, 0\ns_cbranch_scc1 L_END\ns_cmp_ge_u32 {sWAVE}, 3\ns_cbranch_scc1 L_END')
    A(f'ds_read_b32 v13, v3 offset:{F_E}')
    A(f's_cmp_eq_u32 {sWAVE}, 2\ns_cbranch_scc1 L_FIN')
    A(f'v_lshlrev_b32 v4, 4, v1\ns_lshl_b32 s80, {sWAVE}, 10\nv_add_u32 v4, s80, v4')
    A(f'v_bfe_u32 v6, v1, 2, 3\nv_lshrrev_b32 v7, 5, v1\nv_lshlrev_b32 v7, 5, v7\nv_and_b32 v8, 3, v1\nv_lshl_add_u32 v7, v8, 3, v7\ns_lshl_b32 s81, {sWAVE}, 6\nv_add_u32 v7, s81, v7')
    A(f'v_lshl_add_u32 v5, v6, 10, v7\ns_lshl_b32 s81, {sB}, 7\nv_lshl_add_u32 v9, v6, 12, v7\ns_add_u32 s80, s81, {MT}')
    A(f'buffer_load_dwordx2 v[56:57], v5, {RX}, s81 offen')
    A(f's_add_u32 s81, s80, {MT2-MT}\ns_waitcnt lgkmcnt(0)')
    xpoll([f'buffer_load_dwordx2 v[60:61], v9, {RWS}, s80 offen sc1', f'buffer_load_dwordx2 v[62:63], v9, {RWS}, s81 offen sc1'], 60, 62, 2, 'v13', 'v12')
    g.unpack(60,48,49); g.unpack(61,50,51)
    g.unpack(56,52,53); g.unpack(57,54,55)
    A(f'v_lshl_add_u32 v5, v6, 7, v7\ns_lshl_b32 s82, {sPAIR}, 10\ns_add_u32 s82, s82, {X1}')
    A(f'v_lshlrev_b32 v8, 1, v5\nv_add_u32 v8, {L_X1S}, v8')
    A(f's_lshl_b32 s80, {sB}, 14\ns_add_u32 s80, s80, {WP}')
    for k in range(4): A(f's_add_u32 s{88+k}, s80, {k*4096}')
    g.poll([f'buffer_load_dwordx4 v[{16+4*k}:{19+4*k}], v4, {RWS}, s{88+(k>>1)} offen offset:{(k&1)*2048} sc1' for k in range(8)], range(16,48), 'v12')
    for r in range(4):
        A(f'v_add_f32 v{16+r}, v{16+r}, v{20+r}\nv_add_f32 v{24+r}, v{24+r}, v{28+r}\nv_add_f32 v{32+r}, v{32+r}, v{36+r}\nv_add_f32 v{40+r}, v{40+r}, v{44+r}')
        A(f'v_add_f32 v{16+r}, v{16+r}, v{24+r}\nv_add_f32 v{32+r}, v{32+r}, v{40+r}\nv_add_f32 v{16+r}, v{16+r}, v{32+r}')
    g.rnd2(16,17,12); g.rnd2(18,19,13)
    for r in range(4): A(f'v_mul_f32 v{16+r}, v{16+r}, v{48+r}')
    g.rnd2(16,17,12); g.rnd2(18,19,13)
    for r in range(4): A(f'v_add_f32 v{16+r}, v{16+r}, v{52+r}')
    g.rnd2(16,17,12); g.rnd2(18,19,13)
    g.nosent([12,13])
    g.pub(f'buffer_store_dwordx2 v[12:13], v5, {RWL}, s82 offen', True)
    A('ds_write_b128 v8, v[16:19]')
    g.stampw(0,12)
    A('s_waitcnt lgkmcnt(0)\ns_barrier')
    A('s_branch L_END')
    A('L_FIN:')
    A(f'v_lshrrev_b32 v5, 4, v1\nv_lshlrev_b32 v4, 9, v5\nv_and_b32 v5, 15, v1\nv_lshl_add_u32 v4, v5, 2, v4\ns_lshl_b32 s80, {sG}, 6\nv_add_u32 v4, s80, v4')
    A(f's_lshl_b32 s80, {sG}, 12\ns_lshl_b32 s81, {sB}, 7\ns_add_u32 s80, s80, s81\ns_add_u32 s80, s80, {MT+3072}\nv_lshrrev_b32 v5, 1, v1\nv_lshlrev_b32 v5, 2, v5')
    A(f's_add_u32 s81, s80, {MT2-MT}\ns_waitcnt lgkmcnt(0)')
    xpoll([f'buffer_load_dword v50, v5, {RWS}, s80 offen sc1', f'buffer_load_dword v51, v5, {RWS}, s81 offen sc1'], 50, 51, 1, 'v13', 'v12', sleep=4)
    g.unpack(50,48,49)
    A('s_mov_b32 vcc_lo, 0xaaaaaaaa\ns_mov_b32 vcc_hi, 0xaaaaaaaa\nv_cndmask_b32 v48, v48, v49, vcc')
    A(f's_lshl_b32 s80, {sB}, 14\ns_add_u32 s80, s80, {DP}')
    for k in range(4): A(f's_add_u32 s{88+k}, s80, {k*4096}')
    A(f's_lshl_b32 s81, {sG}, 8\ns_add_u32 s81, s81, {L_X1S}\nv_lshlrev_b32 v6, 2, v1\nv_add_u32 v6, s81, v6')
    A(f'v_lshlrev_b32 v7, 1, v1\ns_lshl_b32 s82, {sG}, 10\ns_lshl_b32 s83, {sB}, 7\ns_add_u32 s82, s82, s83')
    A('s_barrier')
    A('ds_read_b32 v50, v6')
    g.poll([f'buffer_load_dword v{16+k}, v4, {RWS}, s{88+(k>>1)} offen offset:{(k&1)*2048} sc1' for k in range(7)], range(16,23), 'v12')
    A('v_add_f32 v16, v16, v17\nv_add_f32 v18, v18, v19\nv_add_f32 v20, v20, v21\nv_add_f32 v16, v16, v18\nv_add_f32 v20, v20, v22\nv_add_f32 v16, v16, v20')
    g.rnd2(16,17,12)
    A('v_mul_f32 v16, v16, v48')
    g.rnd2(16,17,12)
    A('s_waitcnt lgkmcnt(0)\nv_add_f32 v16, v16, v50\nv_cvt_pk_bf16_f32 v12, v16, v16')
    A(f'buffer_store_short v12, v7, {ROUT}, s82 offen')
    g.stamp(15)
    A('s_branch L_DUMP')

    A('L_KPATH:')
    KST={'lin':4096,'int':65536,'g4':16384}[o.kmap]
    A(f'v_lshlrev_b32 v4, 4, v1\ns_and_b32 s86, {sJ}, 1\ns_lshl_b32 s80, s86, 18')
    def tile0(d, t):
        if o.kmap=='lin': A(f's_lshl_b32 {d}, {sWAVE}, 2')
        elif o.kmap=='int': A(f's_mov_b32 {d}, {sWAVE}')
        else: A(f's_lshr_b32 {d}, {sWAVE}, 2\ns_lshl_b32 {d}, {d}, 4\ns_and_b32 {t}, {sWAVE}, 3\ns_add_u32 {d}, {d}, {t}')
    tile0('s81','s82')
    A('s_lshl_b32 s81, s81, 12\ns_add_u32 s80, s80, s81')
    if o.thr:
        A(f's_cmp_lt_u32 {sWAVE}, {o.thrw}\ns_cbranch_scc1 L_KGO')
        g.lds_spin('v3', F_GO, o.thrw, 'v5', sleep=1)
        A('L_KGO:')
    for T in range(4):
        if T: A(f's_add_u32 s80, s80, {KST}')
        if o.thr and 1<=T<=o.thr:
            l=g.lab('KT')
            A(f's_cmp_ge_u32 {sWAVE}, {o.thrw}\ns_cbranch_scc1 {l}\ns_waitcnt vmcnt(0)')
            if T==o.thr: lds_inc(F_GO, 'v5')
            A(f'{l}:')
        for m in range(4):
            r=16+16*T+4*m
            A(f'buffer_load_dwordx4 v[{r}:{r+3}], v4, {RKV}, s80 offen offset:{m*1024} nt')
    g.stampw(11,20)
    A(f's_mul_i32 s81, {sWAVE}, {KS_SZ}\ns_add_u32 s81, s81, {L_KS}')
    A('v_lshrrev_b32 v6, 4, v1\nv_and_b32 v7, 15, v1\nv_mul_u32_u24 v4, 272, v6\nv_lshl_add_u32 v4, v7, 4, v4\nv_add_u32 v4, s81, v4')
    A('v_mul_u32_u24 v5, 272, v7\nv_lshl_add_u32 v5, v6, 4, v5\nv_add_u32 v5, s81, v5')
    for T in range(4):
        A(f's_waitcnt vmcnt({12-4*T})')
        for m in range(4): A(f'ds_write_b128 v4, v[{16+16*T+4*m}:{19+16*T+4*m}] offset:{m*1088}')
        A('s_waitcnt lgkmcnt(0)')
        for m in range(4): A(f'ds_read_b128 v[{16+16*T+4*m}:{19+16*T+4*m}], v5 offset:{m*64}')
        A('s_waitcnt lgkmcnt(0)')
    lds_inc(F_KL, 'v7')
    g.stampw(15,18); g.stampw(3,21)
    A('s_setprio 2')
    A(f's_cmp_gt_u32 {sWAVE}, {o.nq}\ns_cbranch_scc1 L_QPX')
    get_E('v12')
    A(f's_cmp_lg_u32 {sWAVE}, 1\ns_cbranch_scc1 L_QP0\ns_mov_b32 s79, 1\ns_branch L_FLAGS\nL_KFLB:\ns_branch L_QPX\nL_QP0:')
    A(f's_lshl_b32 s80, {sG}, 13\ns_lshl_b32 s81, {sB}, 7\ns_add_u32 s80, s80, s81\ns_add_u32 s80, s80, {QF}\ns_add_u32 s81, s80, {QF2-QF}')
    A(f'v_lshrrev_b32 v6, 3, v1\nv_lshlrev_b32 v5, 10, v6\nv_and_b32 v7, 7, v1\nv_lshl_add_u32 v5, v7, 4, v5')
    A(f'v_lshrrev_b32 v6, 4, v1\nv_mul_u32_u24 v13, 272, v6\nv_and_b32 v7, 15, v1\nv_lshl_add_u32 v13, v7, 4, v13\nv_add_u32 v13, {L_Q}, v13')
    if o.qdelay: g.lds_spin('v3', F_KL, o.qdelay, 'v7', sleep=2)
    for w in range(2,o.nq+1):
        A(f's_cmp_lt_u32 {sWAVE}, {w}\ns_cbranch_scc1 L_QPL\ns_sleep {o.qstag}')
    A('L_QPL:')
    A(f'ds_read_b32 v7, v3 offset:{F_QREADY}\ns_waitcnt lgkmcnt(0)\nv_readfirstlane_b32 s76, v7\ns_cmp_lg_u32 s76, 0\ns_cbranch_scc1 L_QPX')
    A(f'buffer_load_dwordx4 v[96:99], v5, {RWS}, s80 offen sc1\nbuffer_load_dwordx4 v[100:103], v5, {RWS}, s81 offen sc1\ns_waitcnt vmcnt(0)')
    xor_chk(96, 100, 4, 'v12', 'v7')
    A('s_cbranch_vccz L_QPD')
    g.timeout('L_QPD')
    if o.qsleep: A(f's_sleep {o.qsleep}')
    A('s_branch L_QPL\nL_QPD:')
    A('ds_write_b128 v13, v[96:99]\ns_waitcnt lgkmcnt(0)')
    g.lds_set('v3', F_QREADY, 1, 'v7')
    A('L_QPX:')
    A(f'v_and_b32 v6, 3, v1\nv_mul_u32_u24 v6, 272, v6\nv_lshrrev_b32 v7, 4, v1\nv_lshl_add_u32 v6, v7, 4, v6\nv_add_u32 v6, {L_Q}, v6')
    A(f'v_bfe_u32 v5, v1, 2, 2\nv_lshlrev_b32 v4, {(KST//32).bit_length()-1}, v5\nv_lshrrev_b32 v5, 5, v1\nv_lshl_add_u32 v4, v5, 6, v4\nv_and_b32 v5, 3, v1\nv_lshl_add_u32 v4, v5, 4, v4\nv_bfe_u32 v5, v1, 4, 1\nv_lshl_add_u32 v4, v5, 3, v4')
    A(f's_and_b32 s86, {sJ}, 1\ns_lshl_b32 s81, {sPAIR}, 14\ns_lshl_b32 s82, s86, 13\ns_add_u32 s81, s81, s82')
    tile0('s82','s83')
    A('s_lshl_b32 s82, s82, 7\ns_add_u32 s81, s81, s82')
    A(f'v_and_b32 v5, 3, v1\nv_lshlrev_b32 v5, 3, v5\ns_lshl_b32 s82, {sPAIR}, 10\ns_add_u32 s82, s82, {ST}\ns_lshl_b32 s84, s86, 9\ns_add_u32 s83, s82, s84\ns_xor_b32 s84, s84, 512\ns_add_u32 s82, s82, s84')
    A(f'v_lshlrev_b32 v14, 3, v1\nv_add_u32 v14, {L_X1S}, v14\ns_lshl_b32 s84, {sWAVE}, 5\nv_add_u32 v13, s84, v14\nv_add_u32 v15, {L_X1S+512}, v5')
    get_mode('v7')
    g.lds_spin('v3', F_QREADY, 1, 'v7', sleep=1)
    g.stampw(4,6)
    for m in range(4): A(f'ds_read_b128 v[{96+4*m}:{99+4*m}], v6 offset:{m*64}')
    for m in range(4):
        A(f's_waitcnt lgkmcnt({3-m})')
        for T in range(4):
            r=16+16*T+4*m; d=80+4*T
            c='0' if m==0 else f'v[{d}:{d+3}]'
            A(f'v_mfma_f32_16x16x32_bf16 v[{d}:{d+3}], v[{r}:{r+3}], v[{96+4*m}:{99+4*m}], {c}')
    for T in range(1,4):
        mk = 0x000f000f << (4*T)
        A(f's_mov_b32 vcc_lo, 0x{mk:x}\ns_mov_b32 vcc_hi, 0x{mk:x}')
        for r in range(4): A(f'v_cndmask_b32 v{80+r}, v{80+r}, v{80+4*T+r}, vcc')
    g.rnd2(80,81,8); g.rnd2(82,83,9)
    for r in range(4): A(f'v_mul_f32 v{80+r}, 0x{SCALE:x}, v{80+r}')
    g.rnd2(80,81,8); g.rnd2(82,83,9)
    A('v_max3_f32 v10, v80, v81, v82\nv_max_f32 v10, v10, v83')
    A('v_max_f32_dpp v10, v10, v10 row_ror:4 row_mask:0xf bank_mask:0xf\nv_max_f32_dpp v10, v10, v10 row_ror:8 row_mask:0xf bank_mask:0xf')
    g.red_rows('v_max_f32', [10], [12])
    for r in range(4): A(f'v_sub_f32 v{80+r}, v{80+r}, v10')
    for r in range(4): A(f'v_mul_f32 v{80+r}, 0x{LOG2E:x}, v{80+r}')
    for r in range(4): A(f'v_exp_f32 v{80+r}, v{80+r}')
    A('v_add_f32 v11, v80, v81\nv_add_f32 v12, v82, v83\nv_add_f32 v11, v11, v12')
    A('v_add_f32_dpp v11, v11, v11 row_ror:4 row_mask:0xf bank_mask:0xf\nv_add_f32_dpp v11, v11, v11 row_ror:8 row_mask:0xf bank_mask:0xf')
    g.red_rows('v_add_f32', [11], [12])
    A('s_mov_b64 exec, 15\nds_write_b64 v13, v[10:11]\ns_mov_b64 exec, -1\ns_waitcnt lgkmcnt(0)\ns_barrier')
    A(f's_cmp_lg_u32 {sWAVE}, 0\ns_cbranch_scc1 L_STW')
    A('ds_read_b64 v[24:25], v14\ns_waitcnt lgkmcnt(0)')
    A('v_max_f32_dpp v20, v24, v24 row_ror:4 row_mask:0xf bank_mask:0xf\nv_max_f32_dpp v20, v20, v20 row_ror:8 row_mask:0xf bank_mask:0xf')
    g.red_rows('v_max_f32', [20], [12])
    A(f'v_sub_f32 v24, v24, v20\nv_mul_f32 v24, 0x{LOG2E:x}, v24\nv_exp_f32 v24, v24\nv_mul_f32 v21, v24, v25')
    A('v_add_f32_dpp v21, v21, v21 row_ror:4 row_mask:0xf bank_mask:0xf\nv_add_f32_dpp v21, v21, v21 row_ror:8 row_mask:0xf bank_mask:0xf')
    g.red_rows('v_add_f32', [21], [12])
    g.nosent([20,21])
    A('s_mov_b64 exec, 15')
    g.pub(f'buffer_store_dwordx2 v[20:21], v5, {RWL}, s83 offen', True)
    A('s_mov_b64 exec, -1')
    g.stamp(19)
    g.poll([f'buffer_load_dwordx2 v[26:27], v5, {RWL}, s82 offen sc1'], [26,27], 'v12', sleep=o.stsleep)
    A('v_max_f32 v28, v20, v26')
    A(f'v_sub_f32 v24, v20, v28\nv_sub_f32 v26, v26, v28\nv_mul_f32 v24, 0x{LOG2E:x}, v24\nv_mul_f32 v26, 0x{LOG2E:x}, v26\nv_exp_f32 v24, v24\nv_exp_f32 v26, v26')
    A('v_mul_f32 v21, v24, v21\nv_mul_f32 v27, v26, v27\nv_add_f32 v21, v21, v27')
    A('v_rcp_f32 v29, v21\nv_fma_f32 v30, -v21, v29, 1.0\nv_fmac_f32 v29, v30, v29')
    A('ds_write_b64 v15, v[28:29]\ns_waitcnt lgkmcnt(0)')
    A('L_STW:\ns_barrier')
    A('ds_read_b64 v[28:29], v15\ns_waitcnt lgkmcnt(0)')
    A(f'v_sub_f32 v10, v10, v28\nv_mul_f32 v10, 0x{LOG2E:x}, v10\nv_exp_f32 v10, v10\nv_mul_f32 v10, v10, v29')
    for r in range(4): A(f'v_mul_f32 v{80+r}, v{80+r}, v10')
    A('v_cvt_pk_bf16_f32 v8, v80, v81\nv_cvt_pk_bf16_f32 v9, v82, v83')
    g.nosent([8,9])
    g.pub(f'buffer_store_dwordx2 v[8:9], v4, {RWL}, s81 offen', True)
    g.stampw(15,7)
    A('s_barrier')
    A(f's_cmp_eq_u32 {sJ}, 3\ns_cbranch_scc1 L_KW3')
    g.dma_voff('v12','v13',1024,'v14')
    A('v_and_b32 v16, 0x7f, v12\nv_bfe_u32 v14, v1, 3, 2\nv_lshl_add_u32 v16, v14, 17, v16\nv_lshrrev_b32 v14, 5, v1\nv_lshl_add_u32 v16, v14, 13, v16\nv_xor_b32 v17, 64, v16')
    A(f's_lshl_b32 s82, {sG}, 19\ns_lshl_b32 s83, {sW8}, 10\ns_add_u32 s82, s82, s83\ns_lshr_b32 s83, {sWAVE}, 3\ns_lshl_b32 s83, s83, 16\ns_add_u32 s82, s82, s83\ns_lshl_b32 s84, {sB}, 7\ns_add_u32 s82, s82, s84\ns_lshl_b32 s83, {sWAVE}, 12')
    blk_dma(RW1, 4, 's82', 2048, 's83', 'v16', 'v17')
    if not o.dnlate:
        A(f's_cmp_eq_u32 {sG}, 7\ns_cbranch_scc1 L_KWD0')
        A(f's_lshl_b32 s82, {sG}, 18\ns_lshl_b32 s83, {sWAVE}, 14\ns_add_u32 s82, s82, s83\ns_add_u32 s82, s82, s84\ns_lshl_b32 s83, {sWAVE}, 11\ns_add_u32 s83, s83, {L_W2}')
        blk_dma(RWD, 2, 's82', 1024, 's83', 'v12', 'v13')
        A('s_waitcnt vmcnt(2)\ns_branch L_KWD1\nL_KWD0:\ns_waitcnt vmcnt(0)\nL_KWD1:\ns_barrier')
    else:
        A('s_waitcnt vmcnt(0)\ns_barrier')
    A(f's_and_b32 s82, s2, 63\ns_and_b32 s84, {sWAVE}, 3')
    A(f's_cmp_ge_u32 {sWAVE}, 12\ns_cbranch_scc1 L_WO\ns_cmp_ge_u32 {sWAVE}, 8\ns_cbranch_scc1 L_DN')
    A(f'v_lshlrev_b32 v4, 4, v1\ns_lshl_b32 s80, {sG}, 13\ns_lshl_b32 s81, {sWAVE}, 10\ns_add_u32 s80, s80, s81\ns_add_u32 s85, s80, {GU}\ns_add_u32 s80, s80, {OO}')
    A(f's_mul_i32 s81, {sWAVE}, 1056\ns_add_u32 s81, s81, {L_ACT}\nv_add_u32 v5, s81, v4')
    A(f'v_bfe_u32 v7, v1, 1, 3\nv_mul_u32_u24 v6, 544, v7\nv_lshrrev_b32 v7, 4, v1\nv_lshl_add_u32 v6, v7, 5, v6\nv_and_b32 v7, 1, v1\nv_lshl_add_u32 v6, v7, 4, v6\ns_lshl_b32 s82, {sWAVE}, 7\ns_add_u32 s82, s82, {L_ACT2}\nv_add_u32 v6, s82, v6\ns_add_u32 s86, s85, 4096')
    g.poll([f'buffer_load_dwordx4 v[16:19], v4, {RWL}, s80 offen sc1'], range(16,20), 'v12', sleep=o.osleep)
    A('ds_write_b128 v5, v[16:19]\ns_waitcnt lgkmcnt(0)\ns_barrier')
    A(f's_cmp_ge_u32 {sWAVE}, 4\ns_cbranch_scc1 L_END\ns_cmp_eq_u32 {sG}, 7\ns_cbranch_scc1 L_END')
    g.poll([f'buffer_load_dwordx4 v[16:19], v4, {RWL}, s85 offen sc1', f'buffer_load_dwordx4 v[20:23], v4, {RWL}, s86 offen sc1'], range(16,24), 'v12')
    for i in range(8): g.unpack(16+i, 32+2*i, 33+2*i)
    for i in range(8): A(f'v_mul_f32 v{32+i}, v{32+i}, v{40+i}')
    for i in range(4): A(f'v_cvt_pk_bf16_f32 v{16+i}, v{32+2*i}, v{33+2*i}')
    A('ds_write_b128 v6, v[16:19]\ns_waitcnt lgkmcnt(0)\ns_barrier')
    A('s_branch L_END')
    A('L_WO:')
    g.tr_addr('v5', 's84', L_W, 'v6', 'v7')
    g.tr_frags('v5', 16, range(16))
    g.act_addr('v6', L_ACT, 1056, 'v7')
    A(f's_lshl_b32 s83, s82, 11\ns_lshl_b32 s85, s84, 9\ns_add_u32 s83, s83, s85\ns_add_u32 s83, s83, {WP}')
    g.part_store_addr('v4', 's83', 'v7')
    A('s_waitcnt vmcnt(0) lgkmcnt(0)\ns_barrier')
    gemv16(16, 'v6', 8, [80,96])
    g.nosent(range(8,12))
    A(HALF)
    A(f'buffer_store_dwordx4 v[8:11], v4, {RWS}, 0 offen sc1')
    A('s_mov_b64 exec, -1')
    lds_inc(F_C3, 'v7')
    g.stampw(12,11)
    if o.stamps:
        A(f's_cmp_lg_u32 {sG}, 7\ns_cbranch_scc1 L_END\ns_cmp_eq_u32 {sWAVE}, 12\ns_cbranch_scc1 L_DUMP')
    A('s_branch L_END')
    A('L_DN:')
    g.tr_addr('v5', 's84', L_W2, 'v6', 'v7')
    g.act_addr('v6', L_ACT2, 544, 'v7')
    A(f's_lshl_b32 s83, s82, 11\ns_lshl_b32 s85, s84, 9\ns_add_u32 s83, s83, s85\ns_add_u32 s83, s83, {DP}')
    g.part_store_addr('v4', 's83', 'v7')
    A('s_waitcnt vmcnt(0)\ns_barrier')
    A(f's_cmp_eq_u32 {sG}, 7\ns_cbranch_scc1 L_END')
    if o.dnlate:
        A(f's_lshl_b32 s82, {sG}, 18\ns_lshl_b32 s83, s84, 16\ns_add_u32 s82, s82, s83\ns_lshl_b32 s83, {sB}, 7\ns_add_u32 s82, s82, s83\ns_lshl_b32 s83, s84, 13\ns_add_u32 s83, s83, {L_W2}')
        g.lds_spin('v3', F_C3, 4, 'v7', sleep=1)
        blk_dma(RWD, 8, 's82', 1024, 's83', 'v12', 'v13')
        A('s_waitcnt vmcnt(0)')
        lds_inc(F_SUB, 'v7')
        g.lds_spin('v3', F_SUB, 4, 'v7', sleep=0)
    g.tr_frags('v5', 16, range(8))
    A('s_waitcnt lgkmcnt(0)\ns_barrier')
    g.gemv_tile(16, 8, 'v6', 48, 8)
    g.nosent(range(8,12))
    A(HALF)
    A(f'buffer_store_dwordx4 v[8:11], v4, {RWS}, 0 offen sc1')
    A('s_mov_b64 exec, -1')
    g.stampw(8,14)
    if o.stamps:
        A(f's_cmp_eq_u32 {sWAVE}, 8\ns_cbranch_scc1 L_DUMP')
    A('s_branch L_END')
    A('L_KW3:')
    if o.stamps:
        A(f's_cmp_lg_u32 {sG}, 7\ns_cbranch_scc1 L_KW3a\ns_cmp_eq_u32 {sWAVE}, 15\ns_cbranch_scc1 L_DUMP\ns_branch L_END\nL_KW3a:')
    else:
        A(f's_cmp_eq_u32 {sG}, 7\ns_cbranch_scc1 L_END')
    g.dma_voff('v12','v13',3584,'v14')
    A(f's_mul_i32 s82, {sWAVE}, {32*3584}\ns_lshl_b32 s83, {sG}, 2\ns_and_b32 s84, {sB}, 3\ns_add_u32 s83, s83, s84\ns_lshl_b32 s83, s83, 7\ns_add_u32 s82, s82, s83\ns_lshl_b32 s83, {sWAVE}, 12')
    if o.gulate:
        if o.gulate==1:
            A(f's_cmp_lg_u32 {sWAVE}, 0\ns_cbranch_scc1 L_GUW\ns_lshl_b32 s80, {sPAIR}, 10\ns_add_u32 s80, s80, {OO}\nv_mov_b32 v5, 0')
            g.poll([f'buffer_load_dword v16, v5, {RWL}, s80 offen sc1'], [16], 'v7', sleep=4)
        else:
            A(f's_cmp_lg_u32 {sWAVE}, 0\ns_cbranch_scc1 L_GUW\ns_lshl_b32 s80, {sG}, 13\ns_add_u32 s80, s80, {OO}\nv_and_b32 v5, 15, v1\nv_lshlrev_b32 v5, 9, v5')
            A(f'L_GUP:\nbuffer_load_dword v16, v5, {RWL}, s80 offen sc1\ns_waitcnt vmcnt(0)\nv_cmp_ne_u32 vcc, -1, v16\ns_and_b32 s81, vcc_lo, 0xffff\ns_bcnt1_i32_b32 s81, s81\ns_cmp_ge_u32 s81, {o.gulate-1}\ns_cbranch_scc1 L_GUW')
            g.timeout('L_GUW')
            A('s_sleep 4\ns_branch L_GUP')
        A('L_GUW:\ns_barrier')
    if o.gutr:
        for i in range(4):
            g.dma(RW1, 'v13' if i&1 else 'v12', 's82', i*8*3584, 's83', i*1024)
            A('s_waitcnt vmcnt(0)')
    else:
        blk_dma(RW1, 4, 's82', 3584, 's83', 'v12', 'v13')
    A('s_waitcnt vmcnt(0)\ns_barrier')
    A(f's_cmp_ge_u32 {sWAVE}, 12\ns_cbranch_scc1 L_GU\ns_cmp_ge_u32 {sWAVE}, 8\ns_cbranch_scc1 L_END')
    A(f'v_lshlrev_b32 v4, 4, v1\ns_lshl_b32 s80, {sWAVE}, 12\ns_add_u32 s80, s80, {MT}\ns_add_u32 s81, s80, {MT2-MT}')
    A(f'ds_read_b32 v13, v3 offset:{F_E}\ns_waitcnt lgkmcnt(0)')
    xpoll([f'buffer_load_dwordx4 v[48:51], v4, {RWS}, s80 offen offset:1024 sc1', f'buffer_load_dwordx4 v[52:55], v4, {RWS}, s80 offen offset:2048 sc1',
           f'buffer_load_dwordx4 v[56:59], v4, {RWS}, s81 offen offset:1024 sc1', f'buffer_load_dwordx4 v[60:63], v4, {RWS}, s81 offen offset:2048 sc1'], 48, 56, 8, 'v13', 'v12', sleep=8)
    for i in range(8): g.unpack(48+i, 32+2*i, 33+2*i)
    for i in range(8): A(f'v_add_f32 v{40+i}, 1.0, v{40+i}')
    for i in range(4): g.rnd2(40+2*i,41+2*i,13)
    A(f's_mul_i32 s81, {sWAVE}, 1056\ns_add_u32 s81, s81, {L_ACT}\nv_add_u32 v5, s81, v4')
    A(f'v_lshrrev_b32 v7, 3, v1\nv_lshlrev_b32 v4, 10, v7\nv_and_b32 v7, 7, v1\nv_lshl_add_u32 v4, v7, 4, v4')
    A(f's_lshl_b32 s80, {sG}, 13\ns_lshl_b32 s81, {sWAVE}, 7\ns_add_u32 s80, s80, s81\ns_add_u32 s80, s80, {X1}')
    g.poll([f'buffer_load_dwordx4 v[8:11], v4, {RWL}, s80 offen sc1'], range(8,12), 'v12', sleep=o.osleep)
    g.ln8(8, 16, 48)
    for i in range(8): A(f'v_mul_f32 v{16+i}, v{16+i}, v{40+i}')
    for i in range(4): g.rnd2(16+2*i,17+2*i,48+i)
    for i in range(8): A(f'v_add_f32 v{16+i}, v{16+i}, v{32+i}')
    for i in range(4): A(f'v_cvt_pk_bf16_f32 v{8+i}, v{16+2*i}, v{17+2*i}')
    A('ds_write_b128 v5, v[8:11]\ns_waitcnt lgkmcnt(0)\ns_barrier')
    A('s_branch L_END')
    A('L_GU:')
    A(f's_and_b32 s84, {sWAVE}, 3')
    g.tr_addr('v5', 's84', L_W, 'v6', 'v7')
    g.tr_frags('v5', 16, range(16))
    g.act_addr('v6', L_ACT, 1056, 'v7')
    A(f's_lshl_b32 s83, {sPAIR}, 10\ns_lshl_b32 s85, s84, 8\ns_add_u32 s83, s83, s85\ns_add_u32 s83, s83, {GU}')
    A('v_and_b32 v7, 15, v1\nv_lshlrev_b32 v4, 5, v7\nv_lshrrev_b32 v7, 4, v1\nv_lshl_add_u32 v4, v7, 3, v4')
    A('s_waitcnt lgkmcnt(0)\ns_barrier')
    gemv16(16, 'v6', 8, [80,96])
    g.rnd2(8,9,12); g.rnd2(10,11,13)
    A(f's_cmp_ge_u32 {sB}, 4\ns_cbranch_scc1 L_T2U')
    g.silu_inplace([8,9,10,11],[16,17,18,19])
    A('v_cvt_pk_bf16_f32 v12, v8, v9\nv_cvt_pk_bf16_f32 v13, v10, v11')
    A('L_T2U:')
    g.nosent([12,13])
    A(HALF)
    g.pub(f'buffer_store_dwordx2 v[12:13], v4, {RWL}, s83 offen', True)
    A('s_mov_b64 exec, -1')
    g.stampw(12,13)
    if o.stamps:
        A(f's_cmp_lg_u32 {sWAVE}, 12\ns_cbranch_scc1 L_END')
    A('L_DUMP:')
    if o.stamps:
        A(f'v_lshlrev_b32 v4, 2, v1\nv_add_u32 v5, {L_STAMP}, v4\nds_read_b32 v6, v5\nv_mov_b32 v7, 0\nv_lshlrev_b32 v4, 3, v1')
        A(f's_add_u32 s80, s58, 0x{STAMP:x}\ns_addc_u32 s81, s59, 0\ns_lshl_b32 s82, s2, 8\ns_add_u32 s80, s80, s82\ns_addc_u32 s81, s81, 0')
        A('s_waitcnt lgkmcnt(0)\ns_mov_b32 exec_hi, 0\nglobal_store_dwordx2 v4, v[6:7], s[80:81]')
        if o.dbgst:
            A('s_mov_b64 exec, -1\nv_mov_b32 v8, 0')
            for i,sl in enumerate(o.dbgst): A(f'v_writelane_b32 v8, {sl}, {i+1}')
            A(f'v_lshlrev_b32 v8, 2, v8\nv_add_u32 v8, {L_STAMP}, v8\nds_read_b32 v9, v8\nds_read_b32 v10, v3 offset:{F_E}\nv_lshlrev_b32 v11, 2, v1\ns_waitcnt lgkmcnt(0)')
            A(f'v_cmp_ne_u32 vcc, 0, v9\nv_sub_u32 v9, v9, v10\nv_add_u32 v9, 1000, v9\ns_and_b32 exec_lo, vcc_lo, 0xfffe\ns_mov_b32 exec_hi, 0\ns_cbranch_execz L_END')
            A(f'buffer_atomic_umax v9, v11, {RDBG}, 0 offen sc1')
    A('L_END:\ns_endpgm\nL_CODE_END:')
    return g.L

def emit(o, fname):
    body = build(o)
    body, n = fix_hazards(body)
    hdr = open('cdna_kernels/'+NAME+'.s.ref').read().split('; Override launch')[0]
    out = hdr + f'; @launch grid=(256,1,1) block=(1024,1,1) lds={LDS_SIZE}\n'
    out += f'.amdgcn_target "amdgcn-amd-amdhsa--gfx950"\n.text\n.globl {NAME}_kernel\n.p2align 8\n.type {NAME}_kernel,@function\n{NAME}_kernel:\n'
    out += '\n'.join(('' if l.endswith(':') else '    ')+l for l in body) + '\n'
    out += f'''.section .rodata,"a"
.p2align 6
.amdhsa_kernel {NAME}_kernel
  .amdhsa_next_free_vgpr 128
  .amdhsa_next_free_sgpr 102
  .amdhsa_accum_offset 128
  .amdhsa_group_segment_fixed_size 0
  .amdhsa_kernarg_size 112
  .amdhsa_user_sgpr_count 2
  .amdhsa_user_sgpr_kernarg_segment_ptr 1
  .amdhsa_system_sgpr_workgroup_id_x 1
  .amdhsa_float_denorm_mode_32 3
  .amdhsa_float_denorm_mode_16_64 3
.end_amdhsa_kernel
'''
    open(fname,'w').write(out)
    print(fname, len(body), 'lines', n, 'nops inserted')

if __name__=='__main__':
    ap=argparse.ArgumentParser()
    ap.add_argument('-o', default='k.s')
    ap.add_argument('--stamps', action='store_true')
    ap.add_argument('--local', action='store_true')
    for k,d in dict(codepf=1,mpdelay=0,mpsleep=2,fldelay=80,hdelay=8,mtearly=0,pgate=12,psleep=4,thr=0,thrw=4,qdelay=8,qsleep=2,stsleep=0,osleep=0,gulate=2,nq=1,qstag=24,dnlate=1,gutr=0,dhswap=0).items():
        ap.add_argument('--'+k, type=int, default=d)
    ap.add_argument('--dearly', type=lambda x:[int(t) for t in x.split(',') if t], default=[4,5,6,7])
    ap.add_argument('--cearly', type=lambda x:[int(t) for t in x.split(',') if t], default=list(range(16)))
    ap.add_argument('--cpre', type=lambda x:[int(t) for t in x.split(',') if t], default=[])
    ap.add_argument('--dbgst', type=lambda x:[int(t) for t in x.split(',') if t], default=[])
    ap.add_argument('--kmap', default='int')
    o=ap.parse_args()
    emit(o, o.o)
```

```python
import sys, argparse
from asmlib import fix_hazards
NAME='adaLN_cond__sliding_block_cached__swiglu_ffn__decode'

PP=0x000000; OO=0x100000; ST=0x110000; X1=0x120000; GU=0x130000; LREG=0x140000; GOFF=0x180000
QF=0x300000; QF2=0x310000; HH=0x320000; HH2=0x322000; MT=0x400000; MT2=0x420000; WP=0x440000; DP=0x460000
MP=0x480000; MP2=0x4A0000; FL=0x4C0000; FLB=0x4C8000; WS_USED=0x4D0000
STAMP=0x10000000
L_W=0x0; L_W2=0x10000; L_WM=0x10000; L_KS=0x0; KS_SZ=4352
L_OP=0x16000; OPP=2112
L_Y=0x14000; L_H=0x18000
L_ACT=0x20000; L_ACT2=0x18000; L_Q=0x22200; L_FLAGS=0x22800; L_X1S=0x22900; L_STAMP=0x23100; LDS_SIZE=0x23400
F_QREADY=4; F_MODE=8; F_E=12; F_SUB=16; F_Y=20; F_C1=24; F_C3=28; F_CLR=32; F_MOK=36; F_R=40; F_GO=44; F_VGO=48; F_KL=52
sWAVE,sG,sB,sJ,sMODE = 's3','s4','s5','s6','s7'
RK,RV,RWS,RW1,RWM,RC,RX,ROUT,RDBG = 's[8:11]','s[12:15]','s[16:19]','s[20:23]','s[24:27]','s[28:31]','s[60:63]','s[64:67]','s[68:71]'
RWL='s[92:95]'
sTO='s72'
sPAIR='s73'
sW8='s74'
LOG2E=0x3fb8aa3b
SCALE=0x3db504f3

class G:
    def __init__(self, opt):
        self.L=[]; self.o=opt; self.nl=0; self.nstamp=0
    def __call__(self, s):
        for l in s.split('\n'):
            l=l.strip()
            if l: self.L.append(l)
    def lab(self, p='L'):
        self.nl+=1; return f'{p}_{self.nl}'
    def stamp(self, slot, va='v126', vb='v127'):
        if not self.o.stamps: return
        self(f's_memrealtime s[98:99]\ns_waitcnt lgkmcnt(0)\nv_mov_b32 {va}, {L_STAMP+4*slot}\nv_mov_b32 {vb}, s98\nds_write_b32 {va}, {vb}\ns_waitcnt lgkmcnt(0)')
    def stampw(self, wave, slot):
        if not self.o.stamps: return
        l=self.lab('NSW')
        self(f's_cmp_lg_u32 {sWAVE}, {wave}\ns_cbranch_scc1 {l}')
        self.stamp(slot)
        self(f'{l}:')
    def timeout(self, done):
        self(f's_cmp_eq_u32 {sTO}, 0\ns_cbranch_scc1 {done}\ns_sub_u32 {sTO}, {sTO}, 1')
    def lds_spin(self, vflag, off, target, vt, st='s76', sleep=1):
        a=self.lab('SPIN'); d=self.lab('SPD')
        self(f'{a}:\nds_read_b32 {vt}, {vflag} offset:{off}\ns_waitcnt lgkmcnt(0)\nv_readfirstlane_b32 {st}, {vt}\ns_cmp_ge_u32 {st}, {target}\ns_cbranch_scc1 {d}')
        self.timeout(d)
        if sleep: self(f's_sleep {sleep}')
        self(f's_branch {a}\n{d}:')
    def lds_set(self, vflag, off, val, vt):
        self(f'v_mov_b32 {vt}, {val}\nds_write_b32 {vflag}, {vt} offset:{off}')
    def poll(self, loads, regs, vt, sleep=0):
        a=self.lab('POLL'); d=self.lab('PLD')
        self(f'{a}:')
        for l in loads: self(l)
        self('s_waitcnt vmcnt(0)')
        self.chk(regs, vt)
        self(f's_cbranch_vccz {d}')
        self.timeout(d)
        if sleep: self(f's_sleep {sleep}')
        self(f's_branch {a}\n{d}:')
    def chk(self, regs, vt):
        r=list(regs)
        if len(r)==1:
            self(f'v_cmp_eq_u32 vcc, -1, v{r[0]}'); return
        if len(r)==2:
            self(f'v_max_u32 {vt}, v{r[0]}, v{r[1]}')
        else:
            self(f'v_max3_u32 {vt}, v{r[0]}, v{r[1]}, v{r[2]}')
            r=r[3:]
            while len(r)>=2:
                self(f'v_max3_u32 {vt}, {vt}, v{r[0]}, v{r[1]}'); r=r[2:]
            if r: self(f'v_max_u32 {vt}, {vt}, v{r[0]}')
        self(f'v_cmp_eq_u32 vcc, -1, {vt}')
    def nosent(self, regs):
        for r in regs: self(f'v_min_u32 v{r}, -2, v{r}')
    def pub(self, instr, local_ok=False):
        if local_ok:
            a=self.lab('PUBL'); d=self.lab('PUBD')
            self(f's_cmp_eq_u32 {sMODE}, 1\ns_cbranch_scc1 {a}\n{instr} sc1\ns_branch {d}\n{a}:\n{instr}\n{d}:')
        else:
            self(instr+' sc1')
    def unpack(self, src, dlo, dhi):
        self(f'v_lshlrev_b32 v{dlo}, 16, v{src}\nv_and_b32 v{dhi}, 0xffff0000, v{src}')
    def rnd2(self, a, b, t):
        self(f'v_cvt_pk_bf16_f32 v{t}, v{a}, v{b}')
        self.unpack(t, a, b)
    def wave_red(self, op, regs, tmps):
        for mod in ('quad_perm:[1,0,3,2]','quad_perm:[2,3,0,1]','row_half_mirror','row_mirror'):
            for r in regs: self(f'{op}_dpp v{r}, v{r}, v{r} {mod} row_mask:0xf bank_mask:0xf')
        self.red_rows(op, regs, tmps)
    def red_rows(self, op, regs, tmps):
        for sw in ('v_permlane16_swap_b32','v_permlane32_swap_b32'):
            for r,t in zip(regs,tmps): self(f'v_mov_b32 v{t}, v{r}')
            for r,t in zip(regs,tmps): self(f'{sw} v{r}, v{t}')
            for r,t in zip(regs,tmps): self(f'{op} v{r}, v{r}, v{t}')
    def silu_inplace(self, xs, ts):
        self(f's_mov_b32 s77, 0x{(LOG2E|0x80000000):x}')
        for x,t in zip(xs,ts): self(f'v_mul_f32 v{t}, s77, v{x}')
        for x,t in zip(xs,ts): self(f'v_exp_f32 v{t}, v{t}')
        for x,t in zip(xs,ts): self(f'v_add_f32 v{t}, 1.0, v{t}')
        for x,t in zip(xs,ts): self(f'v_rcp_f32 v{t}, v{t}')
        for x,t in zip(xs,ts): self(f'v_mul_f32 v{x}, v{x}, v{t}')
    def silu8(self, src, x0, t0):
        for i in range(4): self.unpack(src+i, x0+2*i, x0+2*i+1)
        self.silu_inplace(list(range(x0,x0+8)), list(range(t0,t0+8)))
        for i in range(4): self(f'v_cvt_pk_bf16_f32 v{src+i}, v{x0+2*i}, v{x0+2*i+1}')
    def ln8(self, src, x0, t0):
        X=list(range(x0,x0+8)); T=list(range(t0,t0+8)); s1,s2,u1,u2=t0+8,t0+9,t0+10,t0+11
        for i in range(4): self.unpack(src+i, x0+2*i, x0+2*i+1)
        self(f'v_readfirstlane_b32 s77, v{x0}')
        for x,t in zip(X,T): self(f'v_subrev_f32 v{t}, s77, v{x}')
        self(f'v_add_f32 v{s1}, v{T[0]}, v{T[1]}\nv_mul_f32 v{s2}, v{T[0]}, v{T[0]}')
        self(f'v_fmac_f32 v{s2}, v{T[1]}, v{T[1]}')
        for t in T[2:]:
            self(f'v_add_f32 v{s1}, v{s1}, v{t}\nv_fmac_f32 v{s2}, v{t}, v{t}')
        self.wave_red('v_add_f32', [s1,s2], [u1,u2])
        self(f'v_mul_f32 v{s1}, 0x3b000000, v{s1}\nv_mul_f32 v{s2}, 0x3b000000, v{s2}')
        self(f'v_fma_f32 v{s2}, -v{s1}, v{s1}, v{s2}\nv_max_f32 v{s2}, 0, v{s2}\nv_add_f32 v{s1}, s77, v{s1}')
        self.rnd2(s1, s2, u1)
        self(f'v_add_f32 v{s2}, 0x3727c5ac, v{s2}')
        self(f'v_cvt_pk_bf16_f32 v{u1}, v{s2}, v{s2}\nv_lshlrev_b32 v{s2}, 16, v{u1}\nv_sqrt_f32 v{s2}, v{s2}')
        self(f'v_cvt_pk_bf16_f32 v{u1}, v{s2}, v{s2}\nv_lshlrev_b32 v{s2}, 16, v{u1}\nv_rcp_f32 v{s2}, v{s2}')
        for x in X: self(f'v_sub_f32 v{x}, v{x}, v{s1}')
        for i in range(4): self.rnd2(X[2*i], X[2*i+1], T[i])
        for x in X: self(f'v_mul_f32 v{x}, v{x}, v{s2}')
        for i in range(4): self.rnd2(X[2*i], X[2*i+1], T[i])
    def dma_voff(self, ve, vo, pitch, vt):
        self(f'v_lshrrev_b32 {vt}, 3, v1\ns_mov_b32 s77, {pitch}\nv_mul_lo_u32 {ve}, {vt}, s77')
        self(f'v_bfe_u32 {vt}, v1, 4, 1\nv_lshlrev_b32 {vt}, 1, {vt}\nv_and_b32 {vo}, 7, v1\nv_xor_b32 {vt}, {vt}, {vo}\nv_lshlrev_b32 {vt}, 4, {vt}\nv_add_u32 {ve}, {ve}, {vt}\nv_xor_b32 {vo}, 64, {ve}')
    def dma(self, srd, voff, s_src, src_imm, s_lds, lds_imm, nt=True):
        self(f's_add_u32 s78, {s_src}, {src_imm}\ns_add_u32 m0, {s_lds}, {lds_imm}')
        self(f'buffer_load_dwordx4 {voff}, {srd}, s78 offen{" nt" if nt else ""} lds')
    def tr_addr(self, vd, s_ct, base, vt, vt2):
        self(f'v_lshrrev_b32 {vt}, 4, v1\nv_lshlrev_b32 {vd}, 10, {vt}\nv_and_b32 {vt}, 1, {vt}\nv_lshlrev_b32 {vt}, 1, {vt}')
        self(f'v_bfe_u32 {vt2}, v1, 3, 1\nv_or_b32 {vt}, {vt}, {vt2}\nv_xor_b32 {vt}, {s_ct}, {vt}\nv_lshl_add_u32 {vd}, {vt}, 5, {vd}')
        self(f'v_bfe_u32 {vt}, v1, 2, 2\nv_lshl_add_u32 {vd}, {vt}, 7, {vd}\nv_and_b32 {vt}, 3, v1\nv_lshl_add_u32 {vd}, {vt}, 3, {vd}\nv_add_u32 {vd}, {base}, {vd}')
    def tr_frags(self, vaddr, r0, msteps):
        for i,m in enumerate(msteps):
            self(f'ds_read_b64_tr_b16 v[{r0+4*i}:{r0+4*i+1}], {vaddr} offset:{m*4096}\nds_read_b64_tr_b16 v[{r0+4*i+2}:{r0+4*i+3}], {vaddr} offset:{m*4096+512}')
    def act_addr(self, vd, base, pitch, vt):
        self(f'v_and_b32 {vt}, 7, v1\nv_mul_u32_u24 {vd}, {pitch}, {vt}\nv_lshrrev_b32 {vt}, 4, v1\nv_lshl_add_u32 {vd}, {vt}, 4, {vd}\nv_add_u32 {vd}, {base}, {vd}')
    def gemv_tile(self, wf0, nk, vact, a0, d0):
        for m in range(nk): self(f'ds_read_b128 v[{a0+4*m}:{a0+4*m+3}], {vact} offset:{m*64}')
        for m in range(nk):
            self(f's_waitcnt lgkmcnt({min(15,nk-1-m)})')
            c = '0' if m==0 else f'v[{d0}:{d0+3}]'
            self(f'v_mfma_f32_16x16x32_bf16 v[{d0}:{d0+3}], v[{wf0+4*m}:{wf0+4*m+3}], v[{a0+4*m}:{a0+4*m+3}], {c}')
    def part_store_addr(self, vd, s_base, vt):
        self(f'v_and_b32 {vt}, 15, v1\nv_lshlrev_b32 {vd}, 6, {vt}\nv_lshrrev_b32 {vt}, 4, v1\nv_lshl_add_u32 {vd}, {vt}, 4, {vd}\nv_add_u32 {vd}, {s_base}, {vd}')

def build(o):
    g=G(o); A=g
    HALF='s_mov_b32 exec_lo, 0x00ff00ff\ns_mov_b32 exec_hi, 0x00ff00ff'
    HI8='s_mov_b32 vcc_lo, 0xff00ff00\ns_mov_b32 vcc_hi, 0xff00ff00'
    SENT='v_mov_b32 v8, -1\nv_mov_b32 v9, -1\nv_mov_b32 v10, -1\nv_mov_b32 v11, -1\nv_lshlrev_b32 v5, 4, v1'
    def lds_inc(off, vt):
        A(f'v_mov_b32 {vt}, 1\ns_mov_b64 exec, 1\nds_add_u32 v3, {vt} offset:{off}\ns_mov_b64 exec, -1')
    def xor_chk(a0, b0, n, vE, vt):
        for i in range(n): A(f'v_xor_b32 v{b0+i}, v{b0+i}, v{a0+i}')
        A(f'v_xor_b32 {vt}, v{b0}, {vE}')
        for i in range(1,n): A(f'v_bitop3_b32 {vt}, {vt}, v{b0+i}, {vE} bitop3:0xf6')
        A(f'v_cmp_ne_u32 vcc, 0, {vt}')
    def xpoll(loads, a0, b0, n, vE, vt, sleep=0):
        a=g.lab('XP'); d=g.lab('XPD')
        A(f'{a}:')
        for l in loads: A(l)
        A('s_waitcnt vmcnt(0)')
        xor_chk(a0,b0,n,vE,vt)
        A(f's_cbranch_vccz {d}')
        g.timeout(d)
        if sleep: A(f's_sleep {sleep}')
        A(f's_branch {a}\n{d}:')
    def get_E(vd): g.lds_spin('v3', F_E, 1, vd, sleep=1)
    def pair_prep(vaddr, delta, vE, vEm, vt):
        A(HI8)
        A(f'v_mov_b32 {vt}, {delta}\nv_cndmask_b32 {vt}, 0, {vt}, vcc\nv_add_u32 {vaddr}, {vaddr}, {vt}\nv_cndmask_b32 {vEm}, 0, {vE}, vcc')
    def get_mode(vt):
        g.lds_spin('v3', F_MOK, 1, vt, sleep=1)
        A(f'ds_read_b32 {vt}, v3 offset:{F_MODE}\ns_waitcnt lgkmcnt(0)')
        A(f'v_readfirstlane_b32 {sMODE}, {vt}\ns_cmp_eq_u32 {sMODE}, 1\ns_cselect_b64 s[92:93], s[58:59], s[100:101]')
    def blk_dma(srd, n, s_src, pitch, s_lds, ve, vo):
        for i in range(n): g.dma(srd, vo if i&1 else ve, s_src, i*8*pitch, s_lds, i*1024)
    def gemv16(wf, vact, d, ab, order=None):
        def rd(gq):
            for m in range(4): A(f'ds_read_b128 v[{ab[gq&1]+4*m}:{ab[gq&1]+4*m+3}], {vact} offset:{(4*gq+m)*64}')
        rd(0); rd(1)
        for gq in range(4):
            for m in range(4):
                A(f's_waitcnt lgkmcnt({(4 if gq<3 else 0)+3-m})')
                c='0' if (gq==0 and m==0) else f'v[{d}:{d+3}]'
                A(f'v_mfma_f32_16x16x32_bf16 v[{d}:{d+3}], v[{wf+16*gq+4*m}:{wf+16*gq+4*m+3}], v[{ab[gq&1]+4*m}:{ab[gq&1]+4*m+3}], {c}')
            if gq<2: rd(gq+2)
    def clear_all_local(fl):
        A(SENT)
        A(f's_cmp_ge_u32 {sJ}, 2\ns_cbranch_scc1 L_CAK')
        A(f's_lshl_b32 s80, {sPAIR}, 10\ns_lshl_b32 s81, {sJ}, 9\ns_add_u32 s81, s81, s80\ns_add_u32 s81, s81, {OO}\ns_mov_b32 exec_hi, 0')
        A(f'buffer_store_dwordx4 v[8:11], v5, {RWL}, s81 offen{fl}\ns_mov_b64 exec, -1')
        A(f's_cmp_lg_u32 {sJ}, 0\ns_cbranch_scc1 L_CAD\ns_add_u32 s80, s80, {X1}')
        A(f'buffer_store_dwordx4 v[8:11], v5, {RWL}, s80 offen{fl}\ns_branch L_CAD')
        A('L_CAK:')
        A(f's_lshl_b32 s80, {sPAIR}, 14\ns_and_b32 s81, {sJ}, 1\ns_lshl_b32 s82, s81, 13\ns_add_u32 s80, s80, s82')
        for i in range(8):
            if i==4: A('s_add_u32 s80, s80, 4096')
            A(f'buffer_store_dwordx4 v[8:11], v5, {RWL}, s80 offen offset:{(i%4)*1024}{fl}')
        A(f's_lshl_b32 s80, {sPAIR}, 10\ns_lshl_b32 s82, s81, 9\ns_add_u32 s82, s82, s80\ns_add_u32 s82, s82, {ST}\ns_mov_b32 exec_hi, 0')
        A(f'buffer_store_dwordx4 v[8:11], v5, {RWL}, s82 offen{fl}\ns_mov_b64 exec, -1')
        A(f's_cmp_lg_u32 {sJ}, 3\ns_cbranch_scc1 L_CAD\ns_add_u32 s80, s80, {GU}')
        A(f'buffer_store_dwordx4 v[8:11], v5, {RWL}, s80 offen{fl}')
        A('L_CAD:')

    if o.stamps: A('s_memrealtime s[90:91]')
    A(f"""s_cmp_ge_u32 s2, 256
s_cbranch_scc1 L_END
s_load_dwordx16 s[32:47], s[0:1], 0
s_load_dwordx8 s[48:55], s[0:1], 64
s_load_dwordx4 s[56:59], s[0:1], 96
v_and_b32 v1, 63, v0
v_lshrrev_b32 v2, 6, v0
v_readfirstlane_b32 {sWAVE}, v2
s_and_b32 {sG}, s2, 7
s_bfe_u32 {sB}, s2, 0x30003
s_lshr_b32 {sJ}, s2, 6
s_mov_b32 {sMODE}, 0
s_mov_b32 {sTO}, 0x200000
s_lshl_b32 {sPAIR}, {sG}, 3
s_add_u32 {sPAIR}, {sPAIR}, {sB}
s_and_b32 {sW8}, {sWAVE}, 7
v_mov_b32 v3, {L_FLAGS}
v_lshl_add_u32 v4, v1, 2, v3
v_mov_b32 v5, 0
s_cmp_lg_u32 {sWAVE}, 0
s_cbranch_scc1 L_NOINIT
ds_write_b32 v4, v5""")
    if o.stamps: A(f'ds_write_b32 v4, v5 offset:{L_STAMP-L_FLAGS}')
    A(f"""L_NOINIT:
s_lshl_b32 s76, {sB}, 24
s_lshl_b32 s77, {sG}, 21
s_add_u32 s76, s76, s77
s_add_u32 s76, s76, 0x180000
s_mov_b32 s10, 0x80000
s_mov_b32 s11, 0x20000
s_mov_b32 s14, 0x1c0000
s_mov_b32 s15, 0x20000
s_mov_b32 s18, {WS_USED}
s_mov_b32 s19, 0x20000
s_mov_b32 s26, 0x300000
s_mov_b32 s27, 0x20000
s_mov_b32 s30, 0x2000
s_mov_b32 s31, 0x20000
s_mov_b32 s62, 0x2000
s_mov_b32 s63, 0x20000
s_mov_b32 s66, 0x2000
s_mov_b32 s67, 0x20000
s_mov_b32 s70, 0x100
s_mov_b32 s71, 0x20000
s_mov_b32 s22, 0x400000
s_mov_b32 s23, 0x20000
s_mov_b32 s94, {LREG}
s_mov_b32 s95, 0x20000
s_cmp_eq_u32 {sJ}, 3
s_cselect_b32 s22, 0x1c0000, s22
v_lshlrev_b32 v4, 4, v1
s_and_b32 s86, {sJ}, 1
s_lshl_b32 s80, s86, 18
s_lshl_b32 s81, {sWAVE}, 12
s_add_u32 s80, s80, s81
s_or_b32 s81, s2, {sWAVE}
s_memrealtime s[96:97]
s_waitcnt lgkmcnt(0)
s_mov_b64 s[68:69], s[56:57]
s_cmp_lg_u32 s81, 0
s_cbranch_scc1 L_NOE
s_or_b32 s81, s96, 1
v_mov_b32 v5, s81
v_lshlrev_b32 v6, 7, v1
s_mov_b64 exec, 3
buffer_store_dword v5, v6, {RDBG}, 0 offen sc1
s_mov_b64 exec, -1
L_NOE:
s_cmp_ge_u32 {sJ}, 2
s_cselect_b64 s[8:9], s[34:35], s[36:37]
s_add_u32 s8, s8, s76
s_addc_u32 s9, s9, 0""")
    RKV=RK; RWD=RV
    assert o.kmap=='int'
    if o.kpre:
        A(f's_cmp_lt_u32 {sJ}, 2\ns_cbranch_scc1 L_NKP\ns_cmp_ge_u32 {sWAVE}, 8\ns_cbranch_scc1 L_NKP')
        for T in range(o.kpre):
            if T: A('s_add_u32 s80, s80, 65536')
            for m in range(4): A(f'buffer_load_dwordx4 v[{16+16*T+4*m}:{19+16*T+4*m}], v4, {RKV}, s80 offen offset:{m*1024} nt')
        A('L_NKP:')
    A(f"""s_mov_b64 s[24:25], s[52:53]
s_mov_b64 s[28:29], s[50:51]
s_mov_b64 s[60:61], s[32:33]
s_mov_b64 s[92:93], s[58:59]
s_mov_b64 s[16:17], s[58:59]
s_mov_b64 s[12:13], s[48:49]
s_mov_b64 s[64:65], s[54:55]
s_mov_b64 s[20:21], s[38:39]
s_cmp_eq_u32 {sJ}, 2
s_cselect_b64 s[20:21], s[40:41], s[20:21]
s_cmp_lt_u32 {sB}, 4
s_cselect_b64 s[76:77], s[44:45], s[46:47]
s_cmp_eq_u32 {sJ}, 3
s_cselect_b64 s[20:21], s[76:77], s[20:21]
s_add_u32 s100, s58, {GOFF}
s_addc_u32 s101, s59, 0""")
    A(f's_cmp_lg_u32 {sWAVE}, 14\ns_cbranch_scc1 L_NE14\ns_and_b32 s80, s2, 1\ns_lshl_b32 s80, s80, 7\nv_mov_b32 v9, s80\nbuffer_load_dword v12, v9, {RDBG}, 0 offen sc1\ns_branch L_B0\nL_NE14:')
    A(f's_cmp_ge_u32 {sJ}, 2\ns_cbranch_scc1 L_PREK')
    A(f's_cmp_eq_u32 {sWAVE}, 13\ns_cbranch_scc1 L_PRE13\ns_cmp_eq_u32 {sWAVE}, 15\ns_cbranch_scc1 L_PREV15')
    A(f's_cmp_lg_u32 {sJ}, 0\ns_cbranch_scc1 L_B0\ns_cmp_ge_u32 {sWAVE}, 12\ns_cbranch_scc1 L_B0\ns_cmp_ge_u32 {sWAVE}, 8\ns_cbranch_scc1 L_PREC')
    A(f's_and_b32 s80, s2, 15\ns_lshr_b32 s81, s2, 4')
    g.dma_voff('v12','v13',6144,'v14')
    A(f's_lshl_b32 s84, s81, 7\ns_lshl_b32 s85, {sWAVE}, 4\ns_add_u32 s84, s84, s85\ns_mul_i32 s84, s84, 6144\ns_lshl_b32 s85, s80, 7\ns_add_u32 s84, s84, s85')
    A(f's_lshl_b32 s85, {sWAVE}, 11\ns_add_u32 s85, s85, {L_WM}')
    blk_dma(RWM, 2, 's84', 6144, 's85', 'v12', 'v13')
    A(f's_cmp_lt_u32 {sWAVE}, 4\ns_cbranch_scc1 L_B0')
    A(f'v_lshlrev_b32 v4, 4, v1\ns_and_b32 s87, {sWAVE}, 3\ns_lshl_b32 s87, s87, 11')
    A(f'buffer_load_dwordx4 v[88:91], v4, {RX}, s87 offen\nbuffer_load_dwordx4 v[92:95], v4, {RX}, s87 offen offset:1024\ns_branch L_B0')
    A('L_PREC:')
    A(f'v_lshlrev_b32 v4, 4, v1\ns_lshl_b32 s83, {sW8}, 11')
    A(f'buffer_load_dwordx4 v[104:107], v4, {RC}, s83 offen\nbuffer_load_dwordx4 v[100:103], v4, {RC}, s83 offen offset:1024\ns_branch L_B0')
    A('L_PREV15:')
    A(SENT)
    A(f's_lshl_b32 s80, {sPAIR}, 10\ns_lshl_b32 s81, {sJ}, 9\ns_add_u32 s81, s81, s80\ns_add_u32 s81, s81, {OO}\ns_mov_b32 exec_hi, 0')
    A(f'buffer_store_dwordx4 v[8:11], v5, {RWL}, s81 offen\ns_mov_b64 exec, -1')
    A(f's_cmp_lg_u32 {sJ}, 0\ns_cbranch_scc1 L_B0\ns_add_u32 s80, s80, {X1}')
    A(f'buffer_store_dwordx4 v[8:11], v5, {RWL}, s80 offen\ns_branch L_B0')
    A('L_PREK:')
    A(f's_cmp_lt_u32 {sWAVE}, 8\ns_cbranch_scc1 L_B0\ns_cmp_eq_u32 {sWAVE}, 14\ns_cbranch_scc1 L_B0\ns_cmp_eq_u32 {sWAVE}, 13\ns_cbranch_scc1 L_PRE13')
    A(SENT)
    A(f's_and_b32 s81, {sJ}, 1\ns_and_b32 s83, s2, 63\ns_lshl_b32 s83, s83, 11')
    A(f's_cmp_ge_u32 {sWAVE}, 12\ns_cbranch_scc1 L_PREK2')
    A(f's_lshl_b32 s80, {sPAIR}, 14\ns_lshl_b32 s82, s81, 13\ns_add_u32 s80, s80, s82\ns_lshl_b32 s82, {sW8}, 11\ns_add_u32 s80, s80, s82')
    A(f'buffer_store_dwordx4 v[8:11], v5, {RWL}, s80 offen\nbuffer_store_dwordx4 v[8:11], v5, {RWL}, s80 offen offset:1024\ns_branch L_B0')
    A('L_PREK2:')
    A(f's_cmp_eq_u32 {sWAVE}, 15\ns_cbranch_scc1 L_PREK3')
    A(f's_lshl_b32 s80, {sPAIR}, 10\ns_lshl_b32 s82, s81, 9\ns_add_u32 s82, s82, s80\ns_add_u32 s82, s82, {ST}\ns_mov_b32 exec_hi, 0')
    A(f'buffer_store_dwordx4 v[8:11], v5, {RWL}, s82 offen\ns_mov_b64 exec, -1')
    A(f's_cmp_eq_u32 {sJ}, 2\ns_cbranch_scc1 L_PREK4\ns_add_u32 s80, s80, {GU}')
    A(f'buffer_store_dwordx4 v[8:11], v5, {RWL}, s80 offen\ns_branch L_B0')
    A(f'L_PREK4:\ns_add_u32 s80, s83, {WP}\ns_branch L_PREK5')
    A(f'L_PREK3:\ns_cmp_lg_u32 {sJ}, 2\ns_cbranch_scc1 L_B0\ns_add_u32 s80, s83, {DP}')
    A(f'L_PREK5:\nbuffer_store_dwordx4 v[8:11], v5, {RWS}, s80 offen sc1\nbuffer_store_dwordx4 v[8:11], v5, {RWS}, s80 offen offset:1024 sc1\ns_branch L_B0')
    A('L_PRE13:')
    if o.codepf:
        A(f's_getpc_b64 s[80:81]\nL_PC:\ns_sub_u32 s80, s80, L_PC-{NAME}_kernel\ns_subb_u32 s81, s81, 0')
        A(f's_lshr_b32 s82, s2, 3\ns_lshl_b32 s82, s82, 10\nv_lshlrev_b32 v4, 4, v1\nv_add_u32 v4, s82, v4\nv_min_u32 v4, L_CODE_END-{NAME}_kernel-16, v4')
        A('global_load_dwordx4 v[100:103], v4, s[80:81]')
    A('L_B0:\ns_barrier')
    g.stampw(0,17)
    if o.stamps:
        A(f's_cmp_lg_u32 {sWAVE}, 0\ns_cbranch_scc1 L_NS0\nv_mov_b32 v126, {L_STAMP}\nv_mov_b32 v127, s90\nds_write_b32 v126, v127\nL_NS0:')
    A(f's_cmp_eq_u32 {sWAVE}, 14\ns_cbranch_scc1 L_EP')
    A(f's_cmp_eq_u32 {sWAVE}, 15\ns_cbranch_scc1 L_SYNC')
    A(f's_cmp_eq_u32 {sJ}, 0\ns_cbranch_scc1 L_TC\ns_cmp_eq_u32 {sJ}, 1\ns_cbranch_scc1 L_TD')
    A(f's_cmp_lt_u32 {sWAVE}, 8\ns_cbranch_scc1 L_KPATH\ns_cmp_eq_u32 {sWAVE}, 13\ns_cbranch_scc1 L_KPATH')
    A('s_waitcnt vmcnt(0)')
    lds_inc(F_CLR, 'v5')
    A('s_branch L_KPATH')
    A('L_SYNC:\ns_setprio 3\ns_waitcnt vmcnt(0)')
    get_E('v12')
    A(f's_cmp_lt_u32 {sJ}, 2\ns_cbranch_scc1 L_SY1')
    g.lds_spin('v3', F_CLR, 5, 'v7', sleep=1)
    A('L_SY1:')
    A(f's_getreg_b32 s83, hwreg(HW_REG_XCC_ID)\nv_mov_b32 v13, s83\ns_lshl_b32 s84, s2, 7\ns_add_u32 s84, s84, {FL}\nv_mov_b32 v14, s84')
    A(f's_mov_b64 exec, 1\nbuffer_store_dwordx2 v[12:13], v14, {RWS}, 0 offen sc1\ns_mov_b64 exec, -1')
    g.stamp(4)
    A(f's_setprio 0\ns_cmp_ge_u32 {sJ}, 2\ns_cbranch_scc1 L_KPATH\ns_branch L_VWAIT')
    A('L_EP:\ns_setprio 3')
    A(f's_and_b32 s80, s2, 1\ns_lshl_b32 s80, s80, 7\nv_mov_b32 v9, s80\nL_EPL:\ns_waitcnt vmcnt(0)\nv_cmp_eq_u32 vcc, 0, v12\ns_cbranch_vccz L_EPD')
    g.timeout('L_EPD')
    A(f'buffer_load_dword v12, v9, {RDBG}, 0 offen sc1\ns_branch L_EPL\nL_EPD:\nds_write_b32 v3, v12 offset:{F_E}')
    g.stamp(24)
    A(f's_setprio 0\ns_cmp_ge_u32 {sJ}, 2\ns_cbranch_scc1 L_KPATH')
    A(f's_setprio 3\ns_mov_b32 s79, 0\ns_cmp_eq_u32 {sJ}, 1\ns_cbranch_scc1 L_FG1')
    g.lds_spin('v3', F_R, 1, 'v7', sleep=2)
    A('s_branch L_FLAGS\nL_FG1:')
    g.lds_spin('v3', F_SUB, 8, 'v7', sleep=2)
    A('L_FLAGS:')
    A(f'v_and_b32 v7, 31, v1\nv_lshlrev_b32 v14, 3, v7\nv_add_u32 v14, {sG}, v14\nv_lshrrev_b32 v15, 3, v7\nv_lshlrev_b32 v15, 6, v15\nv_and_b32 v7, 7, v1\nv_add_u32 v15, v15, v7\ns_lshl_b32 s84, {sB}, 3\nv_add_u32 v15, s84, v15')
    A(f's_mov_b32 vcc_lo, 0\ns_mov_b32 vcc_hi, -1\nv_cndmask_b32 v15, v14, v15, vcc\nv_lshlrev_b32 v15, 7, v15\nv_add_u32 v15, {FL}, v15')
    A(f'L_FLP:\nbuffer_load_dwordx2 v[96:97], v15, {RWS}, 0 offen sc1\ns_waitcnt vmcnt(0)\nv_cmp_ne_u32 vcc, v96, v12\ns_cbranch_vccz L_FLD')
    g.timeout('L_FLD')
    A('s_sleep 8\ns_branch L_FLP\nL_FLD:')
    A('s_getreg_b32 s83, hwreg(HW_REG_XCC_ID)')
    A(f'v_cmp_ne_u32 vcc, s83, v97\ns_cmp_eq_u32 vcc_lo, 0\ns_cselect_b32 s84, {1 if o.local else 0}, 0\nv_mov_b32 v14, s84\ns_cmp_eq_u32 s84, 1\ns_cbranch_scc1 L_FLOK')
    A('s_mov_b64 s[92:93], s[100:101]')
    clear_all_local(' sc1')
    A(f's_lshl_b32 s80, s2, 7\ns_add_u32 s80, s80, {FLB}\nv_mov_b32 v5, s80\ns_mov_b32 s80, {FLB-FL}\ns_waitcnt vmcnt(0)')
    A(f's_mov_b64 exec, 1\nbuffer_store_dword v12, v5, {RWS}, 0 offen sc1\ns_mov_b64 exec, -1')
    A(f'L_FBP:\nbuffer_load_dword v8, v15, {RWS}, s80 offen sc1\ns_waitcnt vmcnt(0)\nv_cmp_ne_u32 vcc, v8, v12\ns_cmp_eq_u32 vcc_lo, 0\ns_cbranch_scc1 L_FLOK')
    g.timeout('L_FLOK')
    A('s_sleep 4\ns_branch L_FBP')
    A(f'L_FLOK:\nds_write_b32 v3, v14 offset:{F_MODE}\ns_waitcnt lgkmcnt(0)')
    g.lds_set('v3', F_MOK, 1, 'v7')
    g.stamp(5)
    A('s_cmp_eq_u32 s79, 1\ns_cbranch_scc1 L_KFLB\ns_setprio 0\ns_branch L_VWAIT')

    A('L_TC:')
    A(f's_cmp_ge_u32 {sWAVE}, 12\ns_cbranch_scc1 L_C_MT\ns_cmp_ge_u32 {sWAVE}, 8\ns_cbranch_scc1 L_C_S\ns_cmp_ge_u32 {sWAVE}, 4\ns_cbranch_scc1 L_C_LN')
    g.tr_addr('v5', sWAVE, L_WM, 'v6', 'v7')
    A(f's_lshl_b32 s84, s81, 8\ns_add_u32 s84, s84, {L_ACT}')
    g.act_addr('v6', 's84', 1056, 'v7')
    A(f's_lshl_b32 s86, s2, 11\ns_lshl_b32 s84, {sWAVE}, 9\ns_add_u32 s86, s86, s84\ns_add_u32 s86, s86, {MP}')
    A('v_and_b32 v7, 7, v1\nv_lshlrev_b32 v4, 6, v7\nv_lshrrev_b32 v7, 4, v1\nv_lshl_add_u32 v4, v7, 4, v4')
    A('s_waitcnt vmcnt(0)')
    lds_inc(F_C1, 'v7')
    get_E('v12')
    pair_prep('v4', MP2-MP, 'v12', 'v12', 'v7')
    g.lds_spin('v3', F_C1, 12, 'v7', sleep=0)
    g.tr_frags('v5', 48, range(4))
    g.gemv_tile(48, 4, 'v6', 64, 80)
    for r in range(4): A(f'v_xor_b32 v{80+r}, v{80+r}, v12')
    A(f'buffer_store_dwordx4 v[80:83], v4, {RWS}, s86 offen sc1')
    lds_inc(F_C1, 'v7')
    g.stampw(0,1)
    A('s_branch L_VWAIT')
    A('L_C_LN:')
    A('s_waitcnt vmcnt(2)')
    lds_inc(F_C1, 'v5')
    A('s_waitcnt vmcnt(0)')
    A(f's_add_u32 s87, s87, {L_Y}\nv_add_u32 v4, s87, v4')
    for k,src in enumerate((88,92)):
        g.ln8(src, 48, 56)
        for i in range(4): A(f'v_cvt_pk_bf16_f32 v{src+i}, v{48+2*i}, v{49+2*i}')
        A(f'ds_write_b128 v4, v[{src}:{src+3}] offset:{k*1024}')
    A('s_waitcnt lgkmcnt(0)')
    lds_inc(F_Y, 'v5')
    A('s_branch L_VWAIT')
    A('L_C_S:')
    A(f's_mul_i32 s85, {sW8}, 2112\ns_add_u32 s85, s85, {L_ACT}\nv_add_u32 v5, s85, v4')
    A('s_waitcnt vmcnt(1)')
    g.silu8(104, 16, 24)
    A('ds_write_b128 v5, v[104:107]\ns_waitcnt vmcnt(0)')
    g.silu8(100, 16, 24)
    A('ds_write_b128 v5, v[100:103] offset:1056\ns_waitcnt lgkmcnt(0)')
    lds_inc(F_C1, 'v5')
    A(f's_cmp_lg_u32 {sWAVE}, 8\ns_cbranch_scc1 L_VWAIT')
    A('s_setprio 3')
    get_E('v15')
    A('v_lshrrev_b32 v7, 4, v1\nv_lshlrev_b32 v5, 14, v7\nv_bfe_u32 v6, v1, 1, 3\nv_lshl_add_u32 v5, v6, 6, v5\nv_and_b32 v7, 1, v1\nv_lshl_add_u32 v5, v7, 4, v5')
    A(f's_lshr_b32 s80, s2, 1\ns_lshl_b32 s80, s80, 9\ns_and_b32 s81, s2, 1\ns_lshl_b32 s81, s81, 5\ns_add_u32 s80, s80, s81\ns_add_u32 s80, s80, {MP}\ns_add_u32 s81, s80, 0x10000\ns_add_u32 s82, s80, {MP2-MP}\ns_add_u32 s83, s81, {MP2-MP}')
    A(f'v_lshlrev_b32 v6, 10, v6\nv_lshl_add_u32 v6, v7, 3, v6\ns_lshl_b32 s84, s2, 4\ns_add_u32 s84, s84, {L_Y}\nv_add_u32 v6, s84, v6')
    A(f'v_and_b32 v7, 15, v1\nv_lshlrev_b32 v8, 3, v7\nv_bfe_u32 v7, v1, 4, 1\nv_mul_u32_u24 v9, {HH2-HH}, v7\nv_add_u32 v8, v8, v9\nv_mul_lo_u32 v9, v7, v15\ns_lshl_b32 s84, s2, 7\ns_add_u32 s84, s84, {HH}')
    g.lds_spin('v3', F_Y, 4, 'v7', sleep=1)
    A('ds_read_b64 v[10:11], v6')
    g.lds_spin('v3', F_C1, 16, 'v7', sleep=1)
    if o.mpdelay: A(f's_sleep {o.mpdelay}')
    xpoll([f'buffer_load_dwordx4 v[{16+4*k}:{19+4*k}], v5, {RWS}, s{80+k} offen sc1' for k in range(4)], 16, 24, 8, 'v15', 'v7', sleep=o.mpsleep)
    for r in range(4): A(f'v_add_f32 v{16+r}, v{16+r}, v{20+r}')
    for r in range(4): A(f'v_mov_b32 v{20+r}, v{16+r}')
    for r in range(4): A(f'v_permlane32_swap_b32 v{16+r}, v{20+r}')
    for r in range(4): A(f'v_add_f32 v{16+r}, v{16+r}, v{20+r}')
    g.rnd2(16,17,12); g.rnd2(18,19,13)
    for r in range(4): A(f'v_mov_b32 v{20+r}, v{16+r}')
    for r in range(4): A(f'v_permlane16_swap_b32 v{16+r}, v{20+r}')
    for r in range(4): A(f'v_add_f32 v{20+r}, 1.0, v{20+r}')
    g.rnd2(20,21,12); g.rnd2(22,23,13)
    g.unpack(10,24,25); g.unpack(11,26,27)
    for r in range(4): A(f'v_mul_f32 v{24+r}, v{24+r}, v{20+r}')
    g.rnd2(24,25,12); g.rnd2(26,27,13)
    for r in range(4): A(f'v_add_f32 v{24+r}, v{24+r}, v{16+r}')
    A('v_cvt_pk_bf16_f32 v10, v24, v25\nv_cvt_pk_bf16_f32 v11, v26, v27\nv_xor_b32 v10, v10, v9\nv_xor_b32 v11, v11, v9\ns_mov_b32 exec_hi, 0')
    A(f'buffer_store_dwordx2 v[10:11], v8, {RWS}, s84 offen sc1\ns_mov_b64 exec, -1')
    g.lds_set('v3', F_R, 1, 'v7')
    A('s_setprio 0')
    g.stamp(25)
    A('s_branch L_VWAIT')
    A('L_C_MT:')
    A(f'v_lshrrev_b32 v7, 2, v1\nv_mul_u32_u24 v12, 6144, v7\nv_and_b32 v7, 3, v1\nv_lshl_add_u32 v12, v7, 4, v12')
    A(f's_and_b32 s85, {sWAVE}, 1\ns_mul_i32 s88, s85, {256*6144}\ns_lshl_b32 s89, {sPAIR}, 6\ns_add_u32 s88, s88, s89\ns_add_u32 s88, s88, 2048\ns_lshl_b32 s89, s85, 14')
    A(f'v_lshrrev_b32 v7, 4, v1\nv_lshlrev_b32 v6, 9, v7\nv_bfe_u32 v7, v1, 2, 2\nv_lshl_add_u32 v6, v7, 6, v6\nv_and_b32 v7, 3, v1\nv_lshl_add_u32 v6, v7, 3, v6\ns_lshl_b32 s84, s85, 5\nv_add_u32 v6, s84, v6')
    g.act_addr('v8', L_ACT, 1056, 'v7')
    A(f'v_and_b32 v7, 7, v1\nv_lshlrev_b32 v9, 12, v7\nv_lshrrev_b32 v7, 4, v1\nv_lshl_add_u32 v9, v7, 3, v9\ns_lshl_b32 s86, {sPAIR}, 6\ns_add_u32 s86, s86, s84\ns_add_u32 s86, s86, {MT}')
    if o.mtearly==0: g.lds_spin('v3', F_R, 1, 'v7', sleep=2)
    A('s_setprio 1')
    for i in range(16): g.dma(RWM, 'v12', 's88', i*16*6144, 's89', L_W+i*1024)
    lds_inc(F_GO, 'v7')
    get_E('v10')
    pair_prep('v9', MT2-MT, 'v10', 'v10', 'v7')
    A('s_waitcnt vmcnt(0)')
    lds_inc(F_SUB, 'v7')
    g.lds_spin('v3', F_SUB, 2, 'v7', sleep=1)
    g.lds_spin('v3', F_C1, 12, 'v7', sleep=1)
    def rdm(gq):
        for m in range(4):
            mm=4*gq+m; o_=16*(gq&1)+4*m
            A(f'ds_read_b64_tr_b16 v[{32+o_}:{33+o_}], v6 offset:{mm*2048}\nds_read_b64_tr_b16 v[{34+o_}:{35+o_}], v6 offset:{mm*2048+256}')
            A(f'ds_read_b128 v[{64+o_}:{67+o_}], v8 offset:{mm*64}')
    rdm(0)
    for gq in range(4):
        if gq<3: rdm(gq+1); A('s_waitcnt lgkmcnt(12)')
        else: A('s_waitcnt lgkmcnt(0)')
        for m in range(4):
            o_=16*(gq&1)+4*m
            c='0' if (gq==0 and m==0) else 'v[12:15]'
            A(f'v_mfma_f32_16x16x32_bf16 v[12:15], v[{32+o_}:{35+o_}], v[{64+o_}:{67+o_}], {c}')
    A('v_cvt_pk_bf16_f32 v100, v12, v13\nv_cvt_pk_bf16_f32 v101, v14, v15\nv_xor_b32 v100, v100, v10\nv_xor_b32 v101, v101, v10')
    A(f'buffer_store_dwordx2 v[100:101], v9, {RWS}, s86 offen sc1\ns_setprio 0')
    A('s_branch L_VW_C')

    A('L_TD:')
    A(f's_cmp_ge_u32 {sWAVE}, 12\ns_cbranch_scc1 L_VWAIT\ns_cmp_ge_u32 {sWAVE}, 8\ns_cbranch_scc1 L_D_H')
    g.dma_voff('v12','v13',8192,'v14')
    A(f's_lshl_b32 s85, {sWAVE}, 13\ns_lshl_b32 s84, {sWAVE}, 19\ns_lshl_b32 s86, {sPAIR}, 7\ns_add_u32 s84, s84, s86')
    blk_dma(RW1, 8, 's84', 8192, 's85', 'v12', 'v13')
    lds_inc(F_GO, 'v7')
    A('s_waitcnt vmcnt(0)')
    lds_inc(F_SUB, 'v7')
    A(f's_cmp_ge_u32 {sWAVE}, 4\ns_cbranch_scc1 L_VWAIT')
    g.tr_addr('v5', sWAVE, L_W, 'v6', 'v7')
    g.act_addr('v6', L_H, 1056, 'v7')
    A(f's_lshl_b32 s86, {sPAIR}, 10\ns_lshl_b32 s84, {sWAVE}, 5\ns_add_u32 s86, s86, s84\ns_add_u32 s86, s86, {QF}')
    A(f'v_and_b32 v7, 7, v1\nv_lshlrev_b32 v4, 7, v7\nv_lshrrev_b32 v7, 4, v1\nv_lshl_add_u32 v4, v7, 3, v4')
    get_E('v12')
    pair_prep('v4', QF2-QF, 'v12', 'v12', 'v7')
    g.lds_spin('v3', F_SUB, 8, 'v7', sleep=1)
    g.tr_frags('v5', 16, range(16))
    g.stampw(0,16)
    get_mode('v7')
    A('s_setprio 3')
    g.lds_spin('v3', F_C3, 4, 'v7', sleep=0)
    gemv16(16, 'v6', 8, [80,96])
    A('v_cvt_pk_bf16_f32 v14, v8, v9\nv_cvt_pk_bf16_f32 v15, v10, v11\nv_xor_b32 v14, v14, v12\nv_xor_b32 v15, v15, v12')
    g.pub(f'buffer_store_dwordx2 v[14:15], v4, {RWS}, s86 offen', True)
    lds_inc(F_VGO, 'v7')
    A('s_setprio 0')
    g.stampw(0,3)
    A('s_branch L_VWAIT')
    A('L_D_H:\ns_setprio 3')
    A(f'v_lshlrev_b32 v4, 4, v1\ns_lshl_b32 s80, {sW8}, 11\ns_add_u32 s81, s80, {HH2}\ns_add_u32 s80, s80, {HH}')
    A(f'v_and_b32 v7, 7, v1\nv_mul_u32_u24 v6, 1056, v7\nv_lshrrev_b32 v7, 3, v1\nv_lshl_add_u32 v6, v7, 4, v6\ns_lshl_b32 s84, {sW8}, 8\ns_add_u32 s84, s84, {L_H}\nv_add_u32 v6, s84, v6')
    get_E('v15')
    g.lds_spin('v3', F_SUB, o.hdelay, 'v7', sleep=1)
    xpoll([f'buffer_load_dwordx4 v[16:19], v4, {RWS}, s80 offen sc1', f'buffer_load_dwordx4 v[20:23], v4, {RWS}, s80 offen offset:1024 sc1',
           f'buffer_load_dwordx4 v[24:27], v4, {RWS}, s81 offen sc1', f'buffer_load_dwordx4 v[28:31], v4, {RWS}, s81 offen offset:1024 sc1'], 16, 24, 8, 'v15', 'v7', sleep=o.mpsleep)
    A('ds_write_b128 v6, v[16:19]\nds_write_b128 v6, v[20:23] offset:128\ns_waitcnt lgkmcnt(0)')
    lds_inc(F_C3, 'v5')
    A('s_setprio 0')
    g.stampw(8,2)
    A('L_VWAIT:')
    A(f's_cmp_eq_u32 {sJ}, 1\ns_cbranch_scc1 L_VW_D')
    pm=0
    for w in o.cpre: pm|=1<<w
    if pm: A(f's_mov_b32 s80, {pm}\ns_lshr_b32 s80, s80, {sWAVE}\ns_bitcmp1_b32 s80, 0\ns_cbranch_scc1 L_VPATH')
    g.lds_spin('v3', F_R, 1, 'v7', sleep=2)
    g.lds_spin('v3', F_GO, 2, 'v7', sleep=1)
    A('L_VW_C:')
    cm=0
    for w in o.cearly: cm|=1<<w
    A(f's_mov_b32 s80, {cm}\ns_lshr_b32 s80, s80, {sWAVE}\ns_bitcmp1_b32 s80, 0\ns_cbranch_scc1 L_VPATH')
    A(f's_cmp_lg_u32 {sWAVE}, 9\ns_cbranch_scc1 L_VW_D2')
    get_E('v12')
    A(f's_lshl_b32 s80, {sPAIR}, 10\ns_add_u32 s80, s80, {QF}\ns_add_u32 s81, s80, {QF2-QF}\nv_mov_b32 v5, 0')
    xpoll([f'buffer_load_dword v16, v5, {RWS}, s80 offen sc1', f'buffer_load_dword v17, v5, {RWS}, s81 offen sc1'], 16, 17, 1, 'v12', 'v7', sleep=4)
    g.lds_set('v3', F_VGO, 4, 'v7')
    A('s_branch L_VPATH\nL_VW_D:')
    em=0
    for w in o.dearly: em|=1<<w
    A(f's_mov_b32 s80, {em}\ns_lshr_b32 s80, s80, {sWAVE}\ns_bitcmp1_b32 s80, 0\ns_cbranch_scc0 L_VW_D2')
    g.lds_spin('v3', F_GO, 8, 'v7', sleep=1)
    A('s_branch L_VPATH\nL_VW_D2:')
    g.lds_spin('v3', F_VGO, 4, 'v7', sleep=2)
    A('L_VPATH:')
    A(f'v_lshrrev_b32 v5, 3, v1\nv_lshlrev_b32 v2, 11, v5\nv_and_b32 v5, 7, v1\nv_lshl_add_u32 v2, v5, 4, v2')
    A(f's_lshl_b32 s80, {sWAVE}, 15\ns_xor_b32 s81, {sJ}, {o.dhswap}\ns_lshl_b32 s81, s81, 7\ns_add_u32 s80, s80, s81\ns_add_u32 s81, s80, 16384')
    for blk in range(2):
        for u in range(8):
            r=8+32*blk+4*u
            A(f'buffer_load_dwordx4 v[{r}:{r+3}], v2, {RKV}, s{80+blk} offen offset:{u*256} nt')
    lds_inc(F_KL, 'v7')
    g.stampw(0,22); g.stampw(11,23)
    if o.stamps:
        A(f's_cmp_lg_u32 {sWAVE}, 15\ns_cbranch_scc1 L_NS26\ns_waitcnt vmcnt(0)')
        g.stamp(26)
        A('L_NS26:')
    A('s_mov_b32 s88, 0x05040100\ns_mov_b32 s89, 0x07060302')
    A(f'v_and_b32 v7, 15, v1\nv_lshlrev_b32 v6, 4, v7\nv_lshrrev_b32 v7, 5, v1\nv_lshl_add_u32 v6, v7, 8, v6')
    A(f's_mul_i32 s84, {sWAVE}, {OPP}\ns_add_u32 s84, s84, {L_OP}\nv_add_u32 v6, s84, v6')
    A(f'v_lshrrev_b32 v7, 4, v1\nv_lshlrev_b32 v4, 7, v7\nv_and_b32 v7, 7, v1\nv_lshl_add_u32 v4, v7, 4, v4\ns_lshl_b32 s84, {sPAIR}, 14\ns_lshl_b32 s85, {sWAVE}, 10\ns_add_u32 s84, s84, s85')
    get_mode('v7')
    PL=[f'buffer_load_dwordx4 v[72:75], v4, {RWL}, s84 offen sc1', f'buffer_load_dwordx4 v[80:83], v4, {RWL}, s84 offen offset:512 sc1']
    PR=[72,73,74,75,80,81,82,83]
    TB=[88,8]
    def perms(blk):
        B=8+32*blk
        for w in range(4):
            t=TB[blk]+8*w
            for a in range(4): A(f'v_perm_b32 v{t+a}, v{B+4*(2*a+1)+w}, v{B+4*(2*a)+w}, s88')
            for a in range(4): A(f'v_perm_b32 v{t+4+a}, v{B+4*(2*a+1)+w}, v{B+4*(2*a)+w}, s89')
    A(f'ds_read_b32 v7, v3 offset:{F_KL}\ns_waitcnt lgkmcnt(0)\nv_readfirstlane_b32 s85, v7\ns_cmp_lt_u32 s85, {o.pgate}\ns_cbranch_scc1 L_PE')
    for l in PL: A(l)
    A('s_waitcnt vmcnt(10)')
    perms(0)
    A('s_waitcnt vmcnt(2)')
    perms(1)
    A('s_waitcnt vmcnt(0)')
    g.chk(PR, 'v7')
    A('s_cbranch_vccz L_PD\ns_branch L_PP')
    A('L_PE:\ns_waitcnt vmcnt(8)')
    perms(0)
    A('s_waitcnt vmcnt(0)')
    perms(1)
    g.lds_spin('v3', F_KL, o.pgate, 'v7', sleep=2)
    A('L_PP:')
    g.poll(PL, PR, 'v7', sleep=o.psleep)
    A('L_PD:')
    g.stampw(0,8); g.stampw(11,9)
    A(HI8)
    for blk in range(2):
        for r in range(4): A(f'v_cndmask_b32 v{76+8*blk+r}, 0, v{72+8*blk+r}, vcc')
    A('s_not_b64 vcc, vcc')
    for blk in range(2):
        for r in range(4): A(f'v_cndmask_b32 v{72+8*blk+r}, 0, v{72+8*blk+r}, vcc')
    Dd=40
    for blk in range(2):
        for q in range(2):
            for w in range(4):
                t=TB[blk]+8*w+4*q; d=Dd+4*w
                c0='0' if (blk==0 and q==0) else f'v[{d}:{d+3}]'
                A(f'v_mfma_f32_16x16x32_bf16 v[{d}:{d+3}], v[{72+8*blk+4*q}:{75+8*blk+4*q}], v[{t}:{t+3}], {c0}')
    A('s_mov_b32 exec_lo, 0xff0000ff\ns_mov_b32 exec_hi, 0xff0000ff')
    for w in range(4): A(f'ds_write_b128 v6, v[{Dd+4*w}:{Dd+4*w+3}] offset:{w*512}')
    A('s_mov_b64 exec, -1')
    A(f'v_lshrrev_b32 v5, 3, v1\nv_mul_u32_u24 v4, {2*OPP}, v5\nv_and_b32 v5, 7, v1\nv_lshl_add_u32 v4, v5, 4, v4\ns_lshl_b32 s85, {sW8}, 8\ns_add_u32 s84, s85, {L_OP}\nv_add_u32 v4, s84, v4')
    A(f'v_lshlrev_b32 v5, 3, v1\ns_lshl_b32 s84, {sPAIR}, 10\ns_lshr_b32 s85, s85, 2\ns_add_u32 s84, s84, s85\ns_lshl_b32 s85, {sJ}, 9\ns_add_u32 s84, s84, s85\ns_add_u32 s84, s84, {OO}')
    g.stampw(14,29); g.stampw(13,30); g.stampw(15,31)
    A('s_waitcnt lgkmcnt(0)\ns_barrier')
    g.stampw(8,28)
    A(f's_cmp_lt_u32 {sWAVE}, 8\ns_cbranch_scc1 L_VT')
    for k in range(4): A(f'ds_read_b128 v[{8+4*k}:{11+4*k}], v4 offset:{(k>>1)*OPP+(k&1)*128}')
    A('s_waitcnt lgkmcnt(0)')
    for r in range(4): A(f'v_add_f32 v{8+r}, v{8+r}, v{12+r}\nv_add_f32 v{16+r}, v{16+r}, v{20+r}')
    for r in range(4): A(f'v_add_f32 v{8+r}, v{8+r}, v{16+r}')
    for r in range(4): A(f'v_add_f32_dpp v{8+r}, v{8+r}, v{8+r} row_ror:8 row_mask:0xf bank_mask:0xf')
    g.red_rows('v_add_f32', [8,9,10,11], [12,13,14,15])
    A('v_cvt_pk_bf16_f32 v12, v8, v9\nv_cvt_pk_bf16_f32 v13, v10, v11')
    g.nosent([12,13])
    A('s_mov_b64 exec, 0xff')
    g.pub(f'buffer_store_dwordx2 v[12:13], v5, {RWL}, s84 offen', True)
    A('s_mov_b64 exec, -1')
    g.stampw(8,10)
    if o.stamps:
        A(f's_cmp_lg_u32 {sJ}, 1\ns_cbranch_scc1 L_END\ns_cmp_eq_u32 {sWAVE}, 8\ns_cbranch_scc1 L_DUMP')
    A('s_branch L_END')
    A('L_VT:')
    A(f's_cmp_lg_u32 {sJ}, 0\ns_cbranch_scc1 L_END\ns_cmp_ge_u32 {sWAVE}, 3\ns_cbranch_scc1 L_END')
    A(f'ds_read_b32 v13, v3 offset:{F_E}')
    A(f's_cmp_eq_u32 {sWAVE}, 2\ns_cbranch_scc1 L_FIN')
    A(f'v_lshlrev_b32 v4, 4, v1\ns_lshl_b32 s80, {sWAVE}, 10\nv_add_u32 v4, s80, v4')
    A(f'v_bfe_u32 v6, v1, 2, 3\nv_lshrrev_b32 v7, 5, v1\nv_lshlrev_b32 v7, 5, v7\nv_and_b32 v8, 3, v1\nv_lshl_add_u32 v7, v8, 3, v7\ns_lshl_b32 s81, {sWAVE}, 6\nv_add_u32 v7, s81, v7')
    A(f'v_lshl_add_u32 v5, v6, 10, v7\ns_lshl_b32 s81, {sB}, 7\nv_lshl_add_u32 v9, v6, 12, v7\ns_add_u32 s80, s81, {MT}')
    A(f'buffer_load_dwordx2 v[56:57], v5, {RX}, s81 offen')
    A(f's_add_u32 s81, s80, {MT2-MT}\ns_waitcnt lgkmcnt(0)')
    xpoll([f'buffer_load_dwordx2 v[60:61], v9, {RWS}, s80 offen sc1', f'buffer_load_dwordx2 v[62:63], v9, {RWS}, s81 offen sc1'], 60, 62, 2, 'v13', 'v12')
    g.unpack(60,48,49); g.unpack(61,50,51)
    g.unpack(56,52,53); g.unpack(57,54,55)
    A(f'v_lshl_add_u32 v5, v6, 7, v7\ns_lshl_b32 s82, {sPAIR}, 10\ns_add_u32 s82, s82, {X1}')
    A(f'v_lshlrev_b32 v8, 1, v5\nv_add_u32 v8, {L_X1S}, v8')
    A(f's_lshl_b32 s80, {sB}, 14\ns_add_u32 s80, s80, {WP}')
    for k in range(4): A(f's_add_u32 s{88+k}, s80, {k*4096}')
    g.poll([f'buffer_load_dwordx4 v[{16+4*k}:{19+4*k}], v4, {RWS}, s{88+(k>>1)} offen offset:{(k&1)*2048} sc1' for k in range(8)], range(16,48), 'v12')
    for r in range(4):
        A(f'v_add_f32 v{16+r}, v{16+r}, v{20+r}\nv_add_f32 v{24+r}, v{24+r}, v{28+r}\nv_add_f32 v{32+r}, v{32+r}, v{36+r}\nv_add_f32 v{40+r}, v{40+r}, v{44+r}')
        A(f'v_add_f32 v{16+r}, v{16+r}, v{24+r}\nv_add_f32 v{32+r}, v{32+r}, v{40+r}\nv_add_f32 v{16+r}, v{16+r}, v{32+r}')
    g.rnd2(16,17,12); g.rnd2(18,19,13)
    for r in range(4): A(f'v_mul_f32 v{16+r}, v{16+r}, v{48+r}')
    g.rnd2(16,17,12); g.rnd2(18,19,13)
    for r in range(4): A(f'v_add_f32 v{16+r}, v{16+r}, v{52+r}')
    g.rnd2(16,17,12); g.rnd2(18,19,13)
    g.nosent([12,13])
    g.pub(f'buffer_store_dwordx2 v[12:13], v5, {RWL}, s82 offen', True)
    A('ds_write_b128 v8, v[16:19]')
    g.stampw(0,12)
    A('s_waitcnt lgkmcnt(0)\ns_barrier')
    A('s_branch L_END')
    A('L_FIN:')
    A(f'v_lshrrev_b32 v5, 4, v1\nv_lshlrev_b32 v4, 9, v5\nv_and_b32 v5, 15, v1\nv_lshl_add_u32 v4, v5, 2, v4\ns_lshl_b32 s80, {sG}, 6\nv_add_u32 v4, s80, v4')
    A(f's_lshl_b32 s80, {sG}, 12\ns_lshl_b32 s81, {sB}, 7\ns_add_u32 s80, s80, s81\ns_add_u32 s80, s80, {MT+3072}\nv_lshrrev_b32 v5, 1, v1\nv_lshlrev_b32 v5, 2, v5')
    A(f's_add_u32 s81, s80, {MT2-MT}\ns_waitcnt lgkmcnt(0)')
    xpoll([f'buffer_load_dword v50, v5, {RWS}, s80 offen sc1', f'buffer_load_dword v51, v5, {RWS}, s81 offen sc1'], 50, 51, 1, 'v13', 'v12', sleep=4)
    g.unpack(50,48,49)
    A('s_mov_b32 vcc_lo, 0xaaaaaaaa\ns_mov_b32 vcc_hi, 0xaaaaaaaa\nv_cndmask_b32 v48, v48, v49, vcc')
    A(f's_lshl_b32 s80, {sB}, 14\ns_add_u32 s80, s80, {DP}')
    for k in range(4): A(f's_add_u32 s{88+k}, s80, {k*4096}')
    A(f's_lshl_b32 s81, {sG}, 8\ns_add_u32 s81, s81, {L_X1S}\nv_lshlrev_b32 v6, 2, v1\nv_add_u32 v6, s81, v6')
    A(f'v_lshlrev_b32 v7, 1, v1\ns_lshl_b32 s82, {sG}, 10\ns_lshl_b32 s83, {sB}, 7\ns_add_u32 s82, s82, s83')
    A('s_barrier')
    A('ds_read_b32 v50, v6')
    g.poll([f'buffer_load_dword v{16+k}, v4, {RWS}, s{88+(k>>1)} offen offset:{(k&1)*2048} sc1' for k in range(7)], range(16,23), 'v12')
    A('v_add_f32 v16, v16, v17\nv_add_f32 v18, v18, v19\nv_add_f32 v20, v20, v21\nv_add_f32 v16, v16, v18\nv_add_f32 v20, v20, v22\nv_add_f32 v16, v16, v20')
    g.rnd2(16,17,12)
    A('v_mul_f32 v16, v16, v48')
    g.rnd2(16,17,12)
    A('s_waitcnt lgkmcnt(0)\nv_add_f32 v16, v16, v50\nv_cvt_pk_bf16_f32 v12, v16, v16')
    A(f'buffer_store_short v12, v7, {ROUT}, s82 offen')
    g.stamp(15)
    A('s_branch L_DUMP')

    A('L_KPATH:')
    KST={'lin':4096,'int':65536,'g4':16384}[o.kmap]
    A(f'v_lshlrev_b32 v4, 4, v1\ns_and_b32 s86, {sJ}, 1\ns_lshl_b32 s80, s86, 18')
    def tile0(d, t):
        if o.kmap=='lin': A(f's_lshl_b32 {d}, {sWAVE}, 2')
        elif o.kmap=='int': A(f's_mov_b32 {d}, {sWAVE}')
        else: A(f's_lshr_b32 {d}, {sWAVE}, 2\ns_lshl_b32 {d}, {d}, 4\ns_and_b32 {t}, {sWAVE}, 3\ns_add_u32 {d}, {d}, {t}')
    tile0('s81','s82')
    A('s_lshl_b32 s81, s81, 12\ns_add_u32 s80, s80, s81')
    if o.thr:
        A(f's_cmp_lt_u32 {sWAVE}, {o.thrw}\ns_cbranch_scc1 L_KGO')
        g.lds_spin('v3', F_GO, o.thrw, 'v5', sleep=1)
        A('L_KGO:')
    if o.kpre:
        A(f's_cmp_ge_u32 {sWAVE}, 8\ns_cbranch_scc1 L_KA\ns_add_u32 s80, s80, {KST*(o.kpre-1)}\ns_branch L_KB\nL_KA:')
    for T in range(4):
        if o.kpre and T==o.kpre: A('L_KB:')
        if T: A(f's_add_u32 s80, s80, {KST}')
        if o.thr and 1<=T<=o.thr:
            l=g.lab('KT')
            A(f's_cmp_ge_u32 {sWAVE}, {o.thrw}\ns_cbranch_scc1 {l}\ns_waitcnt vmcnt(0)')
            if T==o.thr: lds_inc(F_GO, 'v5')
            A(f'{l}:')
        for m in range(4):
            r=16+16*T+4*m
            A(f'buffer_load_dwordx4 v[{r}:{r+3}], v4, {RKV}, s80 offen offset:{m*1024} nt')
    g.stampw(11,20); g.stampw(0,27)
    A(f's_mul_i32 s81, {sWAVE}, {KS_SZ}\ns_add_u32 s81, s81, {L_KS}')
    A('v_lshrrev_b32 v6, 4, v1\nv_and_b32 v7, 15, v1\nv_mul_u32_u24 v4, 272, v6\nv_lshl_add_u32 v4, v7, 4, v4\nv_add_u32 v4, s81, v4')
    A('v_mul_u32_u24 v5, 272, v7\nv_lshl_add_u32 v5, v6, 4, v5\nv_add_u32 v5, s81, v5')
    for T in range(4):
        A(f's_waitcnt vmcnt({12-4*T})')
        for m in range(4): A(f'ds_write_b128 v4, v[{16+16*T+4*m}:{19+16*T+4*m}] offset:{m*1088}')
        A('s_waitcnt lgkmcnt(0)')
        for m in range(4): A(f'ds_read_b128 v[{16+16*T+4*m}:{19+16*T+4*m}], v5 offset:{m*64}')
        A('s_waitcnt lgkmcnt(0)')
    lds_inc(F_KL, 'v7')
    g.stampw(15,18); g.stampw(3,21)
    A('s_setprio 2')
    A(f's_cmp_gt_u32 {sWAVE}, {o.nq}\ns_cbranch_scc1 L_QPX')
    get_E('v12')
    A(f's_cmp_lg_u32 {sWAVE}, 1\ns_cbranch_scc1 L_QP0\ns_mov_b32 s79, 1\ns_branch L_FLAGS\nL_KFLB:\ns_branch L_QPX\nL_QP0:')
    A(f's_lshl_b32 s80, {sG}, 13\ns_lshl_b32 s81, {sB}, 7\ns_add_u32 s80, s80, s81\ns_add_u32 s80, s80, {QF}\ns_add_u32 s81, s80, {QF2-QF}')
    A(f'v_lshrrev_b32 v6, 3, v1\nv_lshlrev_b32 v5, 10, v6\nv_and_b32 v7, 7, v1\nv_lshl_add_u32 v5, v7, 4, v5')
    A(f'v_lshrrev_b32 v6, 4, v1\nv_mul_u32_u24 v13, 272, v6\nv_and_b32 v7, 15, v1\nv_lshl_add_u32 v13, v7, 4, v13\nv_add_u32 v13, {L_Q}, v13')
    A(f's_lshr_b32 s84, {sWAVE}, 1\ns_and_b32 s85, {sWAVE}, 1\ns_add_u32 s84, s84, s85\ns_mul_i32 s84, s84, {o.qstag}\ns_add_u32 s84, s84, {o.qdelay}')
    g.lds_spin('v3', F_KL, 's84', 'v7', sleep=2)
    A('L_QPL:')
    A(f'ds_read_b32 v7, v3 offset:{F_QREADY}\ns_waitcnt lgkmcnt(0)\nv_readfirstlane_b32 s76, v7\ns_cmp_lg_u32 s76, 0\ns_cbranch_scc1 L_QPX')
    A(f'buffer_load_dwordx4 v[96:99], v5, {RWS}, s80 offen sc1\nbuffer_load_dwordx4 v[100:103], v5, {RWS}, s81 offen sc1\ns_waitcnt vmcnt(0)')
    xor_chk(96, 100, 4, 'v12', 'v7')
    A('s_cbranch_vccz L_QPD')
    g.timeout('L_QPD')
    if o.qsleep: A(f's_sleep {o.qsleep}')
    A('s_branch L_QPL\nL_QPD:')
    A('ds_write_b128 v13, v[96:99]\ns_waitcnt lgkmcnt(0)')
    g.lds_set('v3', F_QREADY, 1, 'v7')
    A('L_QPX:')
    A(f'v_and_b32 v6, 3, v1\nv_mul_u32_u24 v6, 272, v6\nv_lshrrev_b32 v7, 4, v1\nv_lshl_add_u32 v6, v7, 4, v6\nv_add_u32 v6, {L_Q}, v6')
    A(f'v_bfe_u32 v5, v1, 2, 2\nv_lshlrev_b32 v4, {(KST//32).bit_length()-1}, v5\nv_lshrrev_b32 v5, 5, v1\nv_lshl_add_u32 v4, v5, 6, v4\nv_and_b32 v5, 3, v1\nv_lshl_add_u32 v4, v5, 4, v4\nv_bfe_u32 v5, v1, 4, 1\nv_lshl_add_u32 v4, v5, 3, v4')
    A(f's_and_b32 s86, {sJ}, 1\ns_lshl_b32 s81, {sPAIR}, 14\ns_lshl_b32 s82, s86, 13\ns_add_u32 s81, s81, s82')
    tile0('s82','s83')
    A('s_lshl_b32 s82, s82, 7\ns_add_u32 s81, s81, s82')
    A(f'v_and_b32 v5, 3, v1\nv_lshlrev_b32 v5, 3, v5\ns_lshl_b32 s82, {sPAIR}, 10\ns_add_u32 s82, s82, {ST}\ns_lshl_b32 s84, s86, 9\ns_add_u32 s83, s82, s84\ns_xor_b32 s84, s84, 512\ns_add_u32 s82, s82, s84')
    A(f'v_lshlrev_b32 v14, 3, v1\nv_add_u32 v14, {L_X1S}, v14\ns_lshl_b32 s84, {sWAVE}, 5\nv_add_u32 v13, s84, v14\nv_add_u32 v15, {L_X1S+512}, v5')
    get_mode('v7')
    g.lds_spin('v3', F_QREADY, 1, 'v7', sleep=1)
    g.stampw(4,6)
    for m in range(4): A(f'ds_read_b128 v[{96+4*m}:{99+4*m}], v6 offset:{m*64}')
    for m in range(4):
        A(f's_waitcnt lgkmcnt({3-m})')
        for T in range(4):
            r=16+16*T+4*m; d=80+4*T
            c='0' if m==0 else f'v[{d}:{d+3}]'
            A(f'v_mfma_f32_16x16x32_bf16 v[{d}:{d+3}], v[{r}:{r+3}], v[{96+4*m}:{99+4*m}], {c}')
    for T in range(1,4):
        mk = 0x000f000f << (4*T)
        A(f's_mov_b32 vcc_lo, 0x{mk:x}\ns_mov_b32 vcc_hi, 0x{mk:x}')
        for r in range(4): A(f'v_cndmask_b32 v{80+r}, v{80+r}, v{80+4*T+r}, vcc')
    g.rnd2(80,81,8); g.rnd2(82,83,9)
    for r in range(4): A(f'v_mul_f32 v{80+r}, 0x{SCALE:x}, v{80+r}')
    g.rnd2(80,81,8); g.rnd2(82,83,9)
    A('v_max3_f32 v10, v80, v81, v82\nv_max_f32 v10, v10, v83')
    A('v_max_f32_dpp v10, v10, v10 row_ror:4 row_mask:0xf bank_mask:0xf\nv_max_f32_dpp v10, v10, v10 row_ror:8 row_mask:0xf bank_mask:0xf')
    g.red_rows('v_max_f32', [10], [12])
    for r in range(4): A(f'v_sub_f32 v{80+r}, v{80+r}, v10')
    for r in range(4): A(f'v_mul_f32 v{80+r}, 0x{LOG2E:x}, v{80+r}')
    for r in range(4): A(f'v_exp_f32 v{80+r}, v{80+r}')
    A('v_add_f32 v11, v80, v81\nv_add_f32 v12, v82, v83\nv_add_f32 v11, v11, v12')
    A('v_add_f32_dpp v11, v11, v11 row_ror:4 row_mask:0xf bank_mask:0xf\nv_add_f32_dpp v11, v11, v11 row_ror:8 row_mask:0xf bank_mask:0xf')
    g.red_rows('v_add_f32', [11], [12])
    A('s_mov_b64 exec, 15\nds_write_b64 v13, v[10:11]\ns_mov_b64 exec, -1\ns_waitcnt lgkmcnt(0)\ns_barrier')
    A(f's_cmp_lg_u32 {sWAVE}, 0\ns_cbranch_scc1 L_STW')
    A('ds_read_b64 v[24:25], v14\ns_waitcnt lgkmcnt(0)')
    A('v_max_f32_dpp v20, v24, v24 row_ror:4 row_mask:0xf bank_mask:0xf\nv_max_f32_dpp v20, v20, v20 row_ror:8 row_mask:0xf bank_mask:0xf')
    g.red_rows('v_max_f32', [20], [12])
    A(f'v_sub_f32 v24, v24, v20\nv_mul_f32 v24, 0x{LOG2E:x}, v24\nv_exp_f32 v24, v24\nv_mul_f32 v21, v24, v25')
    A('v_add_f32_dpp v21, v21, v21 row_ror:4 row_mask:0xf bank_mask:0xf\nv_add_f32_dpp v21, v21, v21 row_ror:8 row_mask:0xf bank_mask:0xf')
    g.red_rows('v_add_f32', [21], [12])
    g.nosent([20,21])
    A('s_mov_b64 exec, 15')
    g.pub(f'buffer_store_dwordx2 v[20:21], v5, {RWL}, s83 offen', True)
    A('s_mov_b64 exec, -1')
    g.stamp(19)
    g.poll([f'buffer_load_dwordx2 v[26:27], v5, {RWL}, s82 offen sc1'], [26,27], 'v12', sleep=o.stsleep)
    A('v_max_f32 v28, v20, v26')
    A(f'v_sub_f32 v24, v20, v28\nv_sub_f32 v26, v26, v28\nv_mul_f32 v24, 0x{LOG2E:x}, v24\nv_mul_f32 v26, 0x{LOG2E:x}, v26\nv_exp_f32 v24, v24\nv_exp_f32 v26, v26')
    A('v_mul_f32 v21, v24, v21\nv_mul_f32 v27, v26, v27\nv_add_f32 v21, v21, v27')
    A('v_rcp_f32 v29, v21\nv_fma_f32 v30, -v21, v29, 1.0\nv_fmac_f32 v29, v30, v29')
    A('ds_write_b64 v15, v[28:29]\ns_waitcnt lgkmcnt(0)')
    A('L_STW:\ns_barrier')
    A('ds_read_b64 v[28:29], v15\ns_waitcnt lgkmcnt(0)')
    A(f'v_sub_f32 v10, v10, v28\nv_mul_f32 v10, 0x{LOG2E:x}, v10\nv_exp_f32 v10, v10\nv_mul_f32 v10, v10, v29')
    for r in range(4): A(f'v_mul_f32 v{80+r}, v{80+r}, v10')
    A('v_cvt_pk_bf16_f32 v8, v80, v81\nv_cvt_pk_bf16_f32 v9, v82, v83')
    g.nosent([8,9])
    g.pub(f'buffer_store_dwordx2 v[8:9], v4, {RWL}, s81 offen', True)
    g.stampw(15,7)
    A('s_barrier')
    A(f's_cmp_eq_u32 {sJ}, 3\ns_cbranch_scc1 L_KW3')
    g.dma_voff('v12','v13',1024,'v14')
    A('v_and_b32 v16, 0x7f, v12\nv_bfe_u32 v14, v1, 3, 2\nv_lshl_add_u32 v16, v14, 17, v16\nv_lshrrev_b32 v14, 5, v1\nv_lshl_add_u32 v16, v14, 13, v16\nv_xor_b32 v17, 64, v16')
    A(f's_lshl_b32 s82, {sG}, 19\ns_lshl_b32 s83, {sW8}, 10\ns_add_u32 s82, s82, s83\ns_lshr_b32 s83, {sWAVE}, 3\ns_lshl_b32 s83, s83, 16\ns_add_u32 s82, s82, s83\ns_lshl_b32 s84, {sB}, 7\ns_add_u32 s82, s82, s84\ns_lshl_b32 s83, {sWAVE}, 12')
    blk_dma(RW1, 4, 's82', 2048, 's83', 'v16', 'v17')
    if not o.dnlate:
        A(f's_cmp_eq_u32 {sG}, 7\ns_cbranch_scc1 L_KWD0')
        A(f's_lshl_b32 s82, {sG}, 18\ns_lshl_b32 s83, {sWAVE}, 14\ns_add_u32 s82, s82, s83\ns_add_u32 s82, s82, s84\ns_lshl_b32 s83, {sWAVE}, 11\ns_add_u32 s83, s83, {L_W2}')
        blk_dma(RWD, 2, 's82', 1024, 's83', 'v12', 'v13')
        A('s_waitcnt vmcnt(2)\ns_branch L_KWD1\nL_KWD0:\ns_waitcnt vmcnt(0)\nL_KWD1:\ns_barrier')
    else:
        A('s_waitcnt vmcnt(0)\ns_barrier')
    A(f's_and_b32 s82, s2, 63\ns_and_b32 s84, {sWAVE}, 3')
    A(f's_cmp_ge_u32 {sWAVE}, 12\ns_cbranch_scc1 L_WO\ns_cmp_ge_u32 {sWAVE}, 8\ns_cbranch_scc1 L_DN')
    A(f'v_lshlrev_b32 v4, 4, v1\ns_lshl_b32 s80, {sG}, 13\ns_lshl_b32 s81, {sWAVE}, 10\ns_add_u32 s80, s80, s81\ns_add_u32 s85, s80, {GU}\ns_add_u32 s80, s80, {OO}')
    A(f's_mul_i32 s81, {sWAVE}, 1056\ns_add_u32 s81, s81, {L_ACT}\nv_add_u32 v5, s81, v4')
    A(f'v_bfe_u32 v7, v1, 1, 3\nv_mul_u32_u24 v6, 544, v7\nv_lshrrev_b32 v7, 4, v1\nv_lshl_add_u32 v6, v7, 5, v6\nv_and_b32 v7, 1, v1\nv_lshl_add_u32 v6, v7, 4, v6\ns_lshl_b32 s82, {sWAVE}, 7\ns_add_u32 s82, s82, {L_ACT2}\nv_add_u32 v6, s82, v6\ns_add_u32 s86, s85, 4096')
    g.poll([f'buffer_load_dwordx4 v[16:19], v4, {RWL}, s80 offen sc1'], range(16,20), 'v12', sleep=o.osleep)
    A('ds_write_b128 v5, v[16:19]\ns_waitcnt lgkmcnt(0)\ns_barrier')
    A(f's_cmp_ge_u32 {sWAVE}, 4\ns_cbranch_scc1 L_END\ns_cmp_eq_u32 {sG}, 7\ns_cbranch_scc1 L_END')
    g.poll([f'buffer_load_dwordx4 v[16:19], v4, {RWL}, s85 offen sc1', f'buffer_load_dwordx4 v[20:23], v4, {RWL}, s86 offen sc1'], range(16,24), 'v12')
    for i in range(8): g.unpack(16+i, 32+2*i, 33+2*i)
    for i in range(8): A(f'v_mul_f32 v{32+i}, v{32+i}, v{40+i}')
    for i in range(4): A(f'v_cvt_pk_bf16_f32 v{16+i}, v{32+2*i}, v{33+2*i}')
    A('ds_write_b128 v6, v[16:19]\ns_waitcnt lgkmcnt(0)\ns_barrier')
    A('s_branch L_END')
    A('L_WO:')
    g.tr_addr('v5', 's84', L_W, 'v6', 'v7')
    g.tr_frags('v5', 16, range(16))
    g.act_addr('v6', L_ACT, 1056, 'v7')
    A(f's_lshl_b32 s83, s82, 11\ns_lshl_b32 s85, s84, 9\ns_add_u32 s83, s83, s85\ns_add_u32 s83, s83, {WP}')
    g.part_store_addr('v4', 's83', 'v7')
    A('s_waitcnt vmcnt(0) lgkmcnt(0)\ns_barrier')
    gemv16(16, 'v6', 8, [80,96])
    g.nosent(range(8,12))
    A(HALF)
    A(f'buffer_store_dwordx4 v[8:11], v4, {RWS}, 0 offen sc1')
    A('s_mov_b64 exec, -1')
    lds_inc(F_C3, 'v7')
    g.stampw(12,11)
    if o.stamps:
        A(f's_cmp_lg_u32 {sG}, 7\ns_cbranch_scc1 L_END\ns_cmp_eq_u32 {sWAVE}, 12\ns_cbranch_scc1 L_DUMP')
    A('s_branch L_END')
    A('L_DN:')
    g.tr_addr('v5', 's84', L_W2, 'v6', 'v7')
    g.act_addr('v6', L_ACT2, 544, 'v7')
    A(f's_lshl_b32 s83, s82, 11\ns_lshl_b32 s85, s84, 9\ns_add_u32 s83, s83, s85\ns_add_u32 s83, s83, {DP}')
    g.part_store_addr('v4', 's83', 'v7')
    A('s_waitcnt vmcnt(0)\ns_barrier')
    A(f's_cmp_eq_u32 {sG}, 7\ns_cbranch_scc1 L_END')
    if o.dnlate:
        A(f's_lshl_b32 s82, {sG}, 18\ns_lshl_b32 s83, s84, 16\ns_add_u32 s82, s82, s83\ns_lshl_b32 s83, {sB}, 7\ns_add_u32 s82, s82, s83\ns_lshl_b32 s83, s84, 13\ns_add_u32 s83, s83, {L_W2}')
        g.lds_spin('v3', F_C3, 4, 'v7', sleep=1)
        blk_dma(RWD, 8, 's82', 1024, 's83', 'v12', 'v13')
        A('s_waitcnt vmcnt(0)')
        lds_inc(F_SUB, 'v7')
        g.lds_spin('v3', F_SUB, 4, 'v7', sleep=0)
    g.tr_frags('v5', 16, range(8))
    A('s_waitcnt lgkmcnt(0)\ns_barrier')
    g.gemv_tile(16, 8, 'v6', 48, 8)
    g.nosent(range(8,12))
    A(HALF)
    A(f'buffer_store_dwordx4 v[8:11], v4, {RWS}, 0 offen sc1')
    A('s_mov_b64 exec, -1')
    g.stampw(8,14)
    if o.stamps:
        A(f's_cmp_eq_u32 {sWAVE}, 8\ns_cbranch_scc1 L_DUMP')
    A('s_branch L_END')
    A('L_KW3:')
    if o.stamps:
        A(f's_cmp_lg_u32 {sG}, 7\ns_cbranch_scc1 L_KW3a\ns_cmp_eq_u32 {sWAVE}, 15\ns_cbranch_scc1 L_DUMP\ns_branch L_END\nL_KW3a:')
    else:
        A(f's_cmp_eq_u32 {sG}, 7\ns_cbranch_scc1 L_END')
    g.dma_voff('v12','v13',3584,'v14')
    A(f's_mul_i32 s82, {sWAVE}, {32*3584}\ns_lshl_b32 s83, {sG}, 2\ns_and_b32 s84, {sB}, 3\ns_add_u32 s83, s83, s84\ns_lshl_b32 s83, s83, 7\ns_add_u32 s82, s82, s83\ns_lshl_b32 s83, {sWAVE}, 12')
    if o.gulate:
        if o.gulate==1:
            A(f's_cmp_lg_u32 {sWAVE}, 0\ns_cbranch_scc1 L_GUW\ns_lshl_b32 s80, {sPAIR}, 10\ns_add_u32 s80, s80, {OO}\nv_mov_b32 v5, 0')
            g.poll([f'buffer_load_dword v16, v5, {RWL}, s80 offen sc1'], [16], 'v7', sleep=4)
        else:
            A(f's_cmp_lg_u32 {sWAVE}, 0\ns_cbranch_scc1 L_GUW\ns_lshl_b32 s80, {sG}, 13\ns_add_u32 s80, s80, {OO}\nv_and_b32 v5, 15, v1\nv_lshlrev_b32 v5, 9, v5')
            A(f'L_GUP:\nbuffer_load_dword v16, v5, {RWL}, s80 offen sc1\ns_waitcnt vmcnt(0)\nv_cmp_ne_u32 vcc, -1, v16\ns_and_b32 s81, vcc_lo, 0xffff\ns_bcnt1_i32_b32 s81, s81\ns_cmp_ge_u32 s81, {o.gulate-1}\ns_cbranch_scc1 L_GUW')
            g.timeout('L_GUW')
            A('s_sleep 4\ns_branch L_GUP')
        A('L_GUW:\ns_barrier')
    if o.gutr:
        for i in range(4):
            g.dma(RW1, 'v13' if i&1 else 'v12', 's82', i*8*3584, 's83', i*1024)
            A('s_waitcnt vmcnt(0)')
    else:
        blk_dma(RW1, 4, 's82', 3584, 's83', 'v12', 'v13')
    A('s_waitcnt vmcnt(0)\ns_barrier')
    A(f's_cmp_ge_u32 {sWAVE}, 12\ns_cbranch_scc1 L_GU\ns_cmp_ge_u32 {sWAVE}, 8\ns_cbranch_scc1 L_END')
    A(f'v_lshlrev_b32 v4, 4, v1\ns_lshl_b32 s80, {sWAVE}, 12\ns_add_u32 s80, s80, {MT}\ns_add_u32 s81, s80, {MT2-MT}')
    A(f'ds_read_b32 v13, v3 offset:{F_E}\ns_waitcnt lgkmcnt(0)')
    xpoll([f'buffer_load_dwordx4 v[48:51], v4, {RWS}, s80 offen offset:1024 sc1', f'buffer_load_dwordx4 v[52:55], v4, {RWS}, s80 offen offset:2048 sc1',
           f'buffer_load_dwordx4 v[56:59], v4, {RWS}, s81 offen offset:1024 sc1', f'buffer_load_dwordx4 v[60:63], v4, {RWS}, s81 offen offset:2048 sc1'], 48, 56, 8, 'v13', 'v12', sleep=8)
    for i in range(8): g.unpack(48+i, 32+2*i, 33+2*i)
    for i in range(8): A(f'v_add_f32 v{40+i}, 1.0, v{40+i}')
    for i in range(4): g.rnd2(40+2*i,41+2*i,13)
    A(f's_mul_i32 s81, {sWAVE}, 1056\ns_add_u32 s81, s81, {L_ACT}\nv_add_u32 v5, s81, v4')
    A(f'v_lshrrev_b32 v7, 3, v1\nv_lshlrev_b32 v4, 10, v7\nv_and_b32 v7, 7, v1\nv_lshl_add_u32 v4, v7, 4, v4')
    A(f's_lshl_b32 s80, {sG}, 13\ns_lshl_b32 s81, {sWAVE}, 7\ns_add_u32 s80, s80, s81\ns_add_u32 s80, s80, {X1}')
    g.poll([f'buffer_load_dwordx4 v[8:11], v4, {RWL}, s80 offen sc1'], range(8,12), 'v12', sleep=o.osleep)
    g.ln8(8, 16, 48)
    for i in range(8): A(f'v_mul_f32 v{16+i}, v{16+i}, v{40+i}')
    for i in range(4): g.rnd2(16+2*i,17+2*i,48+i)
    for i in range(8): A(f'v_add_f32 v{16+i}, v{16+i}, v{32+i}')
    for i in range(4): A(f'v_cvt_pk_bf16_f32 v{8+i}, v{16+2*i}, v{17+2*i}')
    A('ds_write_b128 v5, v[8:11]\ns_waitcnt lgkmcnt(0)\ns_barrier')
    A('s_branch L_END')
    A('L_GU:')
    A(f's_and_b32 s84, {sWAVE}, 3')
    g.tr_addr('v5', 's84', L_W, 'v6', 'v7')
    g.tr_frags('v5', 16, range(16))
    g.act_addr('v6', L_ACT, 1056, 'v7')
    A(f's_lshl_b32 s83, {sPAIR}, 10\ns_lshl_b32 s85, s84, 8\ns_add_u32 s83, s83, s85\ns_add_u32 s83, s83, {GU}')
    A('v_and_b32 v7, 15, v1\nv_lshlrev_b32 v4, 5, v7\nv_lshrrev_b32 v7, 4, v1\nv_lshl_add_u32 v4, v7, 3, v4')
    A('s_waitcnt lgkmcnt(0)\ns_barrier')
    gemv16(16, 'v6', 8, [80,96])
    g.rnd2(8,9,12); g.rnd2(10,11,13)
    A(f's_cmp_ge_u32 {sB}, 4\ns_cbranch_scc1 L_T2U')
    g.silu_inplace([8,9,10,11],[16,17,18,19])
    A('v_cvt_pk_bf16_f32 v12, v8, v9\nv_cvt_pk_bf16_f32 v13, v10, v11')
    A('L_T2U:')
    g.nosent([12,13])
    A(HALF)
    g.pub(f'buffer_store_dwordx2 v[12:13], v4, {RWL}, s83 offen', True)
    A('s_mov_b64 exec, -1')
    g.stampw(12,13)
    if o.stamps:
        A(f's_cmp_lg_u32 {sWAVE}, 12\ns_cbranch_scc1 L_END')
    A('L_DUMP:')
    if o.stamps:
        A(f'v_lshlrev_b32 v4, 2, v1\nv_add_u32 v5, {L_STAMP}, v4\nds_read_b32 v6, v5\nv_mov_b32 v7, 0\nv_lshlrev_b32 v4, 3, v1')
        A(f's_add_u32 s80, s58, 0x{STAMP:x}\ns_addc_u32 s81, s59, 0\ns_lshl_b32 s82, s2, 8\ns_add_u32 s80, s80, s82\ns_addc_u32 s81, s81, 0')
        A('s_waitcnt lgkmcnt(0)\ns_mov_b32 exec_hi, 0\nglobal_store_dwordx2 v4, v[6:7], s[80:81]')
        if o.dbgst:
            A('s_mov_b64 exec, -1\nv_mov_b32 v8, 0')
            for i,sl in enumerate(o.dbgst): A(f'v_writelane_b32 v8, {sl}, {i+1}')
            A(f'v_lshlrev_b32 v8, 2, v8\nv_add_u32 v8, {L_STAMP}, v8\nds_read_b32 v9, v8\nds_read_b32 v10, v3 offset:{F_E}\nv_lshlrev_b32 v11, 2, v1\ns_waitcnt lgkmcnt(0)')
            A(f'v_cmp_ne_u32 vcc, 0, v9\nv_sub_u32 v9, v9, v10\nv_add_u32 v9, 1000, v9\ns_and_b32 exec_lo, vcc_lo, 0xfffe\ns_mov_b32 exec_hi, 0\ns_cbranch_execz L_END')
            A(f'buffer_atomic_umax v9, v11, {RDBG}, 0 offen sc1')
    A('L_END:\ns_endpgm\nL_CODE_END:')
    return g.L

def emit(o, fname):
    body = build(o)
    body, n = fix_hazards(body)
    hdr = open('cdna_kernels/'+NAME+'.s.ref').read().split('; Override launch')[0]
    out = hdr + f'; @launch grid=(256,1,1) block=(1024,1,1) lds={LDS_SIZE}\n'
    out += f'.amdgcn_target "amdgcn-amd-amdhsa--gfx950"\n.text\n.globl {NAME}_kernel\n.p2align 8\n.type {NAME}_kernel,@function\n{NAME}_kernel:\n'
    out += '\n'.join(('' if l.endswith(':') else '    ')+l for l in body) + '\n'
    out += f'''.section .rodata,"a"
.p2align 6
.amdhsa_kernel {NAME}_kernel
  .amdhsa_next_free_vgpr 128
  .amdhsa_next_free_sgpr 102
  .amdhsa_accum_offset 128
  .amdhsa_group_segment_fixed_size 0
  .amdhsa_kernarg_size 112
  .amdhsa_user_sgpr_count 2
  .amdhsa_user_sgpr_kernarg_segment_ptr 1
  .amdhsa_system_sgpr_workgroup_id_x 1
  .amdhsa_float_denorm_mode_32 3
  .amdhsa_float_denorm_mode_16_64 3
.end_amdhsa_kernel
'''
    open(fname,'w').write(out)
    print(fname, len(body), 'lines', n, 'nops inserted')

if __name__=='__main__':
    ap=argparse.ArgumentParser()
    ap.add_argument('-o', default='k.s')
    ap.add_argument('--stamps', action='store_true')
    ap.add_argument('--local', action='store_true')
    for k,d in dict(codepf=1,mpdelay=0,mpsleep=2,fldelay=80,hdelay=8,mtearly=0,pgate=12,psleep=4,thr=0,thrw=4,qdelay=8,qsleep=2,stsleep=0,osleep=0,gulate=2,nq=3,qstag=1,kpre=1,dnlate=1,gutr=0,dhswap=0).items():
        ap.add_argument('--'+k, type=int, default=d)
    ap.add_argument('--dearly', type=lambda x:[int(t) for t in x.split(',') if t], default=[4,5,6,7])
    ap.add_argument('--cearly', type=lambda x:[int(t) for t in x.split(',') if t], default=list(range(16)))
    ap.add_argument('--cpre', type=lambda x:[int(t) for t in x.split(',') if t], default=[])
    ap.add_argument('--dbgst', type=lambda x:[int(t) for t in x.split(',') if t], default=[])
    ap.add_argument('--kmap', default='int')
    o=ap.parse_args()
    emit(o, o.o)
```
